```python
import torch

def _softmax(x, axis=-1):
    return torch.softmax(x, dim=axis)

def _gelu(x):
    return torch.nn.functional.gelu(x, approximate='tanh')

def _silu(x):
    return torch.nn.functional.silu(x)

def _sigmoid(x):
    return torch.sigmoid(x)

def _layernorm(x, axis=-1, eps=1e-05):
    m = x.mean(dim=axis, keepdim=True)
    v = x.var(dim=axis, keepdim=True, unbiased=False)
    return (x - m) / torch.sqrt(v + eps)

def _scatter_add(tgt, idx, src, axis=0):
    return tgt.clone().index_add_(axis, idx, src)

def _segment_sum(src, seg, n):
    out = torch.zeros((n,) + src.shape[1:], dtype=src.dtype)
    return out.index_add_(0, seg, src)

def _pad(x, pw):
    flat = tuple((v for pair in reversed(pw) for v in pair))
    return torch.nn.functional.pad(x, flat)
kernel_name = 'adaLN_cond__sliding_block_cached__mixer_channel_mlp__decode'

def setup_inputs():

    _w = lambda a: (lambda t: t.to(torch.bfloat16) if t.is_floating_point() else t)(torch.as_tensor(a))

    def _A_setup():
        B, Sq, D = (1, 1, 576)
        Hq, Hkv, Sk, Dh = (32, 16, 32768, 128)
        assert Hq % Hkv == 0, (Hq, Hkv)
        return {'x': _w((lambda *s: torch.randn(*s, dtype=torch.bfloat16) * 0.1)(B, Sq, D)), 'k_cache': _w((lambda *s: torch.randn(*s, dtype=torch.bfloat16) * 0.8)(B, Hkv, Sk, Dh)), 'v_cache': _w((lambda *s: torch.randn(*s, dtype=torch.bfloat16) * 0.8)(B, Hkv, Sk, Dh)), 'wq': _w((lambda *s: torch.randn(*s, dtype=torch.bfloat16) * 0.8)(D, Hq * Dh) * D ** (-0.5)), 'wo': _w((lambda *s: torch.randn(*s, dtype=torch.bfloat16) * 0.8)(Hq * Dh, D) * (Hq * Dh) ** (-0.5))}
    _A_in = _A_setup()

    def _B_setup():
        B, S, D, F = (1, 1, 576, 4608)
        return {'x': _w((lambda *s: torch.randn(*s, dtype=torch.bfloat16) * 0.1)(B, S, D)), 'w1': _w((lambda *s: torch.randn(*s, dtype=torch.bfloat16) * 3.2)(D, F) * D ** (-0.5)), 'b1': _w((lambda *s: torch.randn(*s, dtype=torch.bfloat16) * 3.2)(F)), 'w2': _w((lambda *s: torch.randn(*s, dtype=torch.bfloat16) * 1.6)(F, D) * F ** (-0.5)), 'b2': _w((lambda *s: torch.randn(*s, dtype=torch.bfloat16) * 1.6)(D))}
    _B_in = _B_setup()
    return {'A_x': _A_in['x'], 'A_k_cache': _A_in['k_cache'], 'A_v_cache': _A_in['v_cache'], 'A_wq': _A_in['wq'], 'A_wo': _A_in['wo'], 'B_x': _B_in['x'], 'B_w1': _B_in['w1'], 'B_b1': _B_in['b1'], 'B_w2': _B_in['w2'], 'B_b2': _B_in['b2'], 'c': _w((lambda *s: torch.randn(*s, dtype=torch.bfloat16) * 0.4)(1, 576) * 8.0), 'w_mod': _w((lambda *s: torch.randn(*s, dtype=torch.bfloat16) * 0.4)(576, 6 * 576) * 576 ** (-0.5) * 8.0)}

def reference(A_x, A_k_cache, A_v_cache, A_wq, A_wo, B_x, B_w1, B_b1, B_w2, B_b2, c, w_mod):

    def _A_ref(x, k_cache, v_cache, wq, wo):
        B, Sq, D = x.shape
        Hq, Dh = (32, 128)
        Hkv, Sk = (k_cache.shape[1], k_cache.shape[2])
        W = min(4096, max(256, Sk // 4))
        rep = Hq // Hkv
        q = (lambda x, *d: x.permute(*d))((x @ wq).reshape(B, Sq, Hq, Dh), 0, 2, 1, 3)
        k = (lambda x, n, axis: torch.repeat_interleave(x, n, dim=axis))(k_cache[:, :, Sk - W:, :], rep, axis=1)
        v = (lambda x, n, axis: torch.repeat_interleave(x, n, dim=axis))(v_cache[:, :, Sk - W:, :], rep, axis=1)
        scores = torch.einsum('bhqd,bhkd->bhqk', q, k) * Dh ** (-0.5)
        p = _softmax(scores, axis=-1)
        o = torch.einsum('bhqk,bhkd->bhqd', p, v)
        return (lambda x, *d: x.permute(*d))(o, 0, 2, 1, 3).reshape(B, Sq, Hq * Dh) @ wo

    def _B_ref(x, w1, b1, w2, b2):
        y = _layernorm(x, axis=-1)
        h = _gelu(torch.einsum('bsd,df->bsf', y, w1) + b1)
        return torch.einsum('bsf,fd->bsd', h, w2) + b2
    x = A_x
    mod = (_silu(c) @ w_mod).reshape(c.shape[0], 6, 1, -1)
    sa, ca, ga, sb, cb, gb = (mod[:, 0].clone(), mod[:, 1].clone(), mod[:, 2].clone(), mod[:, 3].clone(), mod[:, 4].clone(), mod[:, 5].clone())
    h = _layernorm(x, axis=-1) * (1 + ca) + sa
    x = x + ga * _A_ref(h, A_k_cache, A_v_cache, A_wq, A_wo)
    h = _layernorm(x, axis=-1) * (1 + cb) + sb
    x = x + gb * _B_ref(h, B_w1, B_b1, B_w2, B_b2)
    return x
```

```python
import re

TRANS = ("v_exp_f32", "v_log_f32", "v_rcp_f32", "v_rsq_f32", "v_sqrt_f32", "v_sin_f32", "v_cos_f32")

def _regs(tok):
    tok = tok.strip()
    tok = tok.lstrip("-")
    m = re.fullmatch(r"abs\((.*)\)|\|(.*)\|", tok)
    if m: tok = m.group(1) or m.group(2)
    m = re.fullmatch(r"([vsa])(\d+)", tok)
    if m: return {(m.group(1), int(m.group(2)))}
    m = re.fullmatch(r"([vsa])\[(\d+):(\d+)\]", tok)
    if m: return {(m.group(1), k) for k in range(int(m.group(2)), int(m.group(3)) + 1)}
    if tok == "vcc": return {("s", "vcc")}
    if tok == "exec": return {("s", "exec")}
    if tok == "m0": return {("s", "m0")}
    return set()

class Ins:
    def __init__(self, text):
        self.text = text
        t = text.split(";")[0].strip()
        self.label = t.endswith(":")
        self.directive = t.startswith(".") and not self.label
        self.op = ""
        self.wv = set(); self.rv = set(); self.ws = set(); self.rs = set()
        self.kind = "other"
        self.states = 1
        if self.label or self.directive or not t:
            self.states = 0
            self.kind = "none"
            return
        parts = t.split(None, 1)
        self.op = op = parts[0]
        rest = parts[1] if len(parts) > 1 else ""
        ops = []; depth = 0; cur = ""
        for ch in rest:
            if ch == "[": depth += 1
            if ch == "]": depth -= 1
            if ch == "," and depth == 0:
                ops.append(cur); cur = ""
            else: cur += ch
        if cur.strip(): ops.append(cur)
        mods = ""
        if ops:
            last = ops[-1].strip().split(None, 1)
            ops[-1] = last[0]
            mods = last[1] if len(last) > 1 else ""
        ops = [o.strip() for o in ops]
        self.ops = ops; self.mods = mods
        V = lambda s: {r for r in s if r[0] == "v"}
        S = lambda s: {r for r in s if r[0] == "s"}
        allr = [_regs(o) for o in ops]
        if op == "s_nop":
            self.states = int(ops[0], 0) + 1
            self.kind = "salu"
        elif op.startswith("v_mfma"):
            self.kind = "mfma"
            self.wv = V(allr[0]); self.A = V(allr[1]); self.B = V(allr[2]); self.C = V(allr[3])
            self.rv = self.A | self.B | self.C
        elif op.startswith("v_"):
            self.kind = "valu"
            self.trans = any(op.startswith(x) for x in TRANS)
            self.dpp = ("quad_perm" in mods or "row_" in mods)
            self.perml = op.startswith("v_permlane")
            self.rdlane = op.startswith("v_readfirstlane") or op.startswith("v_readlane")
            if self.perml:
                self.wv = V(allr[0] | allr[1]); self.rv = set(self.wv)
            else:
                self.wv = V(allr[0]); self.ws = S(allr[0])
                src = set().union(*allr[1:]) if len(allr) > 1 else set()
                if op.startswith("v_cmp") and not S(allr[0]) and not V(allr[0]): pass
                self.rv = V(src); self.rs = S(src)
                if op.startswith(("v_fmac", "v_dot2c", "v_writelane")) or self.dpp or "sdwa" in op: self.rv |= self.wv
                if op.startswith("v_cndmask") and len(ops) == 3: self.rs |= {("s", "vcc")}
        elif op.startswith(("buffer_", "global_", "ds_")):
            self.kind = "mem"
            isload = ("load" in op or op.startswith("ds_read") or "rtn" in op or "swizzle" in op or "permute" in op)
            if op in ("buffer_inv", "buffer_wbl2"):
                pass
            elif isload and "lds" not in mods.split():
                self.wv = V(allr[0]); src = set().union(*allr[1:])
                self.rv = V(src); self.rs = S(src)
            else:
                src = set().union(*allr); self.rv = V(src); self.rs = S(src)
            self.widestore = ("store" in op and ("x4" in op or "x3" in op))
            if self.widestore:
                self.sdata = V(allr[0] if op.startswith("buffer") else allr[1])
        else:
            self.kind = "salu"

class Asm:
    def __init__(self):
        self.ins = []
        self.nlab = 0
    def __call__(self, text):
        for line in text.strip("\n").split("\n"):
            line = line.strip()
            if not line or line.startswith(";"): continue
            self._add(Ins(line))
    def label(self, base="L"):
        self.nlab += 1
        return f"{base}_{self.nlab}"
    def _need(self, c):
        need = 0
        dist = 0
        for p in reversed(self.ins):
            if p.kind == "none":
                continue
            if dist >= 20: break
            req = 0
            if p.kind == "valu":
                if c.kind == "valu":
                    if c.dpp and (p.wv & c.rv): req = max(req, 2)
                    if c.perml and (p.wv & c.rv): req = max(req, 2)
                    if c.rdlane and (p.wv & c.rv): req = max(req, 1)
                    if p.trans and (p.wv & c.rv): req = max(req, 1)
                    if p.ws & c.rs: req = max(req, 4 if c.op.startswith(("v_readlane", "v_writelane")) else 2)
                    if ("sdwa" in p.op or "op_sel:" in p.mods) and (p.wv & (c.rv | c.wv)): req = max(req, 1)
                elif c.kind == "mfma":
                    if p.wv & c.rv: req = max(req, 2)
                elif c.kind == "mem":
                    if p.ws & c.rs: req = max(req, 5)
            elif p.kind == "mfma":
                passes = 4 if "16x16x32" in p.op else 8
                big = {4: 8, 8: 12}[passes]
                if c.kind == "valu" or c.kind == "mem":
                    if p.wv & (c.rv | c.wv): req = max(req, big)
                    if c.kind == "valu" and (p.C & c.wv): req = max(req, {4: 3, 8: 7}[passes])
                elif c.kind == "mfma":
                    if p.wv & (c.A | c.B): req = max(req, big)
                    if p.wv & c.C and p.wv != c.C: req = max(req, big - 2)
                    if (p.wv & c.wv) and not (p.wv == c.C): req = max(req, big - 2)
            elif p.kind == "mem":
                if getattr(p, "widestore", False) and (p.sdata & c.wv): req = max(req, 2)
            need = max(need, req - dist)
            dist += p.states
        return need
    def _add(self, c):
        if c.kind != "none":
            n = self._need(c)
            if n > 0:
                self.ins.append(Ins(f"s_nop {n-1}"))
        self.ins.append(c)
    def text(self):
        return "\n".join(i.text if (i.label or i.directive) else "    " + i.text for i in self.ins) + "\n"
```

```python
import sys
sys.path.insert(0, "work")
from asmlib import Asm

KN = "adaLN_cond__sliding_block_cached__mixer_channel_mlp__decode_kernel"

EPOCH = 0
MA = 0x1000
MB = 0xA000
AP = 0xD000
FP = 0x16000
QP = 0x40000
OP = 0x80000
WSREC = 0x100000
DBG = 0x100000

CNT_Q, CNT_MAX, CNT_L, CNT_O, CNT_W = 0, 4, 8, 12, 16
L_MAX = 64
L_LB = 96
L_Q = 128
L_OB = 1024
L_WB = 5120
L_X2 = 9216
L_AA = 11520
L_SS = 13824
L_H1 = 16128
LDS_BYTES = 20480

DPP = "row_mask:0xf bank_mask:0xf"
LOG2E = 0x3fb8aa3b

class P:
    D = 8
    PRE = 2
    D2 = 10
    DC = 5
    XW = 63
    stamps = 0
    preread = 0
    limit = 20000
    nt = "nt"
    prio = 1
    rot = 1

def gen(**kw):
    p = P()
    for k, v in kw.items():
        assert hasattr(p, k), k
        setattr(p, k, v)
    A = Asm()
    nt = p.nt
    sX, sK, sV, sWQ, sWO, sW1, sB1, sW2, sB2, sC, sWM, sOUT, sWS = 16, 18, 20, 22, 24, 28, 30, 32, 34, 36, 38, 40, 42
    sG, sJ, sCLS, sBLK = 4, 5, 6, 7
    sTAG = 8
    sSEL = 12
    R_A, R_B, R_T1, R_T2, R_WS = 44, 48, 52, 56, 60
    sST1, sST2 = 64, 65
    sO1, sO2 = 66, 67
    sCNT = 68
    sT = 69
    vL, vG, vI = 0, 1, 2
    vMASK, vSEL, vTAG, vTG = 4, 8, 12, 13
    def r4(b): return f"v[{b}:{b+3}]"
    def r2(b): return f"v[{b}:{b+1}]"
    def srd(b): return f"s[{b}:{b+3}]"
    def sp(b): return f"s[{b}:{b+1}]"
    def stamp(k):
        if p.stamps: A(f"s_memrealtime s[{72+2*k}:{73+2*k}]")
    def endwave():
        if p.stamps:
            A("s_mov_b64 exec, -1")
            A("s_waitcnt lgkmcnt(0)")
            A(f"s_lshl_b32 s{sT}, s2, 3")
            A(f"s_add_u32 s{sT}, s{sT}, s3")
            A(f"s_lshl_b32 s{sT}, s{sT}, 6")
            A(f"s_add_u32 s{sT}, s{sT}, {DBG}")
            A(f"v_mov_b32 v14, s{sT}")
            A("s_mov_b64 exec, 1")
            for k in range(0, 12, 4):
                for e in range(4): A(f"v_mov_b32 v{16+e}, s{72+2*(k+e)}")
                A(f"global_store_dwordx4 v14, v[16:19], {sp(sWS)} offset:{4*k}")
            A("s_waitcnt vmcnt(0)")
        A("s_endpgm")
    def set_srd(r, lo_expr_s, ptr, rec):
        A(f"s_add_u32 s{r}, s{ptr}, s{lo_expr_s}")
        A(f"s_addc_u32 s{r+1}, s{ptr+1}, 0")
        A(f"s_mov_b32 s{r+2}, {rec}")
        A(f"s_mov_b32 s{r+3}, 0x20000")
    def bf16r(d, s, t=None):
        t = d if t is None else t
        A(f"v_cvt_pk_bf16_f32 v{t}, v{s}, v{s}")
        A(f"v_lshlrev_b32 v{d}, 16, v{t}")
    def rowsall(op, v, t):
        A(f"v_mov_b32 v{t}, v{v}")
        A(f"v_permlane32_swap_b32 v{v}, v{t}")
        A(f"{op} v{v}, v{v}, v{t}")
        A(f"v_mov_b32 v{t}, v{v}")
        A(f"v_permlane16_swap_b32 v{v}, v{t}")
        A(f"{op} v{v}, v{v}, v{t}")
    def wavesum(vs, ts):
        for ctl in ("quad_perm:[1,0,3,2]", "quad_perm:[2,3,0,1]", "row_half_mirror", "row_mirror"):
            for v in vs: A(f"v_add_f32_dpp v{v}, v{v}, v{v} {ctl} {DPP}")
        for sw in ("v_permlane32_swap_b32", "v_permlane16_swap_b32"):
            for v, t in zip(vs, ts): A(f"v_mov_b32 v{t}, v{v}")
            for v, t in zip(vs, ts): A(f"{sw} v{v}, v{t}")
            for v, t in zip(vs, ts): A(f"v_add_f32 v{v}, v{v}, v{t}")
    def redscat(bs):
        for b in bs:
            A(f"v_permlane32_swap_b32 v{b}, v{b+2}")
            A(f"v_permlane32_swap_b32 v{b+1}, v{b+3}")
        for b in bs:
            A(f"v_add_f32 v{b}, v{b}, v{b+2}")
            A(f"v_add_f32 v{b+1}, v{b+1}, v{b+3}")
        for b in bs: A(f"v_permlane16_swap_b32 v{b}, v{b+1}")
        for b in bs: A(f"v_add_f32 v{b}, v{b}, v{b+1}")
    def addgran(d, s):
        A(f"v_pk_add_f32 {r2(d)}, {r2(d)}, {r2(s)}")
        A(f"v_pk_add_f32 {r2(d+2)}, {r2(d+2)}, {r2(s+2)}")
    def tag4(b):
        for e in range(4): A(f"v_perm_b32 v{b+e}, v{b+e}, v{vTAG}, s{sSEL+e}")
    def halfadd(b, t):
        for e in range(4): A(f"v_mov_b32 v{t+e}, v{b+e}")
        for e in range(4): A(f"v_permlane32_swap_b32 v{b+e}, v{t+e}")
        for e in range(4): A(f"v_add_f32_dpp v{b+e}, v{t+e}, v{b+e} row_ror:8 {DPP}")
    def poll(loads, grans, dws, acc):
        L = A.label("poll"); Ld = A.label("pd")
        A(f"s_mov_b32 s{sCNT}, {p.limit}")
        A(f"{L}:")
        for l in loads: A(l)
        A("s_waitcnt vmcnt(0)")
        first = True
        for b in grans:
            for e in range(4):
                if first: A(f"v_xor_b32 v{acc}, s{sTAG+e}, v{b+e}"); first = False
                else: A(f"v_bitop3_b32 v{acc}, v{b+e}, s{sTAG+e}, v{acc} bitop3:0xbe")
        for d in dws:
            A(f"v_bitop3_b32 v{acc}, v{d}, v{vTG}, v{acc} bitop3:0xbe")
        A(f"v_and_b32 v{acc}, 0xff, v{acc}")
        A(f"v_cmp_ne_u32 vcc, 0, v{acc}")
        A(f"s_cbranch_vccz {Ld}")
        A(f"s_sub_u32 s{sCNT}, s{sCNT}, 1")
        A(f"s_cbranch_scc0 {L}")
        A(f"{Ld}:")
    def ldswait(off, target, t, ta):
        L = A.label("lw"); Ld = A.label("lwd")
        A(f"v_mov_b32 v{ta}, 0")
        A(f"s_mov_b32 s{sCNT}, {p.limit*40}")
        A(f"{L}:")
        A(f"ds_read_b32 v{t}, v{ta} offset:{off}")
        A("s_waitcnt lgkmcnt(0)")
        A(f"v_readfirstlane_b32 s{sT}, v{t}")
        A(f"s_cmp_ge_u32 s{sT}, {target}")
        A(f"s_cbranch_scc1 {Ld}")
        A(f"s_sub_u32 s{sCNT}, s{sCNT}, 1")
        A(f"s_cbranch_scc0 {L}")
        A(f"{Ld}:")
    def ldssignal(off, t, ta, rtn=False):
        A(f"v_mov_b32 v{ta}, 0")
        A(f"v_mov_b32 v{t}, 1")
        A("s_waitcnt lgkmcnt(0)")
        A("s_mov_b64 exec, 1")
        if rtn:
            A(f"ds_add_rtn_u32 v{t}, v{ta}, v{t} offset:{off}")
            A("s_waitcnt lgkmcnt(0)")
            A(f"v_readfirstlane_b32 s{sT}, v{t}")
        else:
            A(f"ds_add_u32 v{ta}, v{t} offset:{off}")
        A("s_mov_b64 exec, -1")
    def consts():
        A(f"v_and_b32 v3, 1, v{vI}")
        A(f"v_lshlrev_b32 v3, 4, v3")
        A(f"v_mov_b32 v{vSEL}, 0xffff")
        A(f"v_lshlrev_b32 v3, v3, v{vSEL}")
        A(f"v_bfe_u32 v{vSEL}, v{vI}, 1, 2")
        for d in range(4):
            A(f"v_cmp_eq_u32 vcc, {d}, v{vSEL}")
            A(f"v_cndmask_b32 v{vMASK+d}, 0, v3, vcc")
        A(f"v_lshrrev_b32 v3, 3, v{vI}")
        A(f"s_mov_b32 s{sT}, 0x02020202")
        A(f"v_mul_lo_u32 v3, v3, s{sT}")
        A(f"v_add_u32 v3, 0x01000100, v3")
        A(f"s_mov_b32 s{sT}, 0x0c0c0c0c")
        for d in range(4):
            A(f"v_bfi_b32 v{vSEL+d}, v{vMASK+d}, v3, s{sT}")
    def tagsetup():
        A("s_waitcnt lgkmcnt(0)")
        A(f"s_mul_i32 s{sT}, s{sTAG}, 0x9E3779B1")
        A(f"s_add_u32 s{sT}, s{sT}, 0x7F4A7C15")
        A(f"s_or_b32 s{sT}, s{sT}, 0x01010101")
        A(f"s_xor_b32 s{sTAG}, s{sTAG}, s{sT}")
        for e in range(1, 4): A(f"s_lshr_b32 s{sTAG+e}, s{sTAG}, {8*e}")
        for e in range(4): A(f"s_mov_b32 s{sSEL+e}, {hex(0x07060500 + e)}")
        A(f"v_mov_b32 v{vTAG}, s{sTAG}")
        A(f"v_lshlrev_b32 v{vTG}, 3, v{vG}")
        A(f"v_lshrrev_b32 v{vTG}, v{vTG}, v{vTAG}")
    def silu(regs, tmps):
        for v, t in zip(regs, tmps): A(f"v_mul_f32 v{t}, 0xbfb8aa3b, v{v}")
        for v, t in zip(regs, tmps): A(f"v_exp_f32 v{t}, v{t}")
        for v, t in zip(regs, tmps): A(f"v_add_f32 v{t}, 1.0, v{t}")
        for v, t in zip(regs, tmps): A(f"v_rcp_f32 v{t}, v{t}")
        for v, t in zip(regs, tmps): A(f"v_mul_f32 v{v}, v{v}, v{t}")
    def sparse8(sr, n, dst, t):
        A(f"v_mov_b32_dpp v{t}, v{sr} row_newbcast:{n} {DPP}")
        for d in range(4): A(f"v_perm_b32 v{dst+d}, v{t}, v{t}, v{vSEL+d}")
    def mfma(d, a, b, first):
        A(f"v_mfma_f32_16x16x32_bf16 {r4(d)}, {r4(a)}, {r4(b)}, {'0' if first else r4(d)}")
    vT1, vT2 = 16, 17
    T1B, T2B = 168, 200
    def tail_setup():
        LM, LB_, LN, LE = A.label("tM"), A.label("tB"), A.label("tN"), A.label("tE")
        sSA, sHA, sSB, sHB = sO1, sO2, 70, 71
        A(f"s_cmp_eq_u32 s{sCLS}, 1"); A(f"s_cbranch_scc1 {LM}")
        A(f"s_cmp_eq_u32 s{sCLS}, 2"); A(f"s_cbranch_scc1 {LB_}")
        A(f"s_lshl_b32 s{sT}, s{sG}, 2")
        A(f"s_add_u32 s{sT}, s{sT}, s3")
        A(f"s_sub_u32 s{sT}, s{sT}, 4")
        A(f"s_mul_i32 s{sT}, s{sT}, {64*1152}")
        A(f"s_lshl_b32 s{sST1}, s{sJ}, 7")
        A(f"s_add_u32 s{sT}, s{sT}, s{sST1}")
        set_srd(R_T1, sT, sWO, 64 * 1152)
        A(f"s_cmp_eq_u32 s{sCLS}, 0")
        A(f"s_cselect_b32 s{R_T1+2}, s{R_T1+2}, 0")
        A(f"s_mov_b64 {sp(R_T2)}, {sp(R_T1)}")
        A(f"s_mov_b32 s{R_T2+2}, 0")
        A(f"s_mov_b32 s{R_T2+3}, 0x20000")
        A(f"s_mov_b32 s{sST1}, 4608"); A(f"s_mov_b32 s{sST2}, 0")
        A(f"s_mov_b32 s{sSA}, 1152"); A(f"s_mov_b32 s{sHA}, {32*1152}")
        A(f"s_mov_b32 s{sSB}, 0"); A(f"s_mov_b32 s{sHB}, 0")
        A(f"s_branch {LE}")
        A(f"{LM}:")
        A(f"s_mul_i32 s{sT}, s{sBLK}, {64*1152}")
        A(f"s_lshl_b32 s{sST1}, s3, 7")
        A(f"s_add_u32 s{sT}, s{sT}, s{sST1}")
        set_srd(R_T1, sT, sW2, 64 * 1152)
        A(f"s_mul_i32 s{sT}, s3, {72*9216}")
        A(f"s_lshl_b32 s{sST1}, s{sBLK}, 7")
        A(f"s_add_u32 s{sT}, s{sT}, s{sST1}")
        set_srd(R_T2, sT, sW1, 72 * 9216)
        A(f"s_mov_b32 s{sST1}, 4608"); A(f"s_mov_b32 s{sST2}, {8*9216}")
        A(f"s_mov_b32 s{sSA}, 1152"); A(f"s_mov_b32 s{sHA}, {32*1152}")
        A(f"s_mov_b32 s{sSB}, 9216"); A(f"s_mov_b32 s{sHB}, {4*9216}")
        A(f"s_branch {LE}")
        A(f"{LB_}:")
        A(f"s_sub_u32 s{sT}, s3, 4")
        A(f"s_mul_i32 s{sT}, s{sT}, {144*6912}")
        A(f"s_lshl_b32 s{sST1}, s{sBLK}, 7")
        A(f"s_add_u32 s{sT}, s{sT}, s{sST1}")
        A(f"s_add_u32 s{sT}, s{sT}, 2304")
        set_srd(R_T1, sT, sWM, 64 * 6912)
        A(f"s_add_u32 s{sT}, s{sT}, {64*6912}")
        set_srd(R_T2, sT, sWM, 80 * 6912)
        A(f"s_mov_b32 s{sST1}, {8*6912}"); A(f"s_mov_b32 s{sST2}, {8*6912}")
        A(f"s_mov_b32 s{sSA}, 6912"); A(f"s_mov_b32 s{sHA}, {4*6912}")
        A(f"s_mov_b32 s{sSB}, 6912"); A(f"s_mov_b32 s{sHB}, {4*6912}")
        A(f"{LE}:")
        A(f"v_and_b32 v3, 7, v{vI}")
        A(f"v_lshlrev_b32 v3, 4, v3")
        A(f"v_lshrrev_b32 v18, 3, v{vI}")
        A(f"v_mad_u32_u24 v{vT1}, v{vG}, s{sSA}, v3")
        A(f"v_mad_u32_u24 v{vT1}, v18, s{sHA}, v{vT1}")
        A(f"v_mad_u32_u24 v{vT2}, v{vG}, s{sSB}, v3")
        A(f"v_mad_u32_u24 v{vT2}, v18, s{sHB}, v{vT2}")
        A(f"s_mov_b32 s{sO1}, 0"); A(f"s_mov_b32 s{sO2}, 0")
    def tail_load(k):
        if k < 8:
            A(f"buffer_load_dwordx4 {r4(T1B+4*k)}, v{vT1}, {srd(R_T1)}, s{sO1} offen {nt}")
            A(f"s_add_u32 s{sO1}, s{sO1}, s{sST1}")
        else:
            A(f"buffer_load_dwordx4 {r4(T2B+4*(k-8))}, v{vT2}, {srd(R_T2)}, s{sO2} offen {nt}")
            A(f"s_add_u32 s{sO2}, s{sO2}, s{sST2}")

    A(f"; @launch grid=(256,1,1) block=(512,1,1) lds={LDS_BYTES}".replace("; @", ".ASMLAUNCH @"))
    A('.amdgcn_target "amdgcn-amd-amdhsa--gfx950"')
    A(".text")
    A(f".globl {KN}")
    A(".p2align 8")
    A(f".type {KN},@function")
    A(f"{KN}:")
    stamp(0)
    if p.stamps:
        for k in range(1, 12): A(f"s_mov_b32 s{72+2*k}, 0")
    A("s_cmp_ge_u32 s2, 256")
    A("s_cbranch_scc1 L_exit")
    A("s_load_dwordx16 s[16:31], s[0:1], 0")
    A("s_load_dwordx8 s[32:39], s[0:1], 64")
    A(f"s_load_dwordx2 {sp(sOUT)}, s[0:1], 96")
    A(f"s_load_dwordx2 {sp(sWS)}, s[0:1], 112")
    A("v_lshrrev_b32 v1, 6, v0")
    A("v_and_b32 v0, 63, v0")
    A("v_readfirstlane_b32 s3, v1")
    A(f"v_lshrrev_b32 v{vG}, 4, v{vL}")
    A(f"v_and_b32 v{vI}, 15, v{vL}")
    A(f"s_and_b32 s{sG}, s2, 7")
    A(f"s_lshl_b32 s{sG}, s{sG}, 1")
    A(f"s_bfe_u32 s{sT}, s2, 0x10003")
    A(f"s_add_u32 s{sG}, s{sG}, s{sT}")
    A(f"s_lshr_b32 s{sJ}, s2, 4")
    Lc = A.label("cls")
    A(f"s_mov_b32 s{sCLS}, 0"); A(f"s_mov_b32 s{sBLK}, s{sJ}")
    A(f"s_cmp_lt_u32 s{sJ}, 9"); A(f"s_cbranch_scc1 {Lc}")
    A(f"s_mov_b32 s{sCLS}, 1")
    A(f"s_sub_u32 s{sT}, s{sJ}, 9"); A(f"s_lshl_b32 s{sBLK}, s{sT}, 4"); A(f"s_add_u32 s{sBLK}, s{sBLK}, s{sG}")
    A(f"s_cmp_lt_u32 s{sJ}, 13"); A(f"s_cbranch_scc1 {Lc}")
    A(f"s_mov_b32 s{sCLS}, 2")
    A(f"s_sub_u32 s{sBLK}, s{sBLK}, 72")
    A(f"s_cmp_ge_u32 s{sBLK}, 36"); A(f"s_cselect_b32 s{sCLS}, 3, 2")
    A(f"s_cmp_lg_u32 s{sJ}, 13"); A(f"s_cbranch_scc1 {Lc}")
    A(f"s_lshr_b32 s{sBLK}, s{sG}, 1")
    A(f"s_mov_b32 s{sCLS}, 2")
    A(f"s_bitcmp1_b32 s{sG}, 0"); A(f"s_cbranch_scc1 {Lc}")
    A(f"s_mov_b32 s{sCLS}, 1"); A(f"s_add_u32 s{sBLK}, s{sBLK}, 64")
    A(f"{Lc}:")
    A("s_waitcnt lgkmcnt(0)")
    A(f"s_mov_b64 {sp(R_WS)}, {sp(sWS)}")
    A(f"s_mov_b32 s{R_WS+2}, {WSREC}")
    A(f"s_mov_b32 s{R_WS+3}, 0x20000")
    A("s_cmp_ge_u32 s3, 4")
    A("s_cbranch_scc1 L_main")

    WB = 40
    SB = 80
    if p.prio: A(f"s_setprio {p.prio}")
    A("s_cmp_eq_u32 s3, 3"); A("s_cbranch_scc1 L_c_bar")
    A("s_cmp_lg_u32 s3, 0"); A("s_cbranch_scc1 L_c_wqload")
    for e in range(4): A(f"v_mov_b32 v{20+e}, 0")
    A(f"v_lshlrev_b32 v3, 4, v{vI}")
    A(f"ds_write_b128 v3, v[20:23]")
    A(f"s_cmp_lg_u32 s{sCLS}, 0"); A("s_cbranch_scc1 L_c_bar")
    A(f"s_lshr_b32 s70, s{sG}, 1")
    A(f"s_and_b32 s71, s{sG}, 1"); A(f"s_mul_i32 s71, s71, 9"); A(f"s_add_u32 s71, s71, s{sJ}")
    A(f"v_min_u32 v3, 8, v{vI}")
    A(f"v_lshl_add_u32 v3, v3, 3, v{vG}")
    A(f"s_mul_i32 s{sT}, s70, 72")
    A(f"v_add_lshl_u32 v3, v3, s{sT}, 1")
    A(f"global_load_short_d16_hi v20, v3, {sp(sC)}")
    A(f"global_load_short_d16_hi v21, v3, {sp(sC)} offset:8")
    A(f"s_mul_i32 s{sT}, s70, {72*6912}")
    A(f"s_lshl_b32 s{sO1}, s71, 7")
    A(f"s_add_u32 s{sT}, s{sT}, s{sO1}")
    set_srd(R_A, sT, sWM, 72 * 6912)
    A(f"v_lshrrev_b32 v3, 3, v{vI}")
    A(f"v_lshl_add_u32 v3, v3, 2, v{vG}")
    A(f"v_mul_u32_u24 v3, 6912, v3")
    A(f"v_and_b32 v14, 7, v{vI}")
    A(f"v_lshl_add_u32 v14, v14, 4, v3")
    for n in range(9):
        A(f"s_mov_b32 s{sO1}, {n*8*6912}")
        A(f"buffer_load_dwordx4 {r4(WB+4*n)}, v14, {srd(R_A)}, s{sO1} offen {nt}")
    A("s_branch L_c_bar")
    A("L_c_wqload:")
    A(f"v_lshlrev_b32 v3, 3, v{vL}")
    A(f"global_load_dwordx2 v[20:21], v3, {sp(sX)}")
    A(f"global_load_dwordx2 v[22:23], v3, {sp(sX)} offset:512")
    A(f"v_lshlrev_b32 v3, 3, v{vI}")
    A(f"global_load_dwordx2 v[24:25], v3, {sp(sX)} offset:1024")
    A(f"v_min_u32 v15, 8, v{vI}")
    A(f"v_lshl_add_u32 v3, v15, 2, v{vG}")
    A(f"s_mul_i32 s{sT}, s{sJ}, 36")
    A(f"v_add_lshl_u32 v3, v3, s{sT}, 1")
    A(f"global_load_short_d16_hi v26, v3, {sp(sX)}")
    A(f"s_mul_i32 s{sT}, s{sJ}, {36*8192}")
    A(f"s_lshl_b32 s{sO1}, s{sG}, 9")
    A(f"s_add_u32 s{sT}, s{sT}, s{sO1}")
    A(f"s_sub_u32 s{sO1}, s3, 1"); A(f"s_lshl_b32 s{sO1}, s{sO1}, 8")
    A(f"s_add_u32 s{sT}, s{sT}, s{sO1}")
    set_srd(R_A, sT, sWQ, 36 * 8192)
    A(f"v_lshlrev_b32 v14, 13, v{vG}")
    A(f"v_lshl_add_u32 v14, v{vI}, 4, v14")
    for n in range(9):
        A(f"s_mov_b32 s{sO1}, {n*4*8192}")
        A(f"buffer_load_dwordx4 {r4(WB+4*n)}, v14, {srd(R_A)}, s{sO1} offen {nt}")
    A("L_c_bar:")
    A("s_waitcnt lgkmcnt(0)")
    A("s_barrier")
    A(f"s_load_dword s{sTAG}, {sp(sWS)}, {EPOCH}")
    stamp(1)
    consts()
    tagsetup()
    A("s_cmp_eq_u32 s3, 3"); A("s_cbranch_scc1 L_c_s2")
    A("s_cmp_lg_u32 s3, 0"); A("s_cbranch_scc1 L_c_wq")
    A(f"s_cmp_lg_u32 s{sCLS}, 0"); A("s_cbranch_scc1 L_c_s2")
    A("s_waitcnt vmcnt(9)")
    silu([20, 21], [22, 23])
    A("v_cvt_pk_bf16_f32 v20, v20, v21")
    for n in range(9): sparse8(20, n, SB + 4 * n, 22 + (n & 1))
    for n in range(9):
        A(f"s_waitcnt vmcnt({8-n})")
        mfma(24, SB + 4 * n, WB + 4 * n, n == 0)
    stamp(2)
    A(f"s_mul_i32 s70, s70, 4608"); A(f"s_lshl_b32 s71, s71, 8"); A(f"s_add_u32 s70, s70, s71"); A(f"s_add_u32 s70, s70, {MA}")
    A(f"v_lshlrev_b32 v3, 5, v{vI}")
    A(f"v_lshl_add_u32 v3, v{vG}, 4, v3")
    halfadd(24, 28)
    tag4(24)
    A("s_mov_b64 exec, 0x00ff00ff")
    A(f"buffer_store_dwordx4 v[24:27], v3, {srd(R_WS)}, s70 offen sc1")
    A("s_mov_b64 exec, -1")
    stamp(3)
    A("s_branch L_c_s2")
    A("L_c_wq:")
    A("s_waitcnt vmcnt(9)")
    for k in range(6):
        A(f"v_lshlrev_b32 v{28+2*k}, 16, v{20+k}")
        A(f"v_and_b32 v{29+2*k}, 0xffff0000, v{20+k}")
    A(f"v_cmp_gt_u32 vcc, 16, v{vL}")
    for k in range(8, 12): A(f"v_cndmask_b32 v{28+k}, 0, v{28+k}, vcc")
    A("v_pk_add_f32 v[20:21], v[28:29], v[30:31]")
    for k in range(2, 6): A(f"v_pk_add_f32 v[20:21], v[20:21], {r2(28+2*k)}")
    A("v_add_f32 v20, v20, v21")
    wavesum([20], [21])
    A(f"v_mul_f32 v20, {hex(0x3ae38e39)}, v20")
    for k in range(12): A(f"v_sub_f32 v{28+k}, v{28+k}, v20")
    for k in range(8, 12): A(f"v_cndmask_b32 v{28+k}, 0, v{28+k}, vcc")
    A("v_pk_mul_f32 v[22:23], v[28:29], v[28:29]")
    for k in range(1, 6): A(f"v_pk_fma_f32 v[22:23], {r2(28+2*k)}, {r2(28+2*k)}, v[22:23]")
    A("v_add_f32 v22, v22, v23")
    wavesum([22], [23])
    A(f"v_mul_f32 v22, {hex(0x3ae38e39)}, v22")
    bf16r(20, 20); bf16r(22, 22)
    A(f"v_add_f32 v22, {hex(0x3727c5ac)}, v22")
    bf16r(22, 22)
    A("v_sqrt_f32 v22, v22")
    bf16r(22, 22)
    A("v_sub_f32 v26, v26, v20")
    bf16r(26, 26)
    A("v_rcp_f32 v23, v22")
    A("v_mul_f32 v21, v26, v23")
    A("v_fma_f32 v24, -v21, v22, v26")
    A("v_fma_f32 v21, v24, v23, v21")
    bf16r(26, 21)
    A(f"v_mul_u32_u24 v3, 4608, v{vG}")
    A(f"v_lshl_add_u32 v3, v15, 4, v3")
    A(f"s_mul_i32 s70, s{sJ}, 144"); A(f"s_add_u32 s70, s70, {MA}"); A(f"s_add_u32 s71, s70, 18432")
    G1 = 120
    stamp(2)
    poll([f"buffer_load_dwordx4 {r4(G1+4*a)}, v3, {srd(R_WS)}, s{70+(a&1)} offen offset:{2304*(a>>1)} sc1" for a in range(4)],
         [G1 + 4 * a for a in range(4)], [], 20)
    stamp(3)
    addgran(G1, G1 + 4); addgran(G1 + 8, G1 + 12)
    redscat([G1, G1 + 8])
    bf16r(G1, G1); bf16r(G1 + 8, G1 + 8)
    A(f"v_add_f32 v{G1+8}, 1.0, v{G1+8}")
    bf16r(G1 + 8, G1 + 8)
    A(f"v_mul_f32 v26, v26, v{G1+8}")
    bf16r(26, 26)
    A(f"v_add_f32 v26, v26, v{G1}")
    A("v_cvt_pk_bf16_f32 v26, v26, v26")
    for n in range(9):
        for d in range(4): A(f"v_and_b32_dpp v{SB+4*n+d}, v26, v{vMASK+d} row_newbcast:{n} {DPP}")
        mfma(28, SB + 4 * n, WB + 4 * n, n == 0)
    A(f"s_lshl_b32 s70, s{sG}, 4"); A(f"s_add_u32 s70, s70, s{sJ}"); A(f"s_lshl_b32 s70, s70, 10")
    A(f"s_sub_u32 s71, s3, 1"); A(f"s_lshl_b32 s71, s71, 9"); A("s_add_u32 s70, s70, s71"); A(f"s_add_u32 s70, s70, {QP}")
    A(f"v_lshlrev_b32 v3, 5, v{vI}")
    A(f"v_lshl_add_u32 v3, v{vG}, 4, v3")
    tag4(28)
    A("s_mov_b32 exec_hi, 0")
    A(f"buffer_store_dwordx4 v[28:31], v3, {srd(R_WS)}, s70 offen sc1")
    A("s_mov_b64 exec, -1")
    stamp(4)
    A("L_c_s2:")
    A(f"v_lshlrev_b32 v3, 10, v{vG}")
    A(f"v_lshl_add_u32 v3, v{vI}, 4, v3")
    A(f"s_lshl_b32 s70, s{sG}, 14"); A("s_lshl_b32 s71, s3, 8"); A("s_add_u32 s70, s70, s71"); A(f"s_add_u32 s44, s70, {QP}")
    for a in range(1, 4): A(f"s_add_u32 s{44+a}, s44, {4096*a}")
    poll([f"buffer_load_dwordx4 {r4(G1+4*a)}, v3, {srd(R_WS)}, s{44+a} offen sc1" for a in range(4)],
         [G1 + 4 * a for a in range(4)], [], 20)
    stamp(5)
    addgran(G1, G1 + 4); addgran(G1 + 8, G1 + 12); addgran(G1, G1 + 8)
    redscat([G1])
    A(f"v_cvt_pk_bf16_f32 v20, v{G1}, v{G1}")
    A(f"v_lshl_add_u32 v3, v{vI}, 2, v{vG}")
    A(f"s_lshl_b32 s70, s3, 6")
    A(f"v_add_lshl_u32 v3, v3, s70, 1")
    A(f"ds_write_b16 v3, v20 offset:{L_Q}")
    ldssignal(CNT_Q, 21, 22)
    stamp(6)
    A(f"s_cmp_eq_u32 s{sCLS}, 1"); A("s_cbranch_scc1 L_c_m")
    A("s_cmp_lg_u32 s3, 3"); A("s_cbranch_scc1 L_c_end")
    A(f"s_mov_b32 s{sBLK}, s{sG}")
    A(f"s_cmp_eq_u32 s{sJ}, 8"); A("s_cbranch_scc1 L_red")
    A(f"s_add_u32 s{sBLK}, s{sG}, 16")
    A(f"s_cmp_lg_u32 s{sJ}, 7"); A("s_cbranch_scc1 L_c_end")
    A(f"s_cmp_lt_u32 s{sG}, 2"); A("s_cbranch_scc1 L_red")
    A("L_c_end:")
    endwave()

    A("L_red:")
    A(f"v_and_b32 v14, 7, v{vI}")
    A(f"v_lshl_add_u32 v15, v14, 2, v{vG}")
    A(f"s_lshl_b32 s70, s{sBLK}, 5")
    A(f"v_add_u32 v15, s70, v15")
    A(f"v_lshlrev_b32 v18, 1, v15")
    A(f"global_load_short_d16_hi v24, v18, {sp(sX)}")
    A(f"global_load_short_d16_hi v25, v18, {sp(sB2)}")
    A(f"v_lshlrev_b32 v15, 2, v15")
    A(f"v_lshrrev_b32 v3, 3, v{vL}")
    A(f"v_mul_u32_u24 v3, 2304, v3")
    A(f"v_lshl_add_u32 v3, v14, 4, v3")
    A(f"s_lshl_b32 s70, s{sBLK}, 7")
    A(f"v_add_u32 v3, s70, v3")
    A(f"s_mov_b32 s44, {AP}"); A(f"s_mov_b32 s45, {AP+18432}"); A(f"s_mov_b32 s46, {MB}"); A(f"s_mov_b32 s47, {MB+1728*4}")
    ldswait(CNT_W, 4, 20, 21)
    stamp(7)
    poll([f"buffer_load_dwordx4 {r4(40+4*a)}, v3, {srd(R_WS)}, s{44+a} offen sc1" for a in range(2)] +
         [f"buffer_load_dword v26, v15, {srd(R_WS)}, s46 offen sc1", f"buffer_load_dword v27, v15, {srd(R_WS)}, s47 offen sc1"],
         [40, 44], [26, 27], 20)
    stamp(8)
    addgran(40, 44)
    redscat([40])
    A(f"v_add_f32_dpp v40, v40, v40 row_ror:8 {DPP}")
    A("v_and_b32 v26, 0xffff0000, v26")
    A("v_and_b32 v27, 0xffff0000, v27")
    bf16r(40, 40)
    A("v_mul_f32 v40, v40, v26")
    bf16r(40, 40)
    A("v_add_f32 v24, v24, v40")
    bf16r(24, 24)
    for a in range(9): A(f"s_mov_b32 s{44+a}, {FP+18432*a}")
    poll([f"buffer_load_dwordx4 {r4(40+4*a)}, v3, {srd(R_WS)}, s{44+a} offen sc1" for a in range(9)],
         [40 + 4 * a for a in range(9)], [], 20)
    stamp(9)
    addgran(40, 44); addgran(48, 52); addgran(56, 60); addgran(64, 68)
    addgran(40, 48); addgran(56, 64); addgran(40, 72); addgran(40, 56)
    redscat([40])
    A(f"v_add_f32_dpp v40, v40, v40 row_ror:8 {DPP}")
    bf16r(40, 40)
    A("v_add_f32 v40, v40, v25")
    bf16r(40, 40)
    A("v_mul_f32 v40, v40, v27")
    bf16r(40, 40)
    A("v_add_f32 v40, v40, v24")
    A("v_cvt_pk_bf16_f32 v40, v40, v40")
    A("s_mov_b32 exec_lo, 0x00ff00ff"); A("s_mov_b32 exec_hi, 0x00ff00ff")
    A(f"global_store_short v18, v40, {sp(sOUT)}")
    A(f"s_cmp_lg_u32 s{sBLK}, 0"); A("s_cbranch_scc1 L_red_end")
    A("s_mov_b64 exec, 1")
    A("v_mov_b32 v3, 0")
    A(f"global_store_dword v3, v{vTAG}, {sp(sWS)} offset:{EPOCH} sc1")
    A("L_red_end:")
    stamp(10)
    endwave()

    A("L_c_m:")
    tail_setup()
    X2B = 104
    order = list(range(8, 17)) + list(range(8))
    for idx, k in enumerate(order):
        if idx >= p.DC: A(f"s_waitcnt vmcnt({p.DC-1})")
        tail_load(k)
    A("s_cmp_lg_u32 s3, 0"); A("s_cbranch_scc1 L_mphase")
    A(f"s_mov_b32 s{sO1}, 1024")
    for k in range(8):
        A(f"s_waitcnt vmcnt({p.DC-1})")
        A(f"buffer_load_dwordx4 {r4(X2B+4*k)}, v{vT1}, {srd(R_T1)}, s{sO1} offen {nt}")
        A(f"s_add_u32 s{sO1}, s{sO1}, s{sST1}")
    A("s_branch L_mphase")

    KB, VB, OA = 40, 104, 240
    vK, vV, QB = 14, 15, 20
    A("L_main:")
    A(f"s_lshl_b32 s{sT}, s{sG}, 23")
    A(f"s_lshl_b32 s70, s{sJ}, 16")
    A(f"s_add_u32 s{sT}, s{sT}, s70")
    A(f"s_add_u32 s{sT}, s{sT}, 7340032")
    set_srd(R_A, sT, sK, 65536)
    set_srd(R_B, sT, sV, 65536)
    A(f"s_sub_u32 s70, s3, 4"); A("s_lshl_b32 s70, s70, 10")
    A(f"v_lshlrev_b32 v{vK}, 6, v{vI}")
    A(f"v_lshl_add_u32 v{vK}, v{vG}, 4, v{vK}")
    A(f"v_add_u32 v{vK}, s70, v{vK}")
    A(f"v_lshl_add_u32 v{vV}, v{vL}, 4, s70")
    if p.rot:
        A(f"s_mul_i32 s71, s2, {p.rot}"); A("s_lshr_b32 s70, s2, 4"); A("s_add_u32 s71, s71, s70")
        A("s_lshl_b32 s71, s71, 12"); A("s_and_b32 s71, s71, 0xffff")
    else:
        A("s_mov_b32 s71, 0")
    A("s_barrier")
    A(f"s_load_dword s{sTAG}, {sp(sWS)}, {EPOCH}")
    stamp(1)
    for n in range(32):
        if n >= p.D: A(f"s_waitcnt vmcnt({p.D-1})")
        if n < 16: A(f"buffer_load_dwordx4 {r4(KB+4*n)}, v{vK}, {srd(R_A)}, s71 offen {nt}")
        else: A(f"buffer_load_dwordx4 {r4(VB+4*(n-16))}, v{vV}, {srd(R_B)}, s71 offen {nt}")
        A("s_add_u32 s71, s71, 4096"); A("s_and_b32 s71, s71, 0xffff")
        if n == p.D - 1:
            consts()
            A("s_mov_b32 s96, s71")
            tail_setup()
            tagsetup()
            A("s_mov_b32 s71, s96")
    stamp(2)
    for k in range(p.PRE): tail_load(k)
    A(f"v_and_b32 v3, 3, v{vI}")
    A(f"v_lshl_add_u32 v3, v3, 2, v{vG}")
    A(f"v_lshlrev_b32 v3, 4, v3")
    A(f"v_lshrrev_b32 v18, 3, v{vI}")
    A(f"v_lshl_add_u32 v3, v18, 8, v3")
    ldswait(CNT_Q, 4, 24, 25)
    stamp(3)
    A(f"ds_read_b128 {r4(QB)}, v3 offset:{L_Q}")
    A(f"s_waitcnt vmcnt({16+p.PRE}) lgkmcnt(0)")
    for n in range(16): A(f"v_mfma_f32_16x16x32_bf16 {r4(KB+4*n)}, {r4(KB+4*n)}, {r4(QB)}, 0")
    for n0 in range(0, 16, 4):
        for n in range(n0, n0 + 4): A(f"v_mov_b32_dpp v{KB+4*n}, v{KB+4*n} quad_perm:[0,0,0,0] {DPP}")
        for t in range(1, 4):
            for n in range(n0, n0 + 4): A(f"v_add_f32_dpp v{KB+4*n}, v{KB+4*n+t}, v{KB+4*n} quad_perm:[{t},{t},{t},{t}] {DPP}")
    A(f"s_mov_b32 s70, 0x3db504f3")
    for m in range(8):
        b = KB + 8 * m
        A(f"v_cvt_pk_bf16_f32 v{b+2}, v{b}, v{b+4}")
    for m in range(8):
        b = KB + 8 * m
        A(f"v_lshlrev_b32 v{b}, 16, v{b+2}")
        A(f"v_and_b32 v{b+1}, 0xffff0000, v{b+2}")
    for m in range(8):
        b = KB + 8 * m
        A(f"v_pk_mul_f32 {r2(b)}, {r2(b)}, s[70:71] op_sel_hi:[1,0]")
    for m in range(8):
        b = KB + 8 * m
        A(f"v_cvt_pk_bf16_f32 v{b+2}, v{b}, v{b+1}")
    for m in range(8):
        b = KB + 8 * m
        A(f"v_lshlrev_b32 v{b}, 16, v{b+2}")
        A(f"v_and_b32 v{b+1}, 0xffff0000, v{b+2}")
    A(f"v_max_f32 v24, v{KB}, v{KB+1}")
    for m in range(1, 8): A(f"v_max3_f32 v24, v{KB+8*m}, v{KB+8*m+1}, v24")
    rowsall("v_max_f32", 24, 25)
    A(f"s_sub_u32 s70, s3, 4"); A("s_lshl_b32 s70, s70, 2")
    A(f"v_lshl_add_u32 v19, v18, 4, s70")
    A(f"ds_write_b32 v19, v24 offset:{L_MAX}")
    ldssignal(CNT_MAX, 26, 27)
    A(f"v_lshlrev_b32 v3, 4, v18")
    ldswait(CNT_MAX, 4, 26, 27)
    A(f"ds_read_b128 v[24:27], v3 offset:{L_MAX}")
    A("s_waitcnt lgkmcnt(0)")
    A("v_max3_f32 v24, v24, v25, v26")
    A("v_max_f32 v24, v24, v27")
    A(f"s_mov_b32 s70, {hex(LOG2E)}")
    A("v_mul_f32 v26, s70, v24")
    for m in range(8):
        b = KB + 8 * m
        A(f"v_pk_fma_f32 {r2(b)}, {r2(b)}, s[70:71], v[26:27] op_sel_hi:[1,0,0] neg_lo:[0,0,1] neg_hi:[0,0,1]")
    for m in range(8):
        b = KB + 8 * m
        A(f"v_exp_f32 v{b}, v{b}")
        A(f"v_exp_f32 v{b+1}, v{b+1}")
    A(f"v_pk_add_f32 v[28:29], {r2(KB)}, {r2(KB+8)}")
    for m in range(2, 8): A(f"v_pk_add_f32 v[28:29], v[28:29], {r2(KB+8*m)}")
    A("v_add_f32 v28, v28, v29")
    rowsall("v_add_f32", 28, 29)
    A(f"ds_write_b32 v19, v28 offset:{L_LB}")
    ldssignal(CNT_L, 26, 27)
    for m in range(8):
        b = KB + 8 * m
        A(f"v_cvt_pk_bf16_f32 v30, v{b}, v{b}")
        A(f"v_cvt_pk_bf16_f32 v31, v{b+1}, v{b+1}")
        for d in range(4): A(f"v_and_b32 v{b+d}, v30, v{vMASK+d}")
        for d in range(4): A(f"v_and_b32 v{b+4+d}, v31, v{vMASK+d}")
    stamp(4)
    ldswait(CNT_L, 4, 26, 27)
    A("v_mov_b32 v3, 0")
    A(f"ds_read_b128 v[24:27], v3 offset:{L_MAX}")
    A(f"ds_read_b128 v[28:31], v3 offset:{L_MAX+16}")
    A(f"ds_read_b128 v[20:23], v3 offset:{L_LB}")
    A(f"ds_read_b128 v[36:39], v3 offset:{L_LB+16}")
    A("s_waitcnt lgkmcnt(0)")
    A("v_max3_f32 v32, v24, v25, v26"); A("v_max_f32 v32, v32, v27")
    A("v_max3_f32 v34, v28, v29, v30"); A("v_max_f32 v34, v34, v31")
    A("v_pk_add_f32 v[20:21], v[20:21], v[22:23]"); A("v_add_f32 v33, v20, v21")
    A("v_pk_add_f32 v[36:37], v[36:37], v[38:39]"); A("v_add_f32 v35, v36, v37")
    tag4(32)
    A(f"s_lshl_b32 s70, s{sG}, 4"); A(f"s_add_u32 s70, s70, s{sJ}"); A("s_mul_i32 s70, s70, 1152"); A(f"s_add_u32 s97, s70, {OP}")
    A(f"v_lshrrev_b32 v18, 1, v{vG}")
    A(f"v_and_b32 v19, 1, v{vG}")
    A(f"v_lshlrev_b32 v18, 9, v18")
    A(f"v_lshl_add_u32 v18, v19, 4, v18")
    A(f"v_lshl_add_u32 v18, v{vI}, 5, v18")
    A(f"s_sub_u32 s70, s3, 4"); A("s_lshl_b32 s70, s70, 10")
    A(f"v_lshlrev_b32 v20, 4, v{vL}")
    A(f"v_add_u32 v19, s70, v20")
    issued = p.PRE
    for n in range(16):
        A(f"s_waitcnt vmcnt({15-n+issued})")
        mfma(OA, KB + 4 * n, VB + 4 * n, n == 0)
        want = min(18, max(p.PRE, p.D2 - 15 + n))
        while issued < want:
            tail_load(issued); issued += 1
    stamp(5)
    A(f"ds_write_b128 v19, {r4(OA)} offset:{L_OB}")
    ldssignal(CNT_O, 26, 27, rtn=True)
    A(f"s_cmp_lg_u32 s{sT}, 3"); A("s_cbranch_scc1 L_m_pub_done")
    for w in range(4): A(f"ds_read_b128 {r4(KB+4*w)}, v20 offset:{L_OB+1024*w}")
    A("s_waitcnt lgkmcnt(0)")
    addgran(KB, KB + 4); addgran(KB + 8, KB + 12); addgran(KB, KB + 8)
    tag4(KB)
    A(f"buffer_store_dwordx4 {r4(KB)}, v18, {srd(R_WS)}, s97 offen sc1")
    A("s_mov_b64 exec, 1")
    A(f"buffer_store_dwordx4 v[32:35], v20, {srd(R_WS)}, s97 offen offset:1024 sc1")
    A("s_mov_b64 exec, -1")
    A("L_m_pub_done:")
    stamp(6)
    A(f"s_cmp_eq_u32 s{sCLS}, 0"); A("s_cbranch_scc1 L_wphase")
    A(f"s_cmp_eq_u32 s{sCLS}, 3"); A("s_cbranch_scc1 L_m_end")
    while issued < 18:
        A(f"s_waitcnt vmcnt({p.D2-1})")
        tail_load(issued); issued += 1
    A(f"s_cmp_eq_u32 s{sCLS}, 1"); A("s_cbranch_scc1 L_mphase")

    A(f"s_sub_u32 s70, s3, 4"); A("s_mul_i32 s70, s70, 144")
    A(f"v_lshl_add_u32 v3, v{vI}, 3, v{vG}")
    A(f"v_add_lshl_u32 v3, v3, s70, 1")
    A(f"global_load_short_d16_hi v24, v3, {sp(sC)}")
    A(f"global_load_short_d16_hi v25, v3, {sp(sC)} offset:8")
    A(f"v_and_b32 v3, 1, v{vI}")
    A(f"v_lshl_add_u32 v3, v3, 3, v{vG}")
    A(f"v_add_lshl_u32 v3, v3, s70, 1")
    A(f"global_load_short_d16_hi v26, v3, {sp(sC)} offset:256")
    A(f"global_load_short_d16_hi v27, v3, {sp(sC)} offset:264")
    A("s_waitcnt vmcnt(0)")
    silu([24, 25, 26, 27], [28, 29, 30, 31])
    A("v_cvt_pk_bf16_f32 v24, v24, v25")
    A("v_cvt_pk_bf16_f32 v26, v26, v27")
    for n in range(18):
        sparse8(24 if n < 16 else 26, n & 15, KB + 4 * (n & 7), 28 + (n & 1))
        mfma(OA, KB + 4 * (n & 7), T1B + 4 * n, n == 0)
    A(f"s_lshl_b32 s97, s{sBLK}, 8"); A(f"s_add_u32 s97, s97, {MB}")
    A("s_nop 4")
    A("s_branch L_comb")

    A("L_wphase:")
    A(f"v_mul_u32_u24 v3, 1152, v{vG}")
    A(f"v_and_b32 v21, 3, v{vI}")
    A(f"v_mul_u32_u24 v21, 4608, v21")
    A(f"v_add_u32 v21, v21, v3")
    A(f"v_lshl_add_u32 v3, v{vI}, 4, v3")
    A(f"s_mul_i32 s70, s{sG}, {16*1152}"); A(f"s_add_u32 s48, s70, {OP}")
    A(f"s_sub_u32 s71, s3, 4"); A("s_lshl_b32 s71, s71, 8"); A("s_add_u32 s44, s48, s71")
    for a in range(1, 4): A(f"s_add_u32 s{44+a}, s44, {4608*a}")
    A("s_cmp_ge_u32 s3, 6"); A("s_cselect_b64 s[70:71], -1, 0")
    poll([f"buffer_load_dwordx4 {r4(KB+4*a)}, v3, {srd(R_WS)}, s{44+a} offen sc1" for a in range(4)] +
         [f"buffer_load_dwordx4 {r4(KB+16)}, v21, {srd(R_WS)}, s48 offen offset:1024 sc1"],
         [KB + 4 * a for a in range(5)], [], 22)
    stamp(7)
    S = KB + 16
    A(f"v_cndmask_b32 v24, v{S}, v{S+2}, s[70:71]")
    A(f"v_cndmask_b32 v25, v{S+1}, v{S+3}, s[70:71]")
    A("v_and_b32 v24, 0xffff0000, v24")
    A(f"v_max_f32_dpp v26, v24, v24 quad_perm:[1,0,3,2] {DPP}")
    A(f"v_max_f32_dpp v26, v26, v26 quad_perm:[2,3,0,1] {DPP}")
    rowsall("v_max_f32", 26, 27)
    A("v_sub_f32 v24, v24, v26")
    A(f"v_mul_f32 v24, {hex(LOG2E)}, v24")
    A("v_exp_f32 v24, v24")
    A("v_mul_f32 v25, v24, v25")
    for e in range(4): A(f"v_mul_f32_dpp v{28+e}, v24, v{KB+e} quad_perm:[0,0,0,0] {DPP}")
    A(f"v_add_f32_dpp v25, v25, v25 quad_perm:[1,0,3,2] {DPP}")
    for e in range(4): A(f"v_fmac_f32_dpp v{28+e}, v24, v{KB+4+e} quad_perm:[1,1,1,1] {DPP}")
    A(f"v_add_f32_dpp v25, v25, v25 quad_perm:[2,3,0,1] {DPP}")
    for a in (2, 3):
        for e in range(4): A(f"v_fmac_f32_dpp v{28+e}, v24, v{KB+4*a+e} quad_perm:[{a},{a},{a},{a}] {DPP}")
    rowsall("v_add_f32", 25, 27)
    redscat([28])
    A("v_rcp_f32 v25, v25")
    A("v_mul_f32 v28, v28, v25")
    A(f"v_mov_b32_dpp v29, v28 row_ror:8 {DPP}")
    A("v_cvt_pk_bf16_f32 v28, v28, v29")
    for n in range(8):
        sparse8(28, n, KB + 4 * n, 30 + (n & 1))
        mfma(OA, KB + 4 * n, T1B + 4 * n, n == 0)
    A(f"s_mul_i32 s97, s{sG}, 2304"); A(f"s_lshl_b32 s70, s{sJ}, 8"); A("s_add_u32 s97, s97, s70"); A(f"s_add_u32 s97, s97, {AP}")
    A("L_comb:")
    A(f"v_lshlrev_b32 v3, 5, v{vI}")
    A(f"v_lshl_add_u32 v3, v{vG}, 4, v3")
    A(f"ds_write_b128 v19, {r4(OA)} offset:{L_WB}")
    ldssignal(CNT_W, 26, 27, rtn=True)
    A(f"s_cmp_lg_u32 s{sT}, 3"); A("s_cbranch_scc1 L_m_end")
    for w in range(4): A(f"ds_read_b128 {r4(KB+4*w)}, v20 offset:{L_WB+1024*w}")
    A("s_waitcnt lgkmcnt(0)")
    addgran(KB, KB + 4); addgran(KB + 8, KB + 12); addgran(KB, KB + 8)
    halfadd(KB, KB + 4)
    A(f"s_cmp_eq_u32 s{sCLS}, 0"); A("s_cbranch_scc1 L_comb_st")
    for e in range(4): bf16r(KB + e, KB + e)
    A("L_comb_st:")
    tag4(KB)
    A("s_mov_b64 exec, 0x00ff00ff")
    A(f"buffer_store_dwordx4 {r4(KB)}, v3, {srd(R_WS)}, s97 offen sc1")
    A("L_m_end:")
    stamp(8)
    endwave()

    A("L_mphase:")
    stamp(7)
    A(f"v_lshl_add_u32 v14, v{vI}, 2, v{vG}")
    A(f"s_lshl_b32 s70, s3, 6")
    A(f"v_add_u32 v15, s70, v14")
    A(f"v_lshlrev_b32 v3, 1, v15")
    A(f"global_load_short_d16_hi v24, v3, {sp(sX)}")
    A(f"v_lshlrev_b32 v3, 1, v14")
    A(f"global_load_short_d16_hi v25, v3, {sp(sX)} offset:1024")
    A(f"s_lshl_b32 s70, s{sBLK}, 7")
    A(f"v_add_u32 v3, s70, v3")
    A(f"global_load_short_d16_hi v23, v3, {sp(sB1)}")
    A(f"v_lshlrev_b32 v15, 2, v15")
    A(f"v_mul_u32_u24 v3, 2304, v{vG}")
    A(f"v_lshl_add_u32 v3, v{vI}, 4, v3")
    A(f"s_lshl_b32 s70, s3, 8"); A(f"s_add_u32 s44, s70, {AP}")
    for a in range(1, 4): A(f"s_add_u32 s{44+a}, s44, {9216*a}")
    A(f"s_mov_b32 s48, {MB}"); A(f"s_mov_b32 s49, {MB+4608}")
    A(f"v_lshlrev_b32 v18, 5, v{vL}")
    A(f"v_lshlrev_b32 v19, 2, v{vL}")
    A(f"v_min_u32 v20, 8, v{vI}")
    A(f"v_lshl_add_u32 v20, v20, 3, v{vG}")
    A(f"s_mul_i32 s70, s3, 72")
    A(f"v_add_lshl_u32 v20, v20, s70, 2")
    A(f"v_lshrrev_b32 v21, 1, v{vG}")
    A(f"s_lshl_b32 s70, s3, 1")
    A(f"v_add_lshl_u32 v21, v21, s70, 8")
    A(f"v_and_b32 v22, 7, v{vI}")
    A(f"v_lshl_add_u32 v21, v22, 5, v21")
    A(f"v_and_b32 v22, 1, v{vG}")
    A(f"v_lshl_add_u32 v21, v22, 4, v21")
    A(f"v_lshlrev_b32 v22, 2, v14")
    if p.XW < 63: A(f"s_waitcnt vmcnt({p.XW})")
    def blockstep(G, ga, xr):
        addgran(G, G + 4); addgran(G + 8, G + 12); addgran(G, G + 8)
        redscat([G])
        for e in range(3): A(f"v_and_b32 v{ga+e}, 0xffff0000, v{ga+e}")
        bf16r(G, G)
        A(f"v_add_f32 v{ga+2}, 1.0, v{ga+2}")
        A(f"v_mul_f32 v{G}, v{G}, v{ga}")
        bf16r(ga + 2, ga + 2)
        bf16r(G, G)
        A(f"v_add_f32 v{G}, v{G}, v{xr}")
        bf16r(G, G)
    def mloads(G, ga, off):
        return ([f"buffer_load_dwordx4 {r4(G+4*a)}, v3, {srd(R_WS)}, s{44+a} offen offset:{off} sc1" for a in range(4)] +
                [f"buffer_load_dword v{ga}, v15, {srd(R_WS)}, s48 offen offset:{off} sc1",
                 f"buffer_load_dword v{ga+1}, v15, {srd(R_WS)}, s48 offen offset:{off+2304 if off+2304 < 4096 else 0} sc1" if off == 0 else
                 f"buffer_load_dword v{ga+1}, v15, {srd(R_WS)}, s50 offen sc1",
                 f"buffer_load_dword v{ga+2}, v15, {srd(R_WS)}, s49 offen offset:{off} sc1"])
    A("s_cmp_eq_u32 s3, 0"); A("s_cbranch_scc1 L_mp0")
    poll(mloads(40, 26, 0), [40, 44, 48, 52], [26, 27, 28], 72)
    stamp(8)
    blockstep(40, 26, 24)
    A("s_branch L_mp1")
    A("L_mp0:")
    A(f"s_mov_b32 s50, {MB+2304+2048}")
    poll(mloads(40, 26, 0) + mloads(56, 29, 2048), [40, 44, 48, 52, 56, 60, 64, 68], [26, 27, 28, 29, 30, 31], 72)
    stamp(8)
    blockstep(56, 29, 25)
    A(f"ds_write_b32 v15, v56 offset:{L_X2+2048}")
    A(f"ds_write_b32 v15, v31 offset:{L_AA+2048}")
    A(f"ds_write_b32 v15, v30 offset:{L_SS+2048}")
    blockstep(40, 26, 24)
    A("L_mp1:")
    A(f"ds_write_b32 v15, v40 offset:{L_X2}")
    A(f"ds_write_b32 v15, v28 offset:{L_AA}")
    A(f"ds_write_b32 v15, v27 offset:{L_SS}")
    A("s_waitcnt lgkmcnt(0)")
    A("s_barrier")
    XR, AR, SR_ = 40, 52, 64
    for base, off in ((XR, L_X2), (AR, L_AA), (SR_, L_SS)):
        A(f"ds_read_b128 {r4(base)}, v18 offset:{off}")
        A(f"ds_read_b128 {r4(base+4)}, v18 offset:{off+16}")
        A(f"ds_read_b32 v{base+8}, v19 offset:{off+2048}")
    A(f"v_add_u32 v20, {L_X2}, v20")
    A(f"ds_read2_b32 v[76:77], v20 offset0:0 offset1:4")
    A(f"v_add_u32 v20, 2304, v20")
    A(f"ds_read2_b32 v[78:79], v20 offset0:0 offset1:4")
    A(f"v_add_u32 v20, 2304, v20")
    A(f"ds_read2_b32 v[80:81], v20 offset0:0 offset1:4")
    A("s_waitcnt lgkmcnt(9)")
    def lnstats(X, own):
        A(f"v_readfirstlane_b32 s70, v{X}")
        for k in range(4): A(f"v_pk_add_f32 {r2(X+2*k)}, {r2(X+2*k)}, s[70:71] op_sel_hi:[1,0] neg_lo:[0,1] neg_hi:[0,1]")
        A(f"v_subrev_f32 v{X+8}, s70, v{X+8}")
        A(f"v_pk_add_f32 v[82:83], {r2(X)}, {r2(X+2)}")
        A(f"v_pk_mul_f32 v[84:85], {r2(X)}, {r2(X)}")
        A(f"v_pk_add_f32 v[82:83], v[82:83], {r2(X+4)}")
        A(f"v_pk_fma_f32 v[84:85], {r2(X+2)}, {r2(X+2)}, v[84:85]")
        A(f"v_pk_add_f32 v[82:83], v[82:83], {r2(X+6)}")
        A(f"v_pk_fma_f32 v[84:85], {r2(X+4)}, {r2(X+4)}, v[84:85]")
        A(f"v_add_f32 v82, v82, v{X+8}")
        A(f"v_pk_fma_f32 v[84:85], {r2(X+6)}, {r2(X+6)}, v[84:85]")
        A(f"v_add_f32 v82, v82, v83")
        A(f"v_fmac_f32 v84, v{X+8}, v{X+8}")
        A(f"v_add_f32 v84, v84, v85")
        wavesum([82, 84], [83, 85])
        A(f"v_mul_f32 v82, {hex(0x3ae38e39)}, v82")
        A(f"v_mul_f32 v84, {hex(0x3ae38e39)}, v84")
        A(f"v_fma_f32 v84, -v82, v82, v84")
        A(f"v_max_f32 v84, 0, v84")
        A(f"v_add_f32 v84, {hex(0x3727c5ac)}, v84")
        A(f"v_rsq_f32 v84, v84")
        A(f"v_add_f32 v83, s70, v82")
    lnstats(XR, 76)
    A("s_waitcnt lgkmcnt(0)")
    for k in range(4): A(f"v_pk_add_f32 {r2(XR+2*k)}, {r2(XR+2*k)}, v[82:83] op_sel_hi:[1,0] neg_lo:[0,1] neg_hi:[0,1]")
    A(f"v_sub_f32 v{XR+8}, v{XR+8}, v82")
    A(f"v_pk_add_f32 v[76:77], v[76:77], v[82:83] op_sel:[0,1] op_sel_hi:[1,1] neg_lo:[0,1] neg_hi:[0,1]")
    for k in range(4): A(f"v_pk_mul_f32 {r2(AR+2*k)}, {r2(AR+2*k)}, v[84:85] op_sel_hi:[1,0]")
    A(f"v_mul_f32 v{AR+8}, v{AR+8}, v84")
    A(f"v_pk_mul_f32 v[78:79], v[78:79], v[84:85] op_sel_hi:[1,0]")
    for k in range(4): A(f"v_pk_fma_f32 {r2(XR+2*k)}, {r2(XR+2*k)}, {r2(AR+2*k)}, {r2(SR_+2*k)}")
    A(f"v_fma_f32 v{XR+8}, v{XR+8}, v{AR+8}, v{SR_+8}")
    A(f"v_pk_fma_f32 v[76:77], v[76:77], v[78:79], v[80:81]")
    lnstats(XR, 76)
    A(f"v_pk_add_f32 v[76:77], v[76:77], v[82:83] op_sel:[0,1] op_sel_hi:[1,1] neg_lo:[0,1] neg_hi:[0,1]")
    A(f"v_pk_mul_f32 v[76:77], v[76:77], v[84:85] op_sel_hi:[1,0]")
    A("v_cvt_pk_bf16_f32 v76, v76, v77")
    for n in range(9):
        sparse8(76, n, 40 + 4 * n, 78 + (n & 1))
        mfma(OA, 40 + 4 * n, T2B + 4 * n, n == 0)
    A("s_mov_b32 exec_lo, 0x00ff00ff"); A("s_mov_b32 exec_hi, 0xff00ff00")
    A(f"ds_write_b128 v21, {r4(OA)} offset:{L_H1}")
    A("s_mov_b64 exec, -1")
    A(f"v_add_u32 v22, {L_H1}, v22")
    A("s_waitcnt lgkmcnt(0)")
    A("s_barrier")
    stamp(9)
    for k in range(8): A(f"ds_read2st64_b32 {r2(40+2*k)}, v22 offset0:{2*k} offset1:{2*k+1}")
    A("s_waitcnt lgkmcnt(4)")
    A("v_pk_add_f32 v[40:41], v[40:41], v[42:43]"); A("v_pk_add_f32 v[44:45], v[44:45], v[46:47]")
    A("s_waitcnt lgkmcnt(0)")
    A("v_pk_add_f32 v[48:49], v[48:49], v[50:51]"); A("v_pk_add_f32 v[52:53], v[52:53], v[54:55]")
    A("v_pk_add_f32 v[40:41], v[40:41], v[44:45]"); A("v_pk_add_f32 v[48:49], v[48:49], v[52:53]")
    A("v_pk_add_f32 v[40:41], v[40:41], v[48:49]")
    A("v_add_f32 v40, v40, v41")
    bf16r(40, 40)
    A("v_add_f32 v40, v40, v23")
    bf16r(40, 40)
    import struct, math
    f2h = lambda f: hex(struct.unpack("<I", struct.pack("<f", f))[0])
    c0 = -2.0 * math.sqrt(2.0 / math.pi) * math.log2(math.e)
    A("v_mul_f32 v41, v40, v40")
    A(f"v_mov_b32 v42, {f2h(c0)}")
    A(f"v_fmac_f32 v42, {f2h(c0*0.044715)}, v41")
    A("v_mul_f32 v41, v42, v40")
    A("v_exp_f32 v41, v41")
    A("v_add_f32 v41, 1.0, v41")
    A("v_rcp_f32 v41, v41")
    A("v_mul_f32 v40, v40, v41")
    A(f"v_mov_b32_dpp v41, v40 row_ror:8 {DPP}")
    A("v_cvt_pk_bf16_f32 v76, v40, v41")
    A(f"s_mul_i32 s97, s{sBLK}, 2304"); A("s_lshl_b32 s70, s3, 8"); A("s_add_u32 s97, s97, s70"); A(f"s_add_u32 s97, s97, {FP}")
    A(f"v_lshlrev_b32 v3, 5, v{vI}")
    A(f"v_lshl_add_u32 v3, v{vG}, 4, v3")
    A("s_cmp_eq_u32 s3, 0"); A("s_cbranch_scc1 L_w2_0")
    for n in range(8):
        sparse8(76, n, 40 + 4 * n, 78 + (n & 1))
        mfma(OA, 40 + 4 * n, T1B + 4 * n, n == 0)
    A("s_branch L_w2_1")
    A("L_w2_0:")
    for n in range(8):
        sparse8(76, n, 40 + 4 * n, 78 + (n & 1))
        mfma(OA, 40 + 4 * n, T1B + 4 * n, n == 0)
        mfma(OA + 4, 40 + 4 * n, X2B + 4 * n, n == 0)
    halfadd(OA + 4, 84)
    tag4(OA + 4)
    A("s_mov_b64 exec, 0x00ff00ff")
    A(f"buffer_store_dwordx4 {r4(OA+4)}, v3, {srd(R_WS)}, s97 offen offset:2048 sc1")
    A("s_mov_b64 exec, -1")
    A("L_w2_1:")
    A("s_nop 7")
    halfadd(OA, 80)
    tag4(OA)
    A("s_mov_b64 exec, 0x00ff00ff")
    A(f"buffer_store_dwordx4 {r4(OA)}, v3, {srd(R_WS)}, s97 offen sc1")
    stamp(10)
    endwave()
    A("L_exit:")
    A("s_endpgm")
    A('.section .rodata,"a"')
    A(".p2align 6")
    A(f".amdhsa_kernel {KN}")
    A(".amdhsa_next_free_vgpr 248")
    A(".amdhsa_next_free_sgpr 102")
    A(".amdhsa_accum_offset 248")
    A(".amdhsa_group_segment_fixed_size 0")
    A(".amdhsa_kernarg_size 120")
    A(".amdhsa_user_sgpr_count 2")
    A(".amdhsa_user_sgpr_kernarg_segment_ptr 1")
    A(".amdhsa_system_sgpr_workgroup_id_x 1")
    A(".amdhsa_float_denorm_mode_32 3")
    A(".end_amdhsa_kernel")
    return A.text().replace(".ASMLAUNCH @", "; @")

if __name__ == "__main__":
    kw = eval("dict(" + (sys.argv[2] if len(sys.argv) > 2 else "") + ")")
    open(sys.argv[1], "w").write(gen(**kw))
```

```python
import sys
sys.path.insert(0, "work")
from asmlib import Asm

KN = "adaLN_cond__sliding_block_cached__mixer_channel_mlp__decode_kernel"

EPOCH = 0
MA = 0x1000
MB = 0xA000
AP = 0xD000
FP = 0x16000
QP = 0x40000
OP = 0x80000
WSREC = 0x100000
DBG = 0x100000

CNT_Q, CNT_MAX, CNT_L, CNT_O, CNT_W = 0, 4, 8, 12, 16
L_MAX = 64
L_LB = 96
L_Q = 128
L_OB = 1024
L_WB = 5120
L_X2 = 9216
L_AA = 11520
L_SS = 13824
L_H1 = 16128
LDS_BYTES = 20480

DPP = "row_mask:0xf bank_mask:0xf"
LOG2E = 0x3fb8aa3b

class P:
    D = 8
    PRE = 2
    D2 = 10
    DC = 5
    XW = 63
    stamps = 0
    preread = 0
    limit = 20000
    nt = "nt"
    prio = 1
    rot = 1
    dbg = 0

def gen(**kw):
    p = P()
    for k, v in kw.items():
        assert hasattr(p, k), k
        setattr(p, k, v)
    A = Asm()
    nt = p.nt
    sX, sK, sV, sWQ, sWO, sW1, sB1, sW2, sB2, sC, sWM, sOUT, sWS = 16, 18, 20, 22, 24, 28, 30, 32, 34, 36, 38, 40, 42
    sG, sJ, sCLS, sBLK = 4, 5, 6, 7
    sTAG = 8
    sSEL = 12
    R_A, R_B, R_T1, R_T2, R_WS = 44, 48, 52, 56, 60
    sST1, sST2 = 64, 65
    sO1, sO2 = 66, 67
    sCNT = 68
    sT = 69
    vL, vG, vI = 0, 1, 2
    vMASK, vSEL, vTAG, vTG = 4, 8, 12, 13
    def r4(b): return f"v[{b}:{b+3}]"
    def r2(b): return f"v[{b}:{b+1}]"
    def srd(b): return f"s[{b}:{b+3}]"
    def sp(b): return f"s[{b}:{b+1}]"
    def stamp(k):
        if p.stamps: A(f"s_memrealtime s[{72+2*k}:{73+2*k}]")
    def endwave():
        if p.stamps:
            A("s_mov_b64 exec, -1")
            A("s_waitcnt lgkmcnt(0)")
            A(f"s_lshl_b32 s{sT}, s2, 3")
            A(f"s_add_u32 s{sT}, s{sT}, s3")
            A(f"s_lshl_b32 s{sT}, s{sT}, 6")
            A(f"s_add_u32 s{sT}, s{sT}, {DBG}")
            A(f"v_mov_b32 v14, s{sT}")
            A("s_mov_b64 exec, 1")
            for k in range(0, 12, 4):
                for e in range(4): A(f"v_mov_b32 v{16+e}, s{72+2*(k+e)}")
                A(f"global_store_dwordx4 v14, v[16:19], {sp(sWS)} offset:{4*k}")
            A("s_waitcnt vmcnt(0)")
        A("s_endpgm")
    def set_srd(r, lo_expr_s, ptr, rec):
        A(f"s_add_u32 s{r}, s{ptr}, s{lo_expr_s}")
        A(f"s_addc_u32 s{r+1}, s{ptr+1}, 0")
        A(f"s_mov_b32 s{r+2}, {rec}")
        A(f"s_mov_b32 s{r+3}, 0x20000")
    def bf16r(d, s, t=None):
        t = d if t is None else t
        A(f"v_cvt_pk_bf16_f32 v{t}, v{s}, v{s}")
        A(f"v_lshlrev_b32 v{d}, 16, v{t}")
    def rowsall(op, v, t):
        A(f"v_mov_b32 v{t}, v{v}")
        A(f"v_permlane32_swap_b32 v{v}, v{t}")
        A(f"{op} v{v}, v{v}, v{t}")
        A(f"v_mov_b32 v{t}, v{v}")
        A(f"v_permlane16_swap_b32 v{v}, v{t}")
        A(f"{op} v{v}, v{v}, v{t}")
    def wavesum(vs, ts):
        for ctl in ("quad_perm:[1,0,3,2]", "quad_perm:[2,3,0,1]", "row_half_mirror", "row_mirror"):
            for v in vs: A(f"v_add_f32_dpp v{v}, v{v}, v{v} {ctl} {DPP}")
        for sw in ("v_permlane32_swap_b32", "v_permlane16_swap_b32"):
            for v, t in zip(vs, ts): A(f"v_mov_b32 v{t}, v{v}")
            for v, t in zip(vs, ts): A(f"{sw} v{v}, v{t}")
            for v, t in zip(vs, ts): A(f"v_add_f32 v{v}, v{v}, v{t}")
    def redscat(bs):
        for b in bs:
            A(f"v_permlane32_swap_b32 v{b}, v{b+2}")
            A(f"v_permlane32_swap_b32 v{b+1}, v{b+3}")
        for b in bs:
            A(f"v_add_f32 v{b}, v{b}, v{b+2}")
            A(f"v_add_f32 v{b+1}, v{b+1}, v{b+3}")
        for b in bs: A(f"v_permlane16_swap_b32 v{b}, v{b+1}")
        for b in bs: A(f"v_add_f32 v{b}, v{b}, v{b+1}")
    def addgran(d, s):
        A(f"v_pk_add_f32 {r2(d)}, {r2(d)}, {r2(s)}")
        A(f"v_pk_add_f32 {r2(d+2)}, {r2(d+2)}, {r2(s+2)}")
    def tag4(b):
        for e in range(4): A(f"v_perm_b32 v{b+e}, v{b+e}, v{vTAG}, s{sSEL+e}")
    def halfadd(b, t):
        for e in range(4): A(f"v_mov_b32 v{t+e}, v{b+e}")
        for e in range(4): A(f"v_permlane32_swap_b32 v{b+e}, v{t+e}")
        for e in range(4): A(f"v_add_f32_dpp v{b+e}, v{t+e}, v{b+e} row_ror:8 {DPP}")
    def poll(loads, grans, dws, acc):
        L = A.label("poll"); Ld = A.label("pd")
        A(f"s_mov_b32 s{sCNT}, {p.limit}")
        A(f"{L}:")
        for l in loads: A(l)
        A("s_waitcnt vmcnt(0)")
        first = True
        for b in grans:
            for e in range(4):
                if first: A(f"v_xor_b32 v{acc}, s{sTAG+e}, v{b+e}"); first = False
                else: A(f"v_bitop3_b32 v{acc}, v{b+e}, s{sTAG+e}, v{acc} bitop3:0xbe")
        for d in dws:
            A(f"v_bitop3_b32 v{acc}, v{d}, v{vTG}, v{acc} bitop3:0xbe")
        A(f"v_and_b32 v{acc}, 0xff, v{acc}")
        A(f"v_cmp_ne_u32 vcc, 0, v{acc}")
        A(f"s_cbranch_vccz {Ld}")
        A(f"s_sub_u32 s{sCNT}, s{sCNT}, 1")
        A(f"s_cbranch_scc0 {L}")
        A(f"{Ld}:")
    def ldswait(off, target, t, ta):
        L = A.label("lw"); Ld = A.label("lwd")
        A(f"v_mov_b32 v{ta}, 0")
        A(f"s_mov_b32 s{sCNT}, {p.limit*40}")
        A(f"{L}:")
        A(f"ds_read_b32 v{t}, v{ta} offset:{off}")
        A("s_waitcnt lgkmcnt(0)")
        A(f"v_readfirstlane_b32 s{sT}, v{t}")
        A(f"s_cmp_ge_u32 s{sT}, {target}")
        A(f"s_cbranch_scc1 {Ld}")
        A(f"s_sub_u32 s{sCNT}, s{sCNT}, 1")
        A(f"s_cbranch_scc0 {L}")
        A(f"{Ld}:")
    def ldssignal(off, t, ta, rtn=False):
        A(f"v_mov_b32 v{ta}, 0")
        A(f"v_mov_b32 v{t}, 1")
        A("s_waitcnt lgkmcnt(0)")
        A("s_mov_b64 exec, 1")
        if rtn:
            A(f"ds_add_rtn_u32 v{t}, v{ta}, v{t} offset:{off}")
            A("s_waitcnt lgkmcnt(0)")
            A(f"v_readfirstlane_b32 s{sT}, v{t}")
        else:
            A(f"ds_add_u32 v{ta}, v{t} offset:{off}")
        A("s_mov_b64 exec, -1")
    def consts():
        A(f"v_and_b32 v3, 1, v{vI}")
        A(f"v_lshlrev_b32 v3, 4, v3")
        A(f"v_mov_b32 v{vSEL}, 0xffff")
        A(f"v_lshlrev_b32 v3, v3, v{vSEL}")
        A(f"v_bfe_u32 v{vSEL}, v{vI}, 1, 2")
        for d in range(4):
            A(f"v_cmp_eq_u32 vcc, {d}, v{vSEL}")
            A(f"v_cndmask_b32 v{vMASK+d}, 0, v3, vcc")
        A(f"v_lshrrev_b32 v3, 3, v{vI}")
        A(f"s_mov_b32 s{sT}, 0x02020202")
        A(f"v_mul_lo_u32 v3, v3, s{sT}")
        A(f"v_add_u32 v3, 0x01000100, v3")
        A(f"s_mov_b32 s{sT}, 0x0c0c0c0c")
        for d in range(4):
            A(f"v_bfi_b32 v{vSEL+d}, v{vMASK+d}, v3, s{sT}")
    def tagsetup():
        A("s_waitcnt lgkmcnt(0)")
        A(f"s_mul_i32 s{sT}, s{sTAG}, 0x9E3779B1")
        A(f"s_add_u32 s{sT}, s{sT}, 0x7F4A7C15")
        A(f"s_or_b32 s{sT}, s{sT}, 0x01010101")
        A(f"s_xor_b32 s{sTAG}, s{sTAG}, s{sT}")
        for e in range(1, 4): A(f"s_lshr_b32 s{sTAG+e}, s{sTAG}, {8*e}")
        for e in range(4): A(f"s_mov_b32 s{sSEL+e}, {hex(0x07060500 + e)}")
        A(f"v_mov_b32 v{vTAG}, s{sTAG}")
        A(f"v_lshlrev_b32 v{vTG}, 3, v{vG}")
        A(f"v_lshrrev_b32 v{vTG}, v{vTG}, v{vTAG}")
    def silu(regs, tmps):
        for v, t in zip(regs, tmps): A(f"v_mul_f32 v{t}, 0xbfb8aa3b, v{v}")
        for v, t in zip(regs, tmps): A(f"v_exp_f32 v{t}, v{t}")
        for v, t in zip(regs, tmps): A(f"v_add_f32 v{t}, 1.0, v{t}")
        for v, t in zip(regs, tmps): A(f"v_rcp_f32 v{t}, v{t}")
        for v, t in zip(regs, tmps): A(f"v_mul_f32 v{v}, v{v}, v{t}")
    def sparse8(sr, n, dst, t):
        A(f"v_mov_b32_dpp v{t}, v{sr} row_newbcast:{n} {DPP}")
        for d in range(4): A(f"v_perm_b32 v{dst+d}, v{t}, v{t}, v{vSEL+d}")
    def mfma(d, a, b, first):
        A(f"v_mfma_f32_16x16x32_bf16 {r4(d)}, {r4(a)}, {r4(b)}, {'0' if first else r4(d)}")
    vT1, vT2 = 16, 17
    T1B, T2B = 168, 200
    def tail_setup():
        LM, LB_, LN, LE = A.label("tM"), A.label("tB"), A.label("tN"), A.label("tE")
        sSA, sHA, sSB, sHB = sO1, sO2, 70, 71
        A(f"s_cmp_eq_u32 s{sCLS}, 1"); A(f"s_cbranch_scc1 {LM}")
        A(f"s_cmp_eq_u32 s{sCLS}, 2"); A(f"s_cbranch_scc1 {LB_}")
        A(f"s_lshl_b32 s{sT}, s{sG}, 2")
        A(f"s_add_u32 s{sT}, s{sT}, s3")
        A(f"s_sub_u32 s{sT}, s{sT}, 4")
        A(f"s_mul_i32 s{sT}, s{sT}, {64*1152}")
        A(f"s_lshl_b32 s{sST1}, s{sJ}, 7")
        A(f"s_add_u32 s{sT}, s{sT}, s{sST1}")
        set_srd(R_T1, sT, sWO, 64 * 1152)
        A(f"s_cmp_eq_u32 s{sCLS}, 0")
        A(f"s_cselect_b32 s{R_T1+2}, s{R_T1+2}, 0")
        A(f"s_mov_b64 {sp(R_T2)}, {sp(R_T1)}")
        A(f"s_mov_b32 s{R_T2+2}, 0")
        A(f"s_mov_b32 s{R_T2+3}, 0x20000")
        A(f"s_mov_b32 s{sST1}, 4608"); A(f"s_mov_b32 s{sST2}, 0")
        A(f"s_mov_b32 s{sSA}, 1152"); A(f"s_mov_b32 s{sHA}, {32*1152}")
        A(f"s_mov_b32 s{sSB}, 0"); A(f"s_mov_b32 s{sHB}, 0")
        A(f"s_branch {LE}")
        A(f"{LM}:")
        A(f"s_mul_i32 s{sT}, s{sBLK}, {64*1152}")
        A(f"s_lshl_b32 s{sST1}, s3, 7")
        A(f"s_add_u32 s{sT}, s{sT}, s{sST1}")
        set_srd(R_T1, sT, sW2, 64 * 1152)
        A(f"s_mul_i32 s{sT}, s3, {72*9216}")
        A(f"s_lshl_b32 s{sST1}, s{sBLK}, 7")
        A(f"s_add_u32 s{sT}, s{sT}, s{sST1}")
        set_srd(R_T2, sT, sW1, 72 * 9216)
        A(f"s_mov_b32 s{sST1}, 4608"); A(f"s_mov_b32 s{sST2}, {8*9216}")
        A(f"s_mov_b32 s{sSA}, 1152"); A(f"s_mov_b32 s{sHA}, {32*1152}")
        A(f"s_mov_b32 s{sSB}, 9216"); A(f"s_mov_b32 s{sHB}, {4*9216}")
        A(f"s_branch {LE}")
        A(f"{LB_}:")
        A(f"s_sub_u32 s{sT}, s3, 4")
        A(f"s_mul_i32 s{sT}, s{sT}, {144*6912}")
        A(f"s_lshl_b32 s{sST1}, s{sBLK}, 7")
        A(f"s_add_u32 s{sT}, s{sT}, s{sST1}")
        A(f"s_add_u32 s{sT}, s{sT}, 2304")
        set_srd(R_T1, sT, sWM, 64 * 6912)
        A(f"s_add_u32 s{sT}, s{sT}, {64*6912}")
        set_srd(R_T2, sT, sWM, 80 * 6912)
        A(f"s_mov_b32 s{sST1}, {8*6912}"); A(f"s_mov_b32 s{sST2}, {8*6912}")
        A(f"s_mov_b32 s{sSA}, 6912"); A(f"s_mov_b32 s{sHA}, {4*6912}")
        A(f"s_mov_b32 s{sSB}, 6912"); A(f"s_mov_b32 s{sHB}, {4*6912}")
        A(f"{LE}:")
        A(f"v_and_b32 v3, 7, v{vI}")
        A(f"v_lshlrev_b32 v3, 4, v3")
        A(f"v_lshrrev_b32 v18, 3, v{vI}")
        A(f"v_mad_u32_u24 v{vT1}, v{vG}, s{sSA}, v3")
        A(f"v_mad_u32_u24 v{vT1}, v18, s{sHA}, v{vT1}")
        A(f"v_mad_u32_u24 v{vT2}, v{vG}, s{sSB}, v3")
        A(f"v_mad_u32_u24 v{vT2}, v18, s{sHB}, v{vT2}")
        A(f"s_mov_b32 s{sO1}, 0"); A(f"s_mov_b32 s{sO2}, 0")
    def tail_load(k):
        if k < 8:
            A(f"buffer_load_dwordx4 {r4(T1B+4*k)}, v{vT1}, {srd(R_T1)}, s{sO1} offen {nt}")
            A(f"s_add_u32 s{sO1}, s{sO1}, s{sST1}")
        else:
            A(f"buffer_load_dwordx4 {r4(T2B+4*(k-8))}, v{vT2}, {srd(R_T2)}, s{sO2} offen {nt}")
            A(f"s_add_u32 s{sO2}, s{sO2}, s{sST2}")

    A(f"; @launch grid=(256,1,1) block=(512,1,1) lds={LDS_BYTES}".replace("; @", ".ASMLAUNCH @"))
    A('.amdgcn_target "amdgcn-amd-amdhsa--gfx950"')
    A(".text")
    A(f".globl {KN}")
    A(".p2align 8")
    A(f".type {KN},@function")
    A(f"{KN}:")
    stamp(0)
    if p.dbg: A("s_memrealtime s[98:99]")
    if p.stamps:
        for k in range(1, 12): A(f"s_mov_b32 s{72+2*k}, 0")
    A("s_cmp_ge_u32 s2, 256")
    A("s_cbranch_scc1 L_exit")
    A("s_load_dwordx16 s[16:31], s[0:1], 0")
    A("s_load_dwordx8 s[32:39], s[0:1], 64")
    A(f"s_load_dwordx2 {sp(sOUT)}, s[0:1], 96")
    A(f"s_load_dwordx2 {sp(sWS)}, s[0:1], 112")
    A("v_lshrrev_b32 v1, 6, v0")
    A("v_and_b32 v0, 63, v0")
    A("v_readfirstlane_b32 s3, v1")
    A(f"v_lshrrev_b32 v{vG}, 4, v{vL}")
    A(f"v_and_b32 v{vI}, 15, v{vL}")
    A(f"s_and_b32 s{sG}, s2, 7")
    A(f"s_lshl_b32 s{sG}, s{sG}, 1")
    A(f"s_bfe_u32 s{sT}, s2, 0x10003")
    A(f"s_add_u32 s{sG}, s{sG}, s{sT}")
    A(f"s_lshr_b32 s{sJ}, s2, 4")
    Lc = A.label("cls")
    A(f"s_mov_b32 s{sCLS}, 0"); A(f"s_mov_b32 s{sBLK}, s{sJ}")
    A(f"s_cmp_lt_u32 s{sJ}, 9"); A(f"s_cbranch_scc1 {Lc}")
    A(f"s_mov_b32 s{sCLS}, 1")
    A(f"s_sub_u32 s{sT}, s{sJ}, 9"); A(f"s_lshl_b32 s{sBLK}, s{sT}, 4"); A(f"s_add_u32 s{sBLK}, s{sBLK}, s{sG}")
    A(f"s_cmp_lt_u32 s{sJ}, 13"); A(f"s_cbranch_scc1 {Lc}")
    A(f"s_mov_b32 s{sCLS}, 2")
    A(f"s_sub_u32 s{sBLK}, s{sBLK}, 72")
    A(f"s_cmp_ge_u32 s{sBLK}, 36"); A(f"s_cselect_b32 s{sCLS}, 3, 2")
    A(f"s_cmp_lg_u32 s{sJ}, 13"); A(f"s_cbranch_scc1 {Lc}")
    A(f"s_lshr_b32 s{sBLK}, s{sG}, 1")
    A(f"s_mov_b32 s{sCLS}, 2")
    A(f"s_bitcmp1_b32 s{sG}, 0"); A(f"s_cbranch_scc1 {Lc}")
    A(f"s_mov_b32 s{sCLS}, 1"); A(f"s_add_u32 s{sBLK}, s{sBLK}, 64")
    A(f"{Lc}:")
    A("s_waitcnt lgkmcnt(0)")
    A(f"s_mov_b64 {sp(R_WS)}, {sp(sWS)}")
    A(f"s_mov_b32 s{R_WS+2}, {WSREC}")
    A(f"s_mov_b32 s{R_WS+3}, 0x20000")
    A("s_cmp_ge_u32 s3, 4")
    A("s_cbranch_scc1 L_main")

    WB = 40
    SB = 80
    if p.prio: A(f"s_setprio {p.prio}")
    A("s_cmp_eq_u32 s3, 3"); A("s_cbranch_scc1 L_c_bar")
    A("s_cmp_lg_u32 s3, 0"); A("s_cbranch_scc1 L_c_wqload")
    for e in range(4): A(f"v_mov_b32 v{20+e}, 0")
    A(f"v_lshlrev_b32 v3, 4, v{vI}")
    A(f"ds_write_b128 v3, v[20:23]")
    A(f"s_cmp_lg_u32 s{sCLS}, 0"); A("s_cbranch_scc1 L_c_bar")
    A(f"s_lshr_b32 s70, s{sG}, 1")
    A(f"s_and_b32 s71, s{sG}, 1"); A(f"s_mul_i32 s71, s71, 9"); A(f"s_add_u32 s71, s71, s{sJ}")
    A(f"v_min_u32 v3, 8, v{vI}")
    A(f"v_lshl_add_u32 v3, v3, 3, v{vG}")
    A(f"s_mul_i32 s{sT}, s70, 72")
    A(f"v_add_lshl_u32 v3, v3, s{sT}, 1")
    A(f"global_load_short_d16_hi v20, v3, {sp(sC)}")
    A(f"global_load_short_d16_hi v21, v3, {sp(sC)} offset:8")
    A(f"s_mul_i32 s{sT}, s70, {72*6912}")
    A(f"s_lshl_b32 s{sO1}, s71, 7")
    A(f"s_add_u32 s{sT}, s{sT}, s{sO1}")
    set_srd(R_A, sT, sWM, 72 * 6912)
    A(f"v_lshrrev_b32 v3, 3, v{vI}")
    A(f"v_lshl_add_u32 v3, v3, 2, v{vG}")
    A(f"v_mul_u32_u24 v3, 6912, v3")
    A(f"v_and_b32 v14, 7, v{vI}")
    A(f"v_lshl_add_u32 v14, v14, 4, v3")
    for n in range(9):
        A(f"s_mov_b32 s{sO1}, {n*8*6912}")
        A(f"buffer_load_dwordx4 {r4(WB+4*n)}, v14, {srd(R_A)}, s{sO1} offen {nt}")
    A("s_branch L_c_bar")
    A("L_c_wqload:")
    A(f"v_lshlrev_b32 v3, 3, v{vL}")
    A(f"global_load_dwordx2 v[20:21], v3, {sp(sX)}")
    A(f"global_load_dwordx2 v[22:23], v3, {sp(sX)} offset:512")
    A(f"v_lshlrev_b32 v3, 3, v{vI}")
    A(f"global_load_dwordx2 v[24:25], v3, {sp(sX)} offset:1024")
    A(f"v_min_u32 v15, 8, v{vI}")
    A(f"v_lshl_add_u32 v3, v15, 2, v{vG}")
    A(f"s_mul_i32 s{sT}, s{sJ}, 36")
    A(f"v_add_lshl_u32 v3, v3, s{sT}, 1")
    A(f"global_load_short_d16_hi v26, v3, {sp(sX)}")
    A(f"s_mul_i32 s{sT}, s{sJ}, {36*8192}")
    A(f"s_lshl_b32 s{sO1}, s{sG}, 9")
    A(f"s_add_u32 s{sT}, s{sT}, s{sO1}")
    A(f"s_sub_u32 s{sO1}, s3, 1"); A(f"s_lshl_b32 s{sO1}, s{sO1}, 8")
    A(f"s_add_u32 s{sT}, s{sT}, s{sO1}")
    set_srd(R_A, sT, sWQ, 36 * 8192)
    A(f"v_lshlrev_b32 v14, 13, v{vG}")
    A(f"v_lshl_add_u32 v14, v{vI}, 4, v14")
    for n in range(9):
        A(f"s_mov_b32 s{sO1}, {n*4*8192}")
        A(f"buffer_load_dwordx4 {r4(WB+4*n)}, v14, {srd(R_A)}, s{sO1} offen {nt}")
    A("L_c_bar:")
    A("s_waitcnt lgkmcnt(0)")
    A("s_barrier")
    A(f"s_load_dword s{sTAG}, {sp(sWS)}, {EPOCH}")
    stamp(1)
    consts()
    tagsetup()
    A("s_cmp_eq_u32 s3, 3"); A("s_cbranch_scc1 L_c_s2")
    A("s_cmp_lg_u32 s3, 0"); A("s_cbranch_scc1 L_c_wq")
    A(f"s_cmp_lg_u32 s{sCLS}, 0"); A("s_cbranch_scc1 L_c_s2")
    A("s_waitcnt vmcnt(9)")
    silu([20, 21], [22, 23])
    A("v_cvt_pk_bf16_f32 v20, v20, v21")
    for n in range(9): sparse8(20, n, SB + 4 * n, 22 + (n & 1))
    for n in range(9):
        A(f"s_waitcnt vmcnt({8-n})")
        mfma(24, SB + 4 * n, WB + 4 * n, n == 0)
    stamp(2)
    A(f"s_mul_i32 s70, s70, 4608"); A(f"s_lshl_b32 s71, s71, 8"); A(f"s_add_u32 s70, s70, s71"); A(f"s_add_u32 s70, s70, {MA}")
    A(f"v_lshlrev_b32 v3, 5, v{vI}")
    A(f"v_lshl_add_u32 v3, v{vG}, 4, v3")
    halfadd(24, 28)
    tag4(24)
    A("s_mov_b64 exec, 0x00ff00ff")
    A(f"buffer_store_dwordx4 v[24:27], v3, {srd(R_WS)}, s70 offen sc1")
    A("s_mov_b64 exec, -1")
    stamp(3)
    A("s_branch L_c_s2")
    A("L_c_wq:")
    A("s_waitcnt vmcnt(9)")
    for k in range(6):
        A(f"v_lshlrev_b32 v{28+2*k}, 16, v{20+k}")
        A(f"v_and_b32 v{29+2*k}, 0xffff0000, v{20+k}")
    A(f"v_cmp_gt_u32 vcc, 16, v{vL}")
    for k in range(8, 12): A(f"v_cndmask_b32 v{28+k}, 0, v{28+k}, vcc")
    A("v_pk_add_f32 v[20:21], v[28:29], v[30:31]")
    for k in range(2, 6): A(f"v_pk_add_f32 v[20:21], v[20:21], {r2(28+2*k)}")
    A("v_add_f32 v20, v20, v21")
    wavesum([20], [21])
    A(f"v_mul_f32 v20, {hex(0x3ae38e39)}, v20")
    for k in range(12): A(f"v_sub_f32 v{28+k}, v{28+k}, v20")
    for k in range(8, 12): A(f"v_cndmask_b32 v{28+k}, 0, v{28+k}, vcc")
    A("v_pk_mul_f32 v[22:23], v[28:29], v[28:29]")
    for k in range(1, 6): A(f"v_pk_fma_f32 v[22:23], {r2(28+2*k)}, {r2(28+2*k)}, v[22:23]")
    A("v_add_f32 v22, v22, v23")
    wavesum([22], [23])
    A(f"v_mul_f32 v22, {hex(0x3ae38e39)}, v22")
    bf16r(20, 20); bf16r(22, 22)
    A(f"v_add_f32 v22, {hex(0x3727c5ac)}, v22")
    bf16r(22, 22)
    A("v_sqrt_f32 v22, v22")
    bf16r(22, 22)
    A("v_sub_f32 v26, v26, v20")
    bf16r(26, 26)
    A("v_rcp_f32 v23, v22")
    A("v_mul_f32 v21, v26, v23")
    A("v_fma_f32 v24, -v21, v22, v26")
    A("v_fma_f32 v21, v24, v23, v21")
    bf16r(26, 21)
    A(f"v_mul_u32_u24 v3, 4608, v{vG}")
    A(f"v_lshl_add_u32 v3, v15, 4, v3")
    A(f"s_mul_i32 s70, s{sJ}, 144"); A(f"s_add_u32 s70, s70, {MA}"); A(f"s_add_u32 s71, s70, 18432")
    G1 = 120
    stamp(2)
    poll([f"buffer_load_dwordx4 {r4(G1+4*a)}, v3, {srd(R_WS)}, s{70+(a&1)} offen offset:{2304*(a>>1)} sc1" for a in range(4)],
         [G1 + 4 * a for a in range(4)], [], 20)
    stamp(3)
    addgran(G1, G1 + 4); addgran(G1 + 8, G1 + 12)
    redscat([G1, G1 + 8])
    bf16r(G1, G1); bf16r(G1 + 8, G1 + 8)
    A(f"v_add_f32 v{G1+8}, 1.0, v{G1+8}")
    bf16r(G1 + 8, G1 + 8)
    A(f"v_mul_f32 v26, v26, v{G1+8}")
    bf16r(26, 26)
    A(f"v_add_f32 v26, v26, v{G1}")
    A("v_cvt_pk_bf16_f32 v26, v26, v26")
    for n in range(9):
        for d in range(4): A(f"v_and_b32_dpp v{SB+4*n+d}, v26, v{vMASK+d} row_newbcast:{n} {DPP}")
        mfma(28, SB + 4 * n, WB + 4 * n, n == 0)
    A(f"s_lshl_b32 s70, s{sG}, 4"); A(f"s_add_u32 s70, s70, s{sJ}"); A(f"s_lshl_b32 s70, s70, 10")
    A(f"s_sub_u32 s71, s3, 1"); A(f"s_lshl_b32 s71, s71, 9"); A("s_add_u32 s70, s70, s71"); A(f"s_add_u32 s70, s70, {QP}")
    A(f"v_lshlrev_b32 v3, 5, v{vI}")
    A(f"v_lshl_add_u32 v3, v{vG}, 4, v3")
    tag4(28)
    A("s_mov_b32 exec_hi, 0")
    A(f"buffer_store_dwordx4 v[28:31], v3, {srd(R_WS)}, s70 offen sc1")
    A("s_mov_b64 exec, -1")
    stamp(4)
    A("L_c_s2:")
    A(f"v_lshlrev_b32 v3, 10, v{vG}")
    A(f"v_lshl_add_u32 v3, v{vI}, 4, v3")
    A(f"s_lshl_b32 s70, s{sG}, 14"); A("s_lshl_b32 s71, s3, 8"); A("s_add_u32 s70, s70, s71"); A(f"s_add_u32 s44, s70, {QP}")
    for a in range(1, 4): A(f"s_add_u32 s{44+a}, s44, {4096*a}")
    poll([f"buffer_load_dwordx4 {r4(G1+4*a)}, v3, {srd(R_WS)}, s{44+a} offen sc1" for a in range(4)],
         [G1 + 4 * a for a in range(4)], [], 20)
    stamp(5)
    addgran(G1, G1 + 4); addgran(G1 + 8, G1 + 12); addgran(G1, G1 + 8)
    redscat([G1])
    A(f"v_cvt_pk_bf16_f32 v20, v{G1}, v{G1}")
    A(f"v_lshl_add_u32 v3, v{vI}, 2, v{vG}")
    A(f"s_lshl_b32 s70, s3, 6")
    A(f"v_add_lshl_u32 v3, v3, s70, 1")
    A(f"ds_write_b16 v3, v20 offset:{L_Q}")
    ldssignal(CNT_Q, 21, 22)
    stamp(6)
    A(f"s_cmp_eq_u32 s{sCLS}, 1"); A("s_cbranch_scc1 L_c_m")
    A("s_cmp_lg_u32 s3, 3"); A("s_cbranch_scc1 L_c_end")
    A(f"s_mov_b32 s{sBLK}, s{sG}")
    A(f"s_cmp_eq_u32 s{sJ}, 8"); A("s_cbranch_scc1 L_red")
    A(f"s_add_u32 s{sBLK}, s{sG}, 16")
    A(f"s_cmp_lg_u32 s{sJ}, 7"); A("s_cbranch_scc1 L_c_end")
    A(f"s_cmp_lt_u32 s{sG}, 2"); A("s_cbranch_scc1 L_red")
    A("L_c_end:")
    endwave()

    A("L_red:")
    A(f"v_and_b32 v14, 7, v{vI}")
    A(f"v_lshl_add_u32 v15, v14, 2, v{vG}")
    A(f"s_lshl_b32 s70, s{sBLK}, 5")
    A(f"v_add_u32 v15, s70, v15")
    A(f"v_lshlrev_b32 v18, 1, v15")
    A(f"global_load_short_d16_hi v24, v18, {sp(sX)}")
    A(f"global_load_short_d16_hi v25, v18, {sp(sB2)}")
    A(f"v_lshlrev_b32 v15, 2, v15")
    A(f"v_lshrrev_b32 v3, 3, v{vL}")
    A(f"v_mul_u32_u24 v3, 2304, v3")
    A(f"v_lshl_add_u32 v3, v14, 4, v3")
    A(f"s_lshl_b32 s70, s{sBLK}, 7")
    A(f"v_add_u32 v3, s70, v3")
    A(f"s_mov_b32 s44, {AP}"); A(f"s_mov_b32 s45, {AP+18432}"); A(f"s_mov_b32 s46, {MB}"); A(f"s_mov_b32 s47, {MB+1728*4}")
    ldswait(CNT_W, 4, 20, 21)
    stamp(7)
    poll([f"buffer_load_dwordx4 {r4(40+4*a)}, v3, {srd(R_WS)}, s{44+a} offen sc1" for a in range(2)] +
         [f"buffer_load_dword v26, v15, {srd(R_WS)}, s46 offen sc1", f"buffer_load_dword v27, v15, {srd(R_WS)}, s47 offen sc1"],
         [40, 44], [26, 27], 20)
    stamp(8)
    addgran(40, 44)
    redscat([40])
    A(f"v_add_f32_dpp v40, v40, v40 row_ror:8 {DPP}")
    A("v_and_b32 v26, 0xffff0000, v26")
    A("v_and_b32 v27, 0xffff0000, v27")
    bf16r(40, 40)
    A("v_mul_f32 v40, v40, v26")
    bf16r(40, 40)
    A("v_add_f32 v24, v24, v40")
    bf16r(24, 24)
    for a in range(9): A(f"s_mov_b32 s{44+a}, {FP+18432*a}")
    poll([f"buffer_load_dwordx4 {r4(40+4*a)}, v3, {srd(R_WS)}, s{44+a} offen sc1" for a in range(9)],
         [40 + 4 * a for a in range(9)], [], 20)
    stamp(9)
    addgran(40, 44); addgran(48, 52); addgran(56, 60); addgran(64, 68)
    addgran(40, 48); addgran(56, 64); addgran(40, 72); addgran(40, 56)
    redscat([40])
    A(f"v_add_f32_dpp v40, v40, v40 row_ror:8 {DPP}")
    bf16r(40, 40)
    A("v_add_f32 v40, v40, v25")
    bf16r(40, 40)
    A("v_mul_f32 v40, v40, v27")
    bf16r(40, 40)
    A("v_add_f32 v40, v40, v24")
    A("v_cvt_pk_bf16_f32 v40, v40, v40")
    A("s_mov_b32 exec_lo, 0x00ff00ff"); A("s_mov_b32 exec_hi, 0x00ff00ff")
    A(f"global_store_short v18, v40, {sp(sOUT)}")
    A(f"s_cmp_lg_u32 s{sBLK}, 0"); A("s_cbranch_scc1 L_red_end")
    A("s_mov_b64 exec, 1")
    A("v_mov_b32 v3, 0")
    A(f"global_store_dword v3, v{vTAG}, {sp(sWS)} offset:{EPOCH} sc1")
    A("L_red_end:")
    if p.dbg:
        A("s_memrealtime s[96:97]")
        A("s_load_dwordx2 s[70:71], s[0:1], 104")
        A("s_waitcnt lgkmcnt(0)")
        A("s_sub_u32 s96, s96, s98")
        A("s_mov_b64 exec, 1")
        A(f"s_lshl_b32 s97, s{sBLK}, 2")
        A("v_mov_b32 v3, s97")
        A("v_mov_b32 v4, s96")
        A("global_store_dword v3, v4, s[70:71]")
    stamp(10)
    endwave()

    A("L_c_m:")
    tail_setup()
    X2B = 104
    order = list(range(8, 17)) + list(range(8))
    for idx, k in enumerate(order):
        if idx >= p.DC: A(f"s_waitcnt vmcnt({p.DC-1})")
        tail_load(k)
    A("s_cmp_lg_u32 s3, 0"); A("s_cbranch_scc1 L_mphase")
    A(f"s_mov_b32 s{sO1}, 1024")
    for k in range(8):
        A(f"s_waitcnt vmcnt({p.DC-1})")
        A(f"buffer_load_dwordx4 {r4(X2B+4*k)}, v{vT1}, {srd(R_T1)}, s{sO1} offen {nt}")
        A(f"s_add_u32 s{sO1}, s{sO1}, s{sST1}")
    A("s_branch L_mphase")

    KB, VB, OA = 40, 104, 240
    vK, vV, QB = 14, 15, 20
    A("L_main:")
    A(f"s_lshl_b32 s{sT}, s{sG}, 23")
    A(f"s_lshl_b32 s70, s{sJ}, 16")
    A(f"s_add_u32 s{sT}, s{sT}, s70")
    A(f"s_add_u32 s{sT}, s{sT}, 7340032")
    set_srd(R_A, sT, sK, 65536)
    set_srd(R_B, sT, sV, 65536)
    A(f"s_sub_u32 s70, s3, 4"); A("s_lshl_b32 s70, s70, 10")
    A(f"v_lshlrev_b32 v{vK}, 6, v{vI}")
    A(f"v_lshl_add_u32 v{vK}, v{vG}, 4, v{vK}")
    A(f"v_add_u32 v{vK}, s70, v{vK}")
    A(f"v_lshl_add_u32 v{vV}, v{vL}, 4, s70")
    if p.rot:
        A(f"s_mul_i32 s71, s2, {p.rot}"); A("s_lshr_b32 s70, s2, 4"); A("s_add_u32 s71, s71, s70")
        A("s_lshl_b32 s71, s71, 12"); A("s_and_b32 s71, s71, 0xffff")
    else:
        A("s_mov_b32 s71, 0")
    A("s_barrier")
    A(f"s_load_dword s{sTAG}, {sp(sWS)}, {EPOCH}")
    stamp(1)
    for n in range(32):
        if n >= p.D: A(f"s_waitcnt vmcnt({p.D-1})")
        if n < 16: A(f"buffer_load_dwordx4 {r4(KB+4*n)}, v{vK}, {srd(R_A)}, s71 offen {nt}")
        else: A(f"buffer_load_dwordx4 {r4(VB+4*(n-16))}, v{vV}, {srd(R_B)}, s71 offen {nt}")
        A("s_add_u32 s71, s71, 4096"); A("s_and_b32 s71, s71, 0xffff")
        if n == p.D - 1:
            consts()
            A("s_mov_b32 s96, s71")
            tail_setup()
            tagsetup()
            A("s_mov_b32 s71, s96")
    stamp(2)
    for k in range(p.PRE): tail_load(k)
    A(f"v_and_b32 v3, 3, v{vI}")
    A(f"v_lshl_add_u32 v3, v3, 2, v{vG}")
    A(f"v_lshlrev_b32 v3, 4, v3")
    A(f"v_lshrrev_b32 v18, 3, v{vI}")
    A(f"v_lshl_add_u32 v3, v18, 8, v3")
    ldswait(CNT_Q, 4, 24, 25)
    stamp(3)
    A(f"ds_read_b128 {r4(QB)}, v3 offset:{L_Q}")
    A(f"s_waitcnt vmcnt({16+p.PRE}) lgkmcnt(0)")
    for n in range(16): A(f"v_mfma_f32_16x16x32_bf16 {r4(KB+4*n)}, {r4(KB+4*n)}, {r4(QB)}, 0")
    for n0 in range(0, 16, 4):
        for n in range(n0, n0 + 4): A(f"v_mov_b32_dpp v{KB+4*n}, v{KB+4*n} quad_perm:[0,0,0,0] {DPP}")
        for t in range(1, 4):
            for n in range(n0, n0 + 4): A(f"v_add_f32_dpp v{KB+4*n}, v{KB+4*n+t}, v{KB+4*n} quad_perm:[{t},{t},{t},{t}] {DPP}")
    A(f"s_mov_b32 s70, 0x3db504f3")
    for m in range(8):
        b = KB + 8 * m
        A(f"v_cvt_pk_bf16_f32 v{b+2}, v{b}, v{b+4}")
    for m in range(8):
        b = KB + 8 * m
        A(f"v_lshlrev_b32 v{b}, 16, v{b+2}")
        A(f"v_and_b32 v{b+1}, 0xffff0000, v{b+2}")
    for m in range(8):
        b = KB + 8 * m
        A(f"v_pk_mul_f32 {r2(b)}, {r2(b)}, s[70:71] op_sel_hi:[1,0]")
    for m in range(8):
        b = KB + 8 * m
        A(f"v_cvt_pk_bf16_f32 v{b+2}, v{b}, v{b+1}")
    for m in range(8):
        b = KB + 8 * m
        A(f"v_lshlrev_b32 v{b}, 16, v{b+2}")
        A(f"v_and_b32 v{b+1}, 0xffff0000, v{b+2}")
    A(f"v_max_f32 v24, v{KB}, v{KB+1}")
    for m in range(1, 8): A(f"v_max3_f32 v24, v{KB+8*m}, v{KB+8*m+1}, v24")
    rowsall("v_max_f32", 24, 25)
    A(f"s_sub_u32 s70, s3, 4"); A("s_lshl_b32 s70, s70, 2")
    A(f"v_lshl_add_u32 v19, v18, 4, s70")
    A(f"ds_write_b32 v19, v24 offset:{L_MAX}")
    ldssignal(CNT_MAX, 26, 27)
    A(f"v_lshlrev_b32 v3, 4, v18")
    ldswait(CNT_MAX, 4, 26, 27)
    A(f"ds_read_b128 v[24:27], v3 offset:{L_MAX}")
    A("s_waitcnt lgkmcnt(0)")
    A("v_max3_f32 v24, v24, v25, v26")
    A("v_max_f32 v24, v24, v27")
    A(f"s_mov_b32 s70, {hex(LOG2E)}")
    A("v_mul_f32 v26, s70, v24")
    for m in range(8):
        b = KB + 8 * m
        A(f"v_pk_fma_f32 {r2(b)}, {r2(b)}, s[70:71], v[26:27] op_sel_hi:[1,0,0] neg_lo:[0,0,1] neg_hi:[0,0,1]")
    for m in range(8):
        b = KB + 8 * m
        A(f"v_exp_f32 v{b}, v{b}")
        A(f"v_exp_f32 v{b+1}, v{b+1}")
    A(f"v_pk_add_f32 v[28:29], {r2(KB)}, {r2(KB+8)}")
    for m in range(2, 8): A(f"v_pk_add_f32 v[28:29], v[28:29], {r2(KB+8*m)}")
    A("v_add_f32 v28, v28, v29")
    rowsall("v_add_f32", 28, 29)
    A(f"ds_write_b32 v19, v28 offset:{L_LB}")
    ldssignal(CNT_L, 26, 27)
    for m in range(8):
        b = KB + 8 * m
        A(f"v_cvt_pk_bf16_f32 v30, v{b}, v{b}")
        A(f"v_cvt_pk_bf16_f32 v31, v{b+1}, v{b+1}")
        for d in range(4): A(f"v_and_b32 v{b+d}, v30, v{vMASK+d}")
        for d in range(4): A(f"v_and_b32 v{b+4+d}, v31, v{vMASK+d}")
    stamp(4)
    ldswait(CNT_L, 4, 26, 27)
    A("v_mov_b32 v3, 0")
    A(f"ds_read_b128 v[24:27], v3 offset:{L_MAX}")
    A(f"ds_read_b128 v[28:31], v3 offset:{L_MAX+16}")
    A(f"ds_read_b128 v[20:23], v3 offset:{L_LB}")
    A(f"ds_read_b128 v[36:39], v3 offset:{L_LB+16}")
    A("s_waitcnt lgkmcnt(0)")
    A("v_max3_f32 v32, v24, v25, v26"); A("v_max_f32 v32, v32, v27")
    A("v_max3_f32 v34, v28, v29, v30"); A("v_max_f32 v34, v34, v31")
    A("v_pk_add_f32 v[20:21], v[20:21], v[22:23]"); A("v_add_f32 v33, v20, v21")
    A("v_pk_add_f32 v[36:37], v[36:37], v[38:39]"); A("v_add_f32 v35, v36, v37")
    tag4(32)
    A(f"s_lshl_b32 s70, s{sG}, 4"); A(f"s_add_u32 s70, s70, s{sJ}"); A("s_mul_i32 s70, s70, 1152"); A(f"s_add_u32 s97, s70, {OP}")
    A(f"v_lshrrev_b32 v18, 1, v{vG}")
    A(f"v_and_b32 v19, 1, v{vG}")
    A(f"v_lshlrev_b32 v18, 9, v18")
    A(f"v_lshl_add_u32 v18, v19, 4, v18")
    A(f"v_lshl_add_u32 v18, v{vI}, 5, v18")
    A(f"s_sub_u32 s70, s3, 4"); A("s_lshl_b32 s70, s70, 10")
    A(f"v_lshlrev_b32 v20, 4, v{vL}")
    A(f"v_add_u32 v19, s70, v20")
    issued = p.PRE
    for n in range(16):
        A(f"s_waitcnt vmcnt({15-n+issued})")
        mfma(OA, KB + 4 * n, VB + 4 * n, n == 0)
        want = min(18, max(p.PRE, p.D2 - 15 + n))
        while issued < want:
            tail_load(issued); issued += 1
    stamp(5)
    A(f"ds_write_b128 v19, {r4(OA)} offset:{L_OB}")
    ldssignal(CNT_O, 26, 27, rtn=True)
    A(f"s_cmp_lg_u32 s{sT}, 3"); A("s_cbranch_scc1 L_m_pub_done")
    for w in range(4): A(f"ds_read_b128 {r4(KB+4*w)}, v20 offset:{L_OB+1024*w}")
    A("s_waitcnt lgkmcnt(0)")
    addgran(KB, KB + 4); addgran(KB + 8, KB + 12); addgran(KB, KB + 8)
    tag4(KB)
    A(f"buffer_store_dwordx4 {r4(KB)}, v18, {srd(R_WS)}, s97 offen sc1")
    A("s_mov_b64 exec, 1")
    A(f"buffer_store_dwordx4 v[32:35], v20, {srd(R_WS)}, s97 offen offset:1024 sc1")
    A("s_mov_b64 exec, -1")
    A("L_m_pub_done:")
    stamp(6)
    A(f"s_cmp_eq_u32 s{sCLS}, 0"); A("s_cbranch_scc1 L_wphase")
    A(f"s_cmp_eq_u32 s{sCLS}, 3"); A("s_cbranch_scc1 L_m_end")
    while issued < 18:
        A(f"s_waitcnt vmcnt({p.D2-1})")
        tail_load(issued); issued += 1
    A(f"s_cmp_eq_u32 s{sCLS}, 1"); A("s_cbranch_scc1 L_mphase")

    A(f"s_sub_u32 s70, s3, 4"); A("s_mul_i32 s70, s70, 144")
    A(f"v_lshl_add_u32 v3, v{vI}, 3, v{vG}")
    A(f"v_add_lshl_u32 v3, v3, s70, 1")
    A(f"global_load_short_d16_hi v24, v3, {sp(sC)}")
    A(f"global_load_short_d16_hi v25, v3, {sp(sC)} offset:8")
    A(f"v_and_b32 v3, 1, v{vI}")
    A(f"v_lshl_add_u32 v3, v3, 3, v{vG}")
    A(f"v_add_lshl_u32 v3, v3, s70, 1")
    A(f"global_load_short_d16_hi v26, v3, {sp(sC)} offset:256")
    A(f"global_load_short_d16_hi v27, v3, {sp(sC)} offset:264")
    A("s_waitcnt vmcnt(0)")
    silu([24, 25, 26, 27], [28, 29, 30, 31])
    A("v_cvt_pk_bf16_f32 v24, v24, v25")
    A("v_cvt_pk_bf16_f32 v26, v26, v27")
    for n in range(18):
        sparse8(24 if n < 16 else 26, n & 15, KB + 4 * (n & 7), 28 + (n & 1))
        mfma(OA, KB + 4 * (n & 7), T1B + 4 * n, n == 0)
    A(f"s_lshl_b32 s97, s{sBLK}, 8"); A(f"s_add_u32 s97, s97, {MB}")
    A("s_nop 4")
    A("s_branch L_comb")

    A("L_wphase:")
    A(f"v_mul_u32_u24 v3, 1152, v{vG}")
    A(f"v_and_b32 v21, 3, v{vI}")
    A(f"v_mul_u32_u24 v21, 4608, v21")
    A(f"v_add_u32 v21, v21, v3")
    A(f"v_lshl_add_u32 v3, v{vI}, 4, v3")
    A(f"s_mul_i32 s70, s{sG}, {16*1152}"); A(f"s_add_u32 s48, s70, {OP}")
    A(f"s_sub_u32 s71, s3, 4"); A("s_lshl_b32 s71, s71, 8"); A("s_add_u32 s44, s48, s71")
    for a in range(1, 4): A(f"s_add_u32 s{44+a}, s44, {4608*a}")
    A("s_cmp_ge_u32 s3, 6"); A("s_cselect_b64 s[70:71], -1, 0")
    poll([f"buffer_load_dwordx4 {r4(KB+4*a)}, v3, {srd(R_WS)}, s{44+a} offen sc1" for a in range(4)] +
         [f"buffer_load_dwordx4 {r4(KB+16)}, v21, {srd(R_WS)}, s48 offen offset:1024 sc1"],
         [KB + 4 * a for a in range(5)], [], 22)
    stamp(7)
    S = KB + 16
    A(f"v_cndmask_b32 v24, v{S}, v{S+2}, s[70:71]")
    A(f"v_cndmask_b32 v25, v{S+1}, v{S+3}, s[70:71]")
    A("v_and_b32 v24, 0xffff0000, v24")
    A(f"v_max_f32_dpp v26, v24, v24 quad_perm:[1,0,3,2] {DPP}")
    A(f"v_max_f32_dpp v26, v26, v26 quad_perm:[2,3,0,1] {DPP}")
    rowsall("v_max_f32", 26, 27)
    A("v_sub_f32 v24, v24, v26")
    A(f"v_mul_f32 v24, {hex(LOG2E)}, v24")
    A("v_exp_f32 v24, v24")
    A("v_mul_f32 v25, v24, v25")
    for e in range(4): A(f"v_mul_f32_dpp v{28+e}, v24, v{KB+e} quad_perm:[0,0,0,0] {DPP}")
    A(f"v_add_f32_dpp v25, v25, v25 quad_perm:[1,0,3,2] {DPP}")
    for e in range(4): A(f"v_fmac_f32_dpp v{28+e}, v24, v{KB+4+e} quad_perm:[1,1,1,1] {DPP}")
    A(f"v_add_f32_dpp v25, v25, v25 quad_perm:[2,3,0,1] {DPP}")
    for a in (2, 3):
        for e in range(4): A(f"v_fmac_f32_dpp v{28+e}, v24, v{KB+4*a+e} quad_perm:[{a},{a},{a},{a}] {DPP}")
    rowsall("v_add_f32", 25, 27)
    redscat([28])
    A("v_rcp_f32 v25, v25")
    A("v_mul_f32 v28, v28, v25")
    A(f"v_mov_b32_dpp v29, v28 row_ror:8 {DPP}")
    A("v_cvt_pk_bf16_f32 v28, v28, v29")
    for n in range(8):
        sparse8(28, n, KB + 4 * n, 30 + (n & 1))
        mfma(OA, KB + 4 * n, T1B + 4 * n, n == 0)
    A(f"s_mul_i32 s97, s{sG}, 2304"); A(f"s_lshl_b32 s70, s{sJ}, 8"); A("s_add_u32 s97, s97, s70"); A(f"s_add_u32 s97, s97, {AP}")
    A("L_comb:")
    A(f"v_lshlrev_b32 v3, 5, v{vI}")
    A(f"v_lshl_add_u32 v3, v{vG}, 4, v3")
    A(f"ds_write_b128 v19, {r4(OA)} offset:{L_WB}")
    ldssignal(CNT_W, 26, 27, rtn=True)
    A(f"s_cmp_lg_u32 s{sT}, 3"); A("s_cbranch_scc1 L_m_end")
    for w in range(4): A(f"ds_read_b128 {r4(KB+4*w)}, v20 offset:{L_WB+1024*w}")
    A("s_waitcnt lgkmcnt(0)")
    addgran(KB, KB + 4); addgran(KB + 8, KB + 12); addgran(KB, KB + 8)
    halfadd(KB, KB + 4)
    A(f"s_cmp_eq_u32 s{sCLS}, 0"); A("s_cbranch_scc1 L_comb_st")
    for e in range(4): bf16r(KB + e, KB + e)
    A("L_comb_st:")
    tag4(KB)
    A("s_mov_b64 exec, 0x00ff00ff")
    A(f"buffer_store_dwordx4 {r4(KB)}, v3, {srd(R_WS)}, s97 offen sc1")
    A("L_m_end:")
    stamp(8)
    endwave()

    A("L_mphase:")
    stamp(7)
    A(f"v_lshl_add_u32 v14, v{vI}, 2, v{vG}")
    A(f"s_lshl_b32 s70, s3, 6")
    A(f"v_add_u32 v15, s70, v14")
    A(f"v_lshlrev_b32 v3, 1, v15")
    A(f"global_load_short_d16_hi v24, v3, {sp(sX)}")
    A(f"v_lshlrev_b32 v3, 1, v14")
    A(f"global_load_short_d16_hi v25, v3, {sp(sX)} offset:1024")
    A(f"s_lshl_b32 s70, s{sBLK}, 7")
    A(f"v_add_u32 v3, s70, v3")
    A(f"global_load_short_d16_hi v23, v3, {sp(sB1)}")
    A(f"v_lshlrev_b32 v15, 2, v15")
    A(f"v_mul_u32_u24 v3, 2304, v{vG}")
    A(f"v_lshl_add_u32 v3, v{vI}, 4, v3")
    A(f"s_lshl_b32 s70, s3, 8"); A(f"s_add_u32 s44, s70, {AP}")
    for a in range(1, 4): A(f"s_add_u32 s{44+a}, s44, {9216*a}")
    A(f"s_mov_b32 s48, {MB}"); A(f"s_mov_b32 s49, {MB+4608}")
    A(f"v_lshlrev_b32 v18, 5, v{vL}")
    A(f"v_lshlrev_b32 v19, 2, v{vL}")
    A(f"v_min_u32 v20, 8, v{vI}")
    A(f"v_lshl_add_u32 v20, v20, 3, v{vG}")
    A(f"s_mul_i32 s70, s3, 72")
    A(f"v_add_lshl_u32 v20, v20, s70, 2")
    A(f"v_lshrrev_b32 v21, 1, v{vG}")
    A(f"s_lshl_b32 s70, s3, 1")
    A(f"v_add_lshl_u32 v21, v21, s70, 8")
    A(f"v_and_b32 v22, 7, v{vI}")
    A(f"v_lshl_add_u32 v21, v22, 5, v21")
    A(f"v_and_b32 v22, 1, v{vG}")
    A(f"v_lshl_add_u32 v21, v22, 4, v21")
    A(f"v_lshlrev_b32 v22, 2, v14")
    if p.XW < 63: A(f"s_waitcnt vmcnt({p.XW})")
    def blockstep(G, ga, xr):
        addgran(G, G + 4); addgran(G + 8, G + 12); addgran(G, G + 8)
        redscat([G])
        for e in range(3): A(f"v_and_b32 v{ga+e}, 0xffff0000, v{ga+e}")
        bf16r(G, G)
        A(f"v_add_f32 v{ga+2}, 1.0, v{ga+2}")
        A(f"v_mul_f32 v{G}, v{G}, v{ga}")
        bf16r(ga + 2, ga + 2)
        bf16r(G, G)
        A(f"v_add_f32 v{G}, v{G}, v{xr}")
        bf16r(G, G)
    def mloads(G, ga, off):
        return ([f"buffer_load_dwordx4 {r4(G+4*a)}, v3, {srd(R_WS)}, s{44+a} offen offset:{off} sc1" for a in range(4)] +
                [f"buffer_load_dword v{ga}, v15, {srd(R_WS)}, s48 offen offset:{off} sc1",
                 f"buffer_load_dword v{ga+1}, v15, {srd(R_WS)}, s48 offen offset:{off+2304 if off+2304 < 4096 else 0} sc1" if off == 0 else
                 f"buffer_load_dword v{ga+1}, v15, {srd(R_WS)}, s50 offen sc1",
                 f"buffer_load_dword v{ga+2}, v15, {srd(R_WS)}, s49 offen offset:{off} sc1"])
    A("s_cmp_eq_u32 s3, 0"); A("s_cbranch_scc1 L_mp0")
    poll(mloads(40, 26, 0), [40, 44, 48, 52], [26, 27, 28], 72)
    stamp(8)
    blockstep(40, 26, 24)
    A("s_branch L_mp1")
    A("L_mp0:")
    A(f"s_mov_b32 s50, {MB+2304+2048}")
    poll(mloads(40, 26, 0) + mloads(56, 29, 2048), [40, 44, 48, 52, 56, 60, 64, 68], [26, 27, 28, 29, 30, 31], 72)
    stamp(8)
    blockstep(56, 29, 25)
    A(f"ds_write_b32 v15, v56 offset:{L_X2+2048}")
    A(f"ds_write_b32 v15, v31 offset:{L_AA+2048}")
    A(f"ds_write_b32 v15, v30 offset:{L_SS+2048}")
    blockstep(40, 26, 24)
    A("L_mp1:")
    A(f"ds_write_b32 v15, v40 offset:{L_X2}")
    A(f"ds_write_b32 v15, v28 offset:{L_AA}")
    A(f"ds_write_b32 v15, v27 offset:{L_SS}")
    A("s_waitcnt lgkmcnt(0)")
    A("s_barrier")
    XR, AR, SR_ = 40, 52, 64
    for base, off in ((XR, L_X2), (AR, L_AA), (SR_, L_SS)):
        A(f"ds_read_b128 {r4(base)}, v18 offset:{off}")
        A(f"ds_read_b128 {r4(base+4)}, v18 offset:{off+16}")
        A(f"ds_read_b32 v{base+8}, v19 offset:{off+2048}")
    A(f"v_add_u32 v20, {L_X2}, v20")
    A(f"ds_read2_b32 v[76:77], v20 offset0:0 offset1:4")
    A(f"v_add_u32 v20, 2304, v20")
    A(f"ds_read2_b32 v[78:79], v20 offset0:0 offset1:4")
    A(f"v_add_u32 v20, 2304, v20")
    A(f"ds_read2_b32 v[80:81], v20 offset0:0 offset1:4")
    A("s_waitcnt lgkmcnt(9)")
    def lnstats(X, own):
        A(f"v_readfirstlane_b32 s70, v{X}")
        for k in range(4): A(f"v_pk_add_f32 {r2(X+2*k)}, {r2(X+2*k)}, s[70:71] op_sel_hi:[1,0] neg_lo:[0,1] neg_hi:[0,1]")
        A(f"v_subrev_f32 v{X+8}, s70, v{X+8}")
        A(f"v_pk_add_f32 v[82:83], {r2(X)}, {r2(X+2)}")
        A(f"v_pk_mul_f32 v[84:85], {r2(X)}, {r2(X)}")
        A(f"v_pk_add_f32 v[82:83], v[82:83], {r2(X+4)}")
        A(f"v_pk_fma_f32 v[84:85], {r2(X+2)}, {r2(X+2)}, v[84:85]")
        A(f"v_pk_add_f32 v[82:83], v[82:83], {r2(X+6)}")
        A(f"v_pk_fma_f32 v[84:85], {r2(X+4)}, {r2(X+4)}, v[84:85]")
        A(f"v_add_f32 v82, v82, v{X+8}")
        A(f"v_pk_fma_f32 v[84:85], {r2(X+6)}, {r2(X+6)}, v[84:85]")
        A(f"v_add_f32 v82, v82, v83")
        A(f"v_fmac_f32 v84, v{X+8}, v{X+8}")
        A(f"v_add_f32 v84, v84, v85")
        wavesum([82, 84], [83, 85])
        A(f"v_mul_f32 v82, {hex(0x3ae38e39)}, v82")
        A(f"v_mul_f32 v84, {hex(0x3ae38e39)}, v84")
        A(f"v_fma_f32 v84, -v82, v82, v84")
        A(f"v_max_f32 v84, 0, v84")
        A(f"v_add_f32 v84, {hex(0x3727c5ac)}, v84")
        A(f"v_rsq_f32 v84, v84")
        A(f"v_add_f32 v83, s70, v82")
    lnstats(XR, 76)
    A("s_waitcnt lgkmcnt(0)")
    for k in range(4): A(f"v_pk_add_f32 {r2(XR+2*k)}, {r2(XR+2*k)}, v[82:83] op_sel_hi:[1,0] neg_lo:[0,1] neg_hi:[0,1]")
    A(f"v_sub_f32 v{XR+8}, v{XR+8}, v82")
    A(f"v_pk_add_f32 v[76:77], v[76:77], v[82:83] op_sel:[0,1] op_sel_hi:[1,1] neg_lo:[0,1] neg_hi:[0,1]")
    for k in range(4): A(f"v_pk_mul_f32 {r2(AR+2*k)}, {r2(AR+2*k)}, v[84:85] op_sel_hi:[1,0]")
    A(f"v_mul_f32 v{AR+8}, v{AR+8}, v84")
    A(f"v_pk_mul_f32 v[78:79], v[78:79], v[84:85] op_sel_hi:[1,0]")
    for k in range(4): A(f"v_pk_fma_f32 {r2(XR+2*k)}, {r2(XR+2*k)}, {r2(AR+2*k)}, {r2(SR_+2*k)}")
    A(f"v_fma_f32 v{XR+8}, v{XR+8}, v{AR+8}, v{SR_+8}")
    A(f"v_pk_fma_f32 v[76:77], v[76:77], v[78:79], v[80:81]")
    lnstats(XR, 76)
    A(f"v_pk_add_f32 v[76:77], v[76:77], v[82:83] op_sel:[0,1] op_sel_hi:[1,1] neg_lo:[0,1] neg_hi:[0,1]")
    A(f"v_pk_mul_f32 v[76:77], v[76:77], v[84:85] op_sel_hi:[1,0]")
    A("v_cvt_pk_bf16_f32 v76, v76, v77")
    for n in range(9):
        sparse8(76, n, 40 + 4 * n, 78 + (n & 1))
        mfma(OA, 40 + 4 * n, T2B + 4 * n, n == 0)
    A("s_mov_b32 exec_lo, 0x00ff00ff"); A("s_mov_b32 exec_hi, 0xff00ff00")
    A(f"ds_write_b128 v21, {r4(OA)} offset:{L_H1}")
    A("s_mov_b64 exec, -1")
    A(f"v_add_u32 v22, {L_H1}, v22")
    A("s_waitcnt lgkmcnt(0)")
    A("s_barrier")
    stamp(9)
    for k in range(8): A(f"ds_read2st64_b32 {r2(40+2*k)}, v22 offset0:{2*k} offset1:{2*k+1}")
    A("s_waitcnt lgkmcnt(4)")
    A("v_pk_add_f32 v[40:41], v[40:41], v[42:43]"); A("v_pk_add_f32 v[44:45], v[44:45], v[46:47]")
    A("s_waitcnt lgkmcnt(0)")
    A("v_pk_add_f32 v[48:49], v[48:49], v[50:51]"); A("v_pk_add_f32 v[52:53], v[52:53], v[54:55]")
    A("v_pk_add_f32 v[40:41], v[40:41], v[44:45]"); A("v_pk_add_f32 v[48:49], v[48:49], v[52:53]")
    A("v_pk_add_f32 v[40:41], v[40:41], v[48:49]")
    A("v_add_f32 v40, v40, v41")
    bf16r(40, 40)
    A("v_add_f32 v40, v40, v23")
    bf16r(40, 40)
    import struct, math
    f2h = lambda f: hex(struct.unpack("<I", struct.pack("<f", f))[0])
    c0 = -2.0 * math.sqrt(2.0 / math.pi) * math.log2(math.e)
    A("v_mul_f32 v41, v40, v40")
    A(f"v_mov_b32 v42, {f2h(c0)}")
    A(f"v_fmac_f32 v42, {f2h(c0*0.044715)}, v41")
    A("v_mul_f32 v41, v42, v40")
    A("v_exp_f32 v41, v41")
    A("v_add_f32 v41, 1.0, v41")
    A("v_rcp_f32 v41, v41")
    A("v_mul_f32 v40, v40, v41")
    A(f"v_mov_b32_dpp v41, v40 row_ror:8 {DPP}")
    A("v_cvt_pk_bf16_f32 v76, v40, v41")
    A(f"s_mul_i32 s97, s{sBLK}, 2304"); A("s_lshl_b32 s70, s3, 8"); A("s_add_u32 s97, s97, s70"); A(f"s_add_u32 s97, s97, {FP}")
    A(f"v_lshlrev_b32 v3, 5, v{vI}")
    A(f"v_lshl_add_u32 v3, v{vG}, 4, v3")
    A("s_cmp_eq_u32 s3, 0"); A("s_cbranch_scc1 L_w2_0")
    for n in range(8):
        sparse8(76, n, 40 + 4 * n, 78 + (n & 1))
        mfma(OA, 40 + 4 * n, T1B + 4 * n, n == 0)
    A("s_branch L_w2_1")
    A("L_w2_0:")
    for n in range(8):
        sparse8(76, n, 40 + 4 * n, 78 + (n & 1))
        mfma(OA, 40 + 4 * n, T1B + 4 * n, n == 0)
        mfma(OA + 4, 40 + 4 * n, X2B + 4 * n, n == 0)
    halfadd(OA + 4, 84)
    tag4(OA + 4)
    A("s_mov_b64 exec, 0x00ff00ff")
    A(f"buffer_store_dwordx4 {r4(OA+4)}, v3, {srd(R_WS)}, s97 offen offset:2048 sc1")
    A("s_mov_b64 exec, -1")
    A("L_w2_1:")
    A("s_nop 7")
    halfadd(OA, 80)
    tag4(OA)
    A("s_mov_b64 exec, 0x00ff00ff")
    A(f"buffer_store_dwordx4 {r4(OA)}, v3, {srd(R_WS)}, s97 offen sc1")
    stamp(10)
    endwave()
    A("L_exit:")
    A("s_endpgm")
    A('.section .rodata,"a"')
    A(".p2align 6")
    A(f".amdhsa_kernel {KN}")
    A(".amdhsa_next_free_vgpr 248")
    A(".amdhsa_next_free_sgpr 102")
    A(".amdhsa_accum_offset 248")
    A(".amdhsa_group_segment_fixed_size 0")
    A(".amdhsa_kernarg_size 120")
    A(".amdhsa_user_sgpr_count 2")
    A(".amdhsa_user_sgpr_kernarg_segment_ptr 1")
    A(".amdhsa_system_sgpr_workgroup_id_x 1")
    A(".amdhsa_float_denorm_mode_32 3")
    A(".end_amdhsa_kernel")
    return A.text().replace(".ASMLAUNCH @", "; @")

if __name__ == "__main__":
    kw = eval("dict(" + (sys.argv[2] if len(sys.argv) > 2 else "") + ")")
    open(sys.argv[1], "w").write(gen(**kw))
```

```python
import sys
sys.path.insert(0, "work")
from asmlib import Asm

KN = "adaLN_cond__sliding_block_cached__mixer_channel_mlp__decode_kernel"

EPOCH = 0
MA = 0x1000
MB = 0xA000
AP = 0xD000
FP = 0x16000
QP = 0x40000
OP = 0x80000
WSREC = 0x100000
DBG = 0x100000

CNT_Q, CNT_MAX, CNT_L, CNT_O, CNT_W = 0, 4, 8, 12, 16
L_MAX = 64
L_LB = 96
L_Q = 128
L_OB = 1024
L_WB = 5120
L_X2 = 9216
L_AA = 11520
L_SS = 13824
L_H1 = 16128
LDS_BYTES = 20480

DPP = "row_mask:0xf bank_mask:0xf"
LOG2E = 0x3fb8aa3b

class P:
    D = 8
    PRE = 2
    D2 = 10
    DC = 5
    XW = 63
    stamps = 0
    preread = 0
    limit = 20000
    nt = "nt"
    prio = 1
    rot = 1
    dbg = 0
    xdelay = 0

def gen(**kw):
    p = P()
    for k, v in kw.items():
        assert hasattr(p, k), k
        setattr(p, k, v)
    A = Asm()
    nt = p.nt
    sX, sK, sV, sWQ, sWO, sW1, sB1, sW2, sB2, sC, sWM, sOUT, sWS = 16, 18, 20, 22, 24, 28, 30, 32, 34, 36, 38, 40, 42
    sG, sJ, sCLS, sBLK = 4, 5, 6, 7
    sTAG = 8
    sSEL = 12
    R_A, R_B, R_T1, R_T2, R_WS = 44, 48, 52, 56, 60
    sST1, sST2 = 64, 65
    sO1, sO2 = 66, 67
    sCNT = 68
    sT = 69
    vL, vG, vI = 0, 1, 2
    vMASK, vSEL, vTAG, vTG = 4, 8, 12, 13
    def r4(b): return f"v[{b}:{b+3}]"
    def r2(b): return f"v[{b}:{b+1}]"
    def srd(b): return f"s[{b}:{b+3}]"
    def sp(b): return f"s[{b}:{b+1}]"
    def stamp(k):
        if p.stamps: A(f"s_memrealtime s[{72+2*k}:{73+2*k}]")
    def endwave():
        if p.stamps:
            A("s_mov_b64 exec, -1")
            A("s_waitcnt lgkmcnt(0)")
            A(f"s_lshl_b32 s{sT}, s2, 3")
            A(f"s_add_u32 s{sT}, s{sT}, s3")
            A(f"s_lshl_b32 s{sT}, s{sT}, 6")
            A(f"s_add_u32 s{sT}, s{sT}, {DBG}")
            A(f"v_mov_b32 v14, s{sT}")
            A("s_mov_b64 exec, 1")
            for k in range(0, 12, 4):
                for e in range(4): A(f"v_mov_b32 v{16+e}, s{72+2*(k+e)}")
                A(f"global_store_dwordx4 v14, v[16:19], {sp(sWS)} offset:{4*k}")
            A("s_waitcnt vmcnt(0)")
        A("s_endpgm")
    def set_srd(r, lo_expr_s, ptr, rec):
        A(f"s_add_u32 s{r}, s{ptr}, s{lo_expr_s}")
        A(f"s_addc_u32 s{r+1}, s{ptr+1}, 0")
        A(f"s_mov_b32 s{r+2}, {rec}")
        A(f"s_mov_b32 s{r+3}, 0x20000")
    def bf16r(d, s, t=None):
        t = d if t is None else t
        A(f"v_cvt_pk_bf16_f32 v{t}, v{s}, v{s}")
        A(f"v_lshlrev_b32 v{d}, 16, v{t}")
    def rowsall(op, v, t):
        A(f"v_mov_b32 v{t}, v{v}")
        A(f"v_permlane32_swap_b32 v{v}, v{t}")
        A(f"{op} v{v}, v{v}, v{t}")
        A(f"v_mov_b32 v{t}, v{v}")
        A(f"v_permlane16_swap_b32 v{v}, v{t}")
        A(f"{op} v{v}, v{v}, v{t}")
    def wavesum(vs, ts):
        for ctl in ("quad_perm:[1,0,3,2]", "quad_perm:[2,3,0,1]", "row_half_mirror", "row_mirror"):
            for v in vs: A(f"v_add_f32_dpp v{v}, v{v}, v{v} {ctl} {DPP}")
        for sw in ("v_permlane32_swap_b32", "v_permlane16_swap_b32"):
            for v, t in zip(vs, ts): A(f"v_mov_b32 v{t}, v{v}")
            for v, t in zip(vs, ts): A(f"{sw} v{v}, v{t}")
            for v, t in zip(vs, ts): A(f"v_add_f32 v{v}, v{v}, v{t}")
    def redscat(bs):
        for b in bs:
            A(f"v_permlane32_swap_b32 v{b}, v{b+2}")
            A(f"v_permlane32_swap_b32 v{b+1}, v{b+3}")
        for b in bs:
            A(f"v_add_f32 v{b}, v{b}, v{b+2}")
            A(f"v_add_f32 v{b+1}, v{b+1}, v{b+3}")
        for b in bs: A(f"v_permlane16_swap_b32 v{b}, v{b+1}")
        for b in bs: A(f"v_add_f32 v{b}, v{b}, v{b+1}")
    def addgran(d, s):
        A(f"v_pk_add_f32 {r2(d)}, {r2(d)}, {r2(s)}")
        A(f"v_pk_add_f32 {r2(d+2)}, {r2(d+2)}, {r2(s+2)}")
    def tag4(b):
        for e in range(4): A(f"v_perm_b32 v{b+e}, v{b+e}, v{vTAG}, s{sSEL+e}")
    def halfadd(b, t):
        for e in range(4): A(f"v_mov_b32 v{t+e}, v{b+e}")
        for e in range(4): A(f"v_permlane32_swap_b32 v{b+e}, v{t+e}")
        for e in range(4): A(f"v_add_f32_dpp v{b+e}, v{t+e}, v{b+e} row_ror:8 {DPP}")
    def poll(loads, grans, dws, acc):
        L = A.label("poll"); Ld = A.label("pd")
        A(f"s_mov_b32 s{sCNT}, {p.limit}")
        A(f"{L}:")
        for l in loads: A(l)
        A("s_waitcnt vmcnt(0)")
        first = True
        for b in grans:
            for e in range(4):
                if first: A(f"v_xor_b32 v{acc}, s{sTAG+e}, v{b+e}"); first = False
                else: A(f"v_bitop3_b32 v{acc}, v{b+e}, s{sTAG+e}, v{acc} bitop3:0xbe")
        for d in dws:
            A(f"v_bitop3_b32 v{acc}, v{d}, v{vTG}, v{acc} bitop3:0xbe")
        A(f"v_and_b32 v{acc}, 0xff, v{acc}")
        A(f"v_cmp_ne_u32 vcc, 0, v{acc}")
        A(f"s_cbranch_vccz {Ld}")
        A(f"s_sub_u32 s{sCNT}, s{sCNT}, 1")
        A(f"s_cbranch_scc0 {L}")
        A(f"{Ld}:")
    def ldswait(off, target, t, ta):
        L = A.label("lw"); Ld = A.label("lwd")
        A(f"v_mov_b32 v{ta}, 0")
        A(f"s_mov_b32 s{sCNT}, {p.limit*40}")
        A(f"{L}:")
        A(f"ds_read_b32 v{t}, v{ta} offset:{off}")
        A("s_waitcnt lgkmcnt(0)")
        A(f"v_readfirstlane_b32 s{sT}, v{t}")
        A(f"s_cmp_ge_u32 s{sT}, {target}")
        A(f"s_cbranch_scc1 {Ld}")
        A(f"s_sub_u32 s{sCNT}, s{sCNT}, 1")
        A(f"s_cbranch_scc0 {L}")
        A(f"{Ld}:")
    def ldssignal(off, t, ta, rtn=False):
        A(f"v_mov_b32 v{ta}, 0")
        A(f"v_mov_b32 v{t}, 1")
        A("s_waitcnt lgkmcnt(0)")
        A("s_mov_b64 exec, 1")
        if rtn:
            A(f"ds_add_rtn_u32 v{t}, v{ta}, v{t} offset:{off}")
            A("s_waitcnt lgkmcnt(0)")
            A(f"v_readfirstlane_b32 s{sT}, v{t}")
        else:
            A(f"ds_add_u32 v{ta}, v{t} offset:{off}")
        A("s_mov_b64 exec, -1")
    def consts():
        A(f"v_and_b32 v3, 1, v{vI}")
        A(f"v_lshlrev_b32 v3, 4, v3")
        A(f"v_mov_b32 v{vSEL}, 0xffff")
        A(f"v_lshlrev_b32 v3, v3, v{vSEL}")
        A(f"v_bfe_u32 v{vSEL}, v{vI}, 1, 2")
        for d in range(4):
            A(f"v_cmp_eq_u32 vcc, {d}, v{vSEL}")
            A(f"v_cndmask_b32 v{vMASK+d}, 0, v3, vcc")
        A(f"v_lshrrev_b32 v3, 3, v{vI}")
        A(f"s_mov_b32 s{sT}, 0x02020202")
        A(f"v_mul_lo_u32 v3, v3, s{sT}")
        A(f"v_add_u32 v3, 0x01000100, v3")
        A(f"s_mov_b32 s{sT}, 0x0c0c0c0c")
        for d in range(4):
            A(f"v_bfi_b32 v{vSEL+d}, v{vMASK+d}, v3, s{sT}")
    def tagsetup():
        A("s_waitcnt lgkmcnt(0)")
        A(f"s_mul_i32 s{sT}, s{sTAG}, 0x9E3779B1")
        A(f"s_add_u32 s{sT}, s{sT}, 0x7F4A7C15")
        A(f"s_or_b32 s{sT}, s{sT}, 0x01010101")
        A(f"s_xor_b32 s{sTAG}, s{sTAG}, s{sT}")
        for e in range(1, 4): A(f"s_lshr_b32 s{sTAG+e}, s{sTAG}, {8*e}")
        for e in range(4): A(f"s_mov_b32 s{sSEL+e}, {hex(0x07060500 + e)}")
        A(f"v_mov_b32 v{vTAG}, s{sTAG}")
        A(f"v_lshlrev_b32 v{vTG}, 3, v{vG}")
        A(f"v_lshrrev_b32 v{vTG}, v{vTG}, v{vTAG}")
    def silu(regs, tmps):
        for v, t in zip(regs, tmps): A(f"v_mul_f32 v{t}, 0xbfb8aa3b, v{v}")
        for v, t in zip(regs, tmps): A(f"v_exp_f32 v{t}, v{t}")
        for v, t in zip(regs, tmps): A(f"v_add_f32 v{t}, 1.0, v{t}")
        for v, t in zip(regs, tmps): A(f"v_rcp_f32 v{t}, v{t}")
        for v, t in zip(regs, tmps): A(f"v_mul_f32 v{v}, v{v}, v{t}")
    def sparse8(sr, n, dst, t):
        A(f"v_mov_b32_dpp v{t}, v{sr} row_newbcast:{n} {DPP}")
        for d in range(4): A(f"v_perm_b32 v{dst+d}, v{t}, v{t}, v{vSEL+d}")
    def mfma(d, a, b, first):
        A(f"v_mfma_f32_16x16x32_bf16 {r4(d)}, {r4(a)}, {r4(b)}, {'0' if first else r4(d)}")
    vT1, vT2 = 16, 17
    T1B, T2B = 168, 200
    def tail_setup():
        LM, LB_, LN, LE = A.label("tM"), A.label("tB"), A.label("tN"), A.label("tE")
        sSA, sHA, sSB, sHB = sO1, sO2, 70, 71
        A(f"s_cmp_eq_u32 s{sCLS}, 1"); A(f"s_cbranch_scc1 {LM}")
        A(f"s_cmp_eq_u32 s{sCLS}, 2"); A(f"s_cbranch_scc1 {LB_}")
        A(f"s_lshl_b32 s{sT}, s{sG}, 2")
        A(f"s_add_u32 s{sT}, s{sT}, s3")
        A(f"s_sub_u32 s{sT}, s{sT}, 4")
        A(f"s_mul_i32 s{sT}, s{sT}, {64*1152}")
        A(f"s_lshl_b32 s{sST1}, s{sJ}, 7")
        A(f"s_add_u32 s{sT}, s{sT}, s{sST1}")
        set_srd(R_T1, sT, sWO, 64 * 1152)
        A(f"s_cmp_eq_u32 s{sCLS}, 0")
        A(f"s_cselect_b32 s{R_T1+2}, s{R_T1+2}, 0")
        A(f"s_mov_b64 {sp(R_T2)}, {sp(R_T1)}")
        A(f"s_mov_b32 s{R_T2+2}, 0")
        A(f"s_mov_b32 s{R_T2+3}, 0x20000")
        A(f"s_mov_b32 s{sST1}, 4608"); A(f"s_mov_b32 s{sST2}, 0")
        A(f"s_mov_b32 s{sSA}, 1152"); A(f"s_mov_b32 s{sHA}, {32*1152}")
        A(f"s_mov_b32 s{sSB}, 0"); A(f"s_mov_b32 s{sHB}, 0")
        A(f"s_branch {LE}")
        A(f"{LM}:")
        A(f"s_mul_i32 s{sT}, s{sBLK}, {64*1152}")
        A(f"s_lshl_b32 s{sST1}, s3, 7")
        A(f"s_add_u32 s{sT}, s{sT}, s{sST1}")
        set_srd(R_T1, sT, sW2, 64 * 1152)
        A(f"s_mul_i32 s{sT}, s3, {72*9216}")
        A(f"s_lshl_b32 s{sST1}, s{sBLK}, 7")
        A(f"s_add_u32 s{sT}, s{sT}, s{sST1}")
        set_srd(R_T2, sT, sW1, 72 * 9216)
        A(f"s_mov_b32 s{sST1}, 4608"); A(f"s_mov_b32 s{sST2}, {8*9216}")
        A(f"s_mov_b32 s{sSA}, 1152"); A(f"s_mov_b32 s{sHA}, {32*1152}")
        A(f"s_mov_b32 s{sSB}, 9216"); A(f"s_mov_b32 s{sHB}, {4*9216}")
        A(f"s_branch {LE}")
        A(f"{LB_}:")
        A(f"s_sub_u32 s{sT}, s3, 4")
        A(f"s_mul_i32 s{sT}, s{sT}, {144*6912}")
        A(f"s_lshl_b32 s{sST1}, s{sBLK}, 7")
        A(f"s_add_u32 s{sT}, s{sT}, s{sST1}")
        A(f"s_add_u32 s{sT}, s{sT}, 2304")
        set_srd(R_T1, sT, sWM, 64 * 6912)
        A(f"s_add_u32 s{sT}, s{sT}, {64*6912}")
        set_srd(R_T2, sT, sWM, 80 * 6912)
        A(f"s_mov_b32 s{sST1}, {8*6912}"); A(f"s_mov_b32 s{sST2}, {8*6912}")
        A(f"s_mov_b32 s{sSA}, 6912"); A(f"s_mov_b32 s{sHA}, {4*6912}")
        A(f"s_mov_b32 s{sSB}, 6912"); A(f"s_mov_b32 s{sHB}, {4*6912}")
        A(f"{LE}:")
        A(f"v_and_b32 v3, 7, v{vI}")
        A(f"v_lshlrev_b32 v3, 4, v3")
        A(f"v_lshrrev_b32 v18, 3, v{vI}")
        A(f"v_mad_u32_u24 v{vT1}, v{vG}, s{sSA}, v3")
        A(f"v_mad_u32_u24 v{vT1}, v18, s{sHA}, v{vT1}")
        A(f"v_mad_u32_u24 v{vT2}, v{vG}, s{sSB}, v3")
        A(f"v_mad_u32_u24 v{vT2}, v18, s{sHB}, v{vT2}")
        A(f"s_mov_b32 s{sO1}, 0"); A(f"s_mov_b32 s{sO2}, 0")
    def tail_load(k):
        if k < 8:
            A(f"buffer_load_dwordx4 {r4(T1B+4*k)}, v{vT1}, {srd(R_T1)}, s{sO1} offen {nt}")
            A(f"s_add_u32 s{sO1}, s{sO1}, s{sST1}")
        else:
            A(f"buffer_load_dwordx4 {r4(T2B+4*(k-8))}, v{vT2}, {srd(R_T2)}, s{sO2} offen {nt}")
            A(f"s_add_u32 s{sO2}, s{sO2}, s{sST2}")

    A(f"; @launch grid=(256,1,1) block=(512,1,1) lds={LDS_BYTES}".replace("; @", ".ASMLAUNCH @"))
    A('.amdgcn_target "amdgcn-amd-amdhsa--gfx950"')
    A(".text")
    A(f".globl {KN}")
    A(".p2align 8")
    A(f".type {KN},@function")
    A(f"{KN}:")
    stamp(0)
    if p.dbg: A("s_memrealtime s[98:99]")
    if p.stamps:
        for k in range(1, 12): A(f"s_mov_b32 s{72+2*k}, 0")
    A("s_cmp_ge_u32 s2, 256")
    A("s_cbranch_scc1 L_exit")
    A("s_load_dwordx16 s[16:31], s[0:1], 0")
    A("s_load_dwordx8 s[32:39], s[0:1], 64")
    A(f"s_load_dwordx2 {sp(sOUT)}, s[0:1], 96")
    A(f"s_load_dwordx2 {sp(sWS)}, s[0:1], 112")
    A("v_lshrrev_b32 v1, 6, v0")
    A("v_and_b32 v0, 63, v0")
    A("v_readfirstlane_b32 s3, v1")
    A(f"v_lshrrev_b32 v{vG}, 4, v{vL}")
    A(f"v_and_b32 v{vI}, 15, v{vL}")
    A(f"s_and_b32 s{sG}, s2, 7")
    A(f"s_lshl_b32 s{sG}, s{sG}, 1")
    A(f"s_bfe_u32 s{sT}, s2, 0x10003")
    A(f"s_add_u32 s{sG}, s{sG}, s{sT}")
    A(f"s_lshr_b32 s{sJ}, s2, 4")
    Lc = A.label("cls")
    A(f"s_mov_b32 s{sCLS}, 0"); A(f"s_mov_b32 s{sBLK}, s{sJ}")
    A(f"s_cmp_lt_u32 s{sJ}, 9"); A(f"s_cbranch_scc1 {Lc}")
    A(f"s_mov_b32 s{sCLS}, 1")
    A(f"s_sub_u32 s{sT}, s{sJ}, 9"); A(f"s_lshl_b32 s{sBLK}, s{sT}, 4"); A(f"s_add_u32 s{sBLK}, s{sBLK}, s{sG}")
    A(f"s_cmp_lt_u32 s{sJ}, 13"); A(f"s_cbranch_scc1 {Lc}")
    A(f"s_mov_b32 s{sCLS}, 2")
    A(f"s_sub_u32 s{sBLK}, s{sBLK}, 72")
    A(f"s_cmp_ge_u32 s{sBLK}, 36"); A(f"s_cselect_b32 s{sCLS}, 3, 2")
    A(f"s_cmp_lg_u32 s{sJ}, 13"); A(f"s_cbranch_scc1 {Lc}")
    A(f"s_lshr_b32 s{sBLK}, s{sG}, 1")
    A(f"s_mov_b32 s{sCLS}, 2")
    A(f"s_bitcmp1_b32 s{sG}, 0"); A(f"s_cbranch_scc1 {Lc}")
    A(f"s_mov_b32 s{sCLS}, 1"); A(f"s_add_u32 s{sBLK}, s{sBLK}, 64")
    A(f"{Lc}:")
    A("s_waitcnt lgkmcnt(0)")
    A(f"s_mov_b64 {sp(R_WS)}, {sp(sWS)}")
    A(f"s_mov_b32 s{R_WS+2}, {WSREC}")
    A(f"s_mov_b32 s{R_WS+3}, 0x20000")
    A("s_cmp_ge_u32 s3, 4")
    A("s_cbranch_scc1 L_main")

    WB = 40
    SB = 80
    if p.prio: A(f"s_setprio {p.prio}")
    A("s_cmp_eq_u32 s3, 3"); A("s_cbranch_scc1 L_c_bar")
    A("s_cmp_lg_u32 s3, 0"); A("s_cbranch_scc1 L_c_wqload")
    for e in range(4): A(f"v_mov_b32 v{20+e}, 0")
    A(f"v_lshlrev_b32 v3, 4, v{vI}")
    A(f"ds_write_b128 v3, v[20:23]")
    A(f"s_cmp_lg_u32 s{sCLS}, 0"); A("s_cbranch_scc1 L_c_bar")
    A(f"s_lshr_b32 s70, s{sG}, 1")
    A(f"s_and_b32 s71, s{sG}, 1"); A(f"s_mul_i32 s71, s71, 9"); A(f"s_add_u32 s71, s71, s{sJ}")
    A(f"v_min_u32 v3, 8, v{vI}")
    A(f"v_lshl_add_u32 v3, v3, 3, v{vG}")
    A(f"s_mul_i32 s{sT}, s70, 72")
    A(f"v_add_lshl_u32 v3, v3, s{sT}, 1")
    A(f"global_load_short_d16_hi v20, v3, {sp(sC)}")
    A(f"global_load_short_d16_hi v21, v3, {sp(sC)} offset:8")
    A(f"s_mul_i32 s{sT}, s70, {72*6912}")
    A(f"s_lshl_b32 s{sO1}, s71, 7")
    A(f"s_add_u32 s{sT}, s{sT}, s{sO1}")
    set_srd(R_A, sT, sWM, 72 * 6912)
    A(f"v_lshrrev_b32 v3, 3, v{vI}")
    A(f"v_lshl_add_u32 v3, v3, 2, v{vG}")
    A(f"v_mul_u32_u24 v3, 6912, v3")
    A(f"v_and_b32 v14, 7, v{vI}")
    A(f"v_lshl_add_u32 v14, v14, 4, v3")
    for n in range(9):
        A(f"s_mov_b32 s{sO1}, {n*8*6912}")
        A(f"buffer_load_dwordx4 {r4(WB+4*n)}, v14, {srd(R_A)}, s{sO1} offen {nt}")
    A("s_branch L_c_bar")
    A("L_c_wqload:")
    A(f"v_lshlrev_b32 v3, 3, v{vL}")
    A(f"global_load_dwordx2 v[20:21], v3, {sp(sX)}")
    A(f"global_load_dwordx2 v[22:23], v3, {sp(sX)} offset:512")
    A(f"v_lshlrev_b32 v3, 3, v{vI}")
    A(f"global_load_dwordx2 v[24:25], v3, {sp(sX)} offset:1024")
    A(f"v_min_u32 v15, 8, v{vI}")
    A(f"v_lshl_add_u32 v3, v15, 2, v{vG}")
    A(f"s_mul_i32 s{sT}, s{sJ}, 36")
    A(f"v_add_lshl_u32 v3, v3, s{sT}, 1")
    A(f"global_load_short_d16_hi v26, v3, {sp(sX)}")
    A(f"s_mul_i32 s{sT}, s{sJ}, {36*8192}")
    A(f"s_lshl_b32 s{sO1}, s{sG}, 9")
    A(f"s_add_u32 s{sT}, s{sT}, s{sO1}")
    A(f"s_sub_u32 s{sO1}, s3, 1"); A(f"s_lshl_b32 s{sO1}, s{sO1}, 8")
    A(f"s_add_u32 s{sT}, s{sT}, s{sO1}")
    set_srd(R_A, sT, sWQ, 36 * 8192)
    A(f"v_lshlrev_b32 v14, 13, v{vG}")
    A(f"v_lshl_add_u32 v14, v{vI}, 4, v14")
    for n in range(9):
        A(f"s_mov_b32 s{sO1}, {n*4*8192}")
        A(f"buffer_load_dwordx4 {r4(WB+4*n)}, v14, {srd(R_A)}, s{sO1} offen {nt}")
    A("L_c_bar:")
    A("s_waitcnt lgkmcnt(0)")
    A("s_barrier")
    A(f"s_load_dword s{sTAG}, {sp(sWS)}, {EPOCH}")
    stamp(1)
    consts()
    tagsetup()
    A("s_cmp_eq_u32 s3, 3"); A("s_cbranch_scc1 L_c_s2")
    A("s_cmp_lg_u32 s3, 0"); A("s_cbranch_scc1 L_c_wq")
    A(f"s_cmp_lg_u32 s{sCLS}, 0"); A("s_cbranch_scc1 L_c_s2")
    A("s_waitcnt vmcnt(9)")
    silu([20, 21], [22, 23])
    A("v_cvt_pk_bf16_f32 v20, v20, v21")
    for n in range(9): sparse8(20, n, SB + 4 * n, 22 + (n & 1))
    for n in range(9):
        A(f"s_waitcnt vmcnt({8-n})")
        mfma(24, SB + 4 * n, WB + 4 * n, n == 0)
    stamp(2)
    A(f"s_mul_i32 s70, s70, 4608"); A(f"s_lshl_b32 s71, s71, 8"); A(f"s_add_u32 s70, s70, s71"); A(f"s_add_u32 s70, s70, {MA}")
    A(f"v_lshlrev_b32 v3, 5, v{vI}")
    A(f"v_lshl_add_u32 v3, v{vG}, 4, v3")
    halfadd(24, 28)
    tag4(24)
    A("s_mov_b64 exec, 0x00ff00ff")
    A(f"buffer_store_dwordx4 v[24:27], v3, {srd(R_WS)}, s70 offen sc1")
    A("s_mov_b64 exec, -1")
    stamp(3)
    A("s_branch L_c_s2")
    A("L_c_wq:")
    A("s_waitcnt vmcnt(9)")
    for k in range(6):
        A(f"v_lshlrev_b32 v{28+2*k}, 16, v{20+k}")
        A(f"v_and_b32 v{29+2*k}, 0xffff0000, v{20+k}")
    A(f"v_cmp_gt_u32 vcc, 16, v{vL}")
    for k in range(8, 12): A(f"v_cndmask_b32 v{28+k}, 0, v{28+k}, vcc")
    A("v_pk_add_f32 v[20:21], v[28:29], v[30:31]")
    for k in range(2, 6): A(f"v_pk_add_f32 v[20:21], v[20:21], {r2(28+2*k)}")
    A("v_add_f32 v20, v20, v21")
    wavesum([20], [21])
    A(f"v_mul_f32 v20, {hex(0x3ae38e39)}, v20")
    for k in range(12): A(f"v_sub_f32 v{28+k}, v{28+k}, v20")
    for k in range(8, 12): A(f"v_cndmask_b32 v{28+k}, 0, v{28+k}, vcc")
    A("v_pk_mul_f32 v[22:23], v[28:29], v[28:29]")
    for k in range(1, 6): A(f"v_pk_fma_f32 v[22:23], {r2(28+2*k)}, {r2(28+2*k)}, v[22:23]")
    A("v_add_f32 v22, v22, v23")
    wavesum([22], [23])
    A(f"v_mul_f32 v22, {hex(0x3ae38e39)}, v22")
    bf16r(20, 20); bf16r(22, 22)
    A(f"v_add_f32 v22, {hex(0x3727c5ac)}, v22")
    bf16r(22, 22)
    A("v_sqrt_f32 v22, v22")
    bf16r(22, 22)
    A("v_sub_f32 v26, v26, v20")
    bf16r(26, 26)
    A("v_rcp_f32 v23, v22")
    A("v_mul_f32 v21, v26, v23")
    A("v_fma_f32 v24, -v21, v22, v26")
    A("v_fma_f32 v21, v24, v23, v21")
    bf16r(26, 21)
    A(f"v_mul_u32_u24 v3, 4608, v{vG}")
    A(f"v_lshl_add_u32 v3, v15, 4, v3")
    A(f"s_mul_i32 s70, s{sJ}, 144"); A(f"s_add_u32 s70, s70, {MA}"); A(f"s_add_u32 s71, s70, 18432")
    G1 = 120
    stamp(2)
    poll([f"buffer_load_dwordx4 {r4(G1+4*a)}, v3, {srd(R_WS)}, s{70+(a&1)} offen offset:{2304*(a>>1)} sc1" for a in range(4)],
         [G1 + 4 * a for a in range(4)], [], 20)
    stamp(3)
    addgran(G1, G1 + 4); addgran(G1 + 8, G1 + 12)
    redscat([G1, G1 + 8])
    bf16r(G1, G1); bf16r(G1 + 8, G1 + 8)
    A(f"v_add_f32 v{G1+8}, 1.0, v{G1+8}")
    bf16r(G1 + 8, G1 + 8)
    A(f"v_mul_f32 v26, v26, v{G1+8}")
    bf16r(26, 26)
    A(f"v_add_f32 v26, v26, v{G1}")
    A("v_cvt_pk_bf16_f32 v26, v26, v26")
    for n in range(9):
        for d in range(4): A(f"v_and_b32_dpp v{SB+4*n+d}, v26, v{vMASK+d} row_newbcast:{n} {DPP}")
        mfma(28, SB + 4 * n, WB + 4 * n, n == 0)
    A(f"s_lshl_b32 s70, s{sG}, 4"); A(f"s_add_u32 s70, s70, s{sJ}"); A(f"s_lshl_b32 s70, s70, 10")
    A(f"s_sub_u32 s71, s3, 1"); A(f"s_lshl_b32 s71, s71, 9"); A("s_add_u32 s70, s70, s71"); A(f"s_add_u32 s70, s70, {QP}")
    A(f"v_lshlrev_b32 v3, 5, v{vI}")
    A(f"v_lshl_add_u32 v3, v{vG}, 4, v3")
    tag4(28)
    A("s_mov_b32 exec_hi, 0")
    A(f"buffer_store_dwordx4 v[28:31], v3, {srd(R_WS)}, s70 offen sc1")
    A("s_mov_b64 exec, -1")
    stamp(4)
    A("L_c_s2:")
    A(f"v_lshlrev_b32 v3, 10, v{vG}")
    A(f"v_lshl_add_u32 v3, v{vI}, 4, v3")
    A(f"s_lshl_b32 s70, s{sG}, 14"); A("s_lshl_b32 s71, s3, 8"); A("s_add_u32 s70, s70, s71"); A(f"s_add_u32 s44, s70, {QP}")
    for a in range(1, 4): A(f"s_add_u32 s{44+a}, s44, {4096*a}")
    poll([f"buffer_load_dwordx4 {r4(G1+4*a)}, v3, {srd(R_WS)}, s{44+a} offen sc1" for a in range(4)],
         [G1 + 4 * a for a in range(4)], [], 20)
    stamp(5)
    addgran(G1, G1 + 4); addgran(G1 + 8, G1 + 12); addgran(G1, G1 + 8)
    redscat([G1])
    A(f"v_cvt_pk_bf16_f32 v20, v{G1}, v{G1}")
    A(f"v_lshl_add_u32 v3, v{vI}, 2, v{vG}")
    A(f"s_lshl_b32 s70, s3, 6")
    A(f"v_add_lshl_u32 v3, v3, s70, 1")
    A(f"ds_write_b16 v3, v20 offset:{L_Q}")
    ldssignal(CNT_Q, 21, 22)
    stamp(6)
    A(f"s_cmp_eq_u32 s{sCLS}, 1"); A("s_cbranch_scc1 L_c_m")
    A("s_cmp_lg_u32 s3, 3"); A("s_cbranch_scc1 L_c_end")
    A(f"s_mov_b32 s{sBLK}, s{sG}")
    A(f"s_cmp_eq_u32 s{sJ}, 8"); A("s_cbranch_scc1 L_red")
    A(f"s_add_u32 s{sBLK}, s{sG}, 16")
    A(f"s_cmp_lg_u32 s{sJ}, 7"); A("s_cbranch_scc1 L_c_end")
    A(f"s_cmp_lt_u32 s{sG}, 2"); A("s_cbranch_scc1 L_red")
    A("L_c_end:")
    endwave()

    A("L_red:")
    A(f"v_and_b32 v14, 7, v{vI}")
    A(f"v_lshl_add_u32 v15, v14, 2, v{vG}")
    A(f"s_lshl_b32 s70, s{sBLK}, 5")
    A(f"v_add_u32 v15, s70, v15")
    A(f"v_lshlrev_b32 v18, 1, v15")
    A(f"global_load_short_d16_hi v24, v18, {sp(sX)}")
    A(f"global_load_short_d16_hi v25, v18, {sp(sB2)}")
    A(f"v_lshlrev_b32 v15, 2, v15")
    A(f"v_lshrrev_b32 v3, 3, v{vL}")
    A(f"v_mul_u32_u24 v3, 2304, v3")
    A(f"v_lshl_add_u32 v3, v14, 4, v3")
    A(f"s_lshl_b32 s70, s{sBLK}, 7")
    A(f"v_add_u32 v3, s70, v3")
    A(f"s_mov_b32 s44, {AP}"); A(f"s_mov_b32 s45, {AP+18432}"); A(f"s_mov_b32 s46, {MB}"); A(f"s_mov_b32 s47, {MB+1728*4}")
    ldswait(CNT_W, 4, 20, 21)
    stamp(7)
    poll([f"buffer_load_dwordx4 {r4(40+4*a)}, v3, {srd(R_WS)}, s{44+a} offen sc1" for a in range(2)] +
         [f"buffer_load_dword v26, v15, {srd(R_WS)}, s46 offen sc1", f"buffer_load_dword v27, v15, {srd(R_WS)}, s47 offen sc1"],
         [40, 44], [26, 27], 20)
    stamp(8)
    addgran(40, 44)
    redscat([40])
    A(f"v_add_f32_dpp v40, v40, v40 row_ror:8 {DPP}")
    A("v_and_b32 v26, 0xffff0000, v26")
    A("v_and_b32 v27, 0xffff0000, v27")
    bf16r(40, 40)
    A("v_mul_f32 v40, v40, v26")
    bf16r(40, 40)
    A("v_add_f32 v24, v24, v40")
    bf16r(24, 24)
    for a in range(9): A(f"s_mov_b32 s{44+a}, {FP+18432*a}")
    poll([f"buffer_load_dwordx4 {r4(40+4*a)}, v3, {srd(R_WS)}, s{44+a} offen sc1" for a in range(9)],
         [40 + 4 * a for a in range(9)], [], 20)
    stamp(9)
    addgran(40, 44); addgran(48, 52); addgran(56, 60); addgran(64, 68)
    addgran(40, 48); addgran(56, 64); addgran(40, 72); addgran(40, 56)
    redscat([40])
    A(f"v_add_f32_dpp v40, v40, v40 row_ror:8 {DPP}")
    bf16r(40, 40)
    A("v_add_f32 v40, v40, v25")
    bf16r(40, 40)
    A("v_mul_f32 v40, v40, v27")
    bf16r(40, 40)
    A("v_add_f32 v40, v40, v24")
    A("v_cvt_pk_bf16_f32 v40, v40, v40")
    if p.xdelay == 1:
        A("s_mov_b32 s70, 600")
        A("L_xd:")
        A("s_nop 0"); A("s_sub_u32 s70, s70, 1"); A("s_cmp_lg_u32 s70, 0"); A("s_cbranch_scc1 L_xd")
    A("s_mov_b32 exec_lo, 0x00ff00ff"); A("s_mov_b32 exec_hi, 0x00ff00ff")
    A(f"global_store_short v18, v40, {sp(sOUT)}")
    A(f"s_cmp_lg_u32 s{sBLK}, 0"); A("s_cbranch_scc1 L_red_end")
    A("s_mov_b64 exec, 1")
    A("v_mov_b32 v3, 0")
    A(f"global_store_dword v3, v{vTAG}, {sp(sWS)} offset:{EPOCH} sc1")
    A("L_red_end:")
    if p.dbg:
        A("s_memrealtime s[96:97]")
        A("s_load_dwordx2 s[70:71], s[0:1], 104")
        A("s_waitcnt lgkmcnt(0)")
        A("s_sub_u32 s96, s96, s98")
        A("s_mov_b64 exec, 1")
        A(f"s_lshl_b32 s97, s{sBLK}, 2")
        A("v_mov_b32 v3, s97")
        A("v_mov_b32 v4, s96")
        A("global_store_dword v3, v4, s[70:71]")
    stamp(10)
    endwave()

    A("L_c_m:")
    tail_setup()
    X2B = 104
    order = list(range(8, 17)) + list(range(8))
    for idx, k in enumerate(order):
        if idx >= p.DC: A(f"s_waitcnt vmcnt({p.DC-1})")
        tail_load(k)
    A("s_cmp_lg_u32 s3, 0"); A("s_cbranch_scc1 L_mphase")
    A(f"s_mov_b32 s{sO1}, 1024")
    for k in range(8):
        A(f"s_waitcnt vmcnt({p.DC-1})")
        A(f"buffer_load_dwordx4 {r4(X2B+4*k)}, v{vT1}, {srd(R_T1)}, s{sO1} offen {nt}")
        A(f"s_add_u32 s{sO1}, s{sO1}, s{sST1}")
    A("s_branch L_mphase")

    KB, VB, OA = 40, 104, 240
    vK, vV, QB = 14, 15, 20
    A("L_main:")
    A(f"s_lshl_b32 s{sT}, s{sG}, 23")
    A(f"s_lshl_b32 s70, s{sJ}, 16")
    A(f"s_add_u32 s{sT}, s{sT}, s70")
    A(f"s_add_u32 s{sT}, s{sT}, 7340032")
    set_srd(R_A, sT, sK, 65536)
    set_srd(R_B, sT, sV, 65536)
    A(f"s_sub_u32 s70, s3, 4"); A("s_lshl_b32 s70, s70, 10")
    A(f"v_lshlrev_b32 v{vK}, 6, v{vI}")
    A(f"v_lshl_add_u32 v{vK}, v{vG}, 4, v{vK}")
    A(f"v_add_u32 v{vK}, s70, v{vK}")
    A(f"v_lshl_add_u32 v{vV}, v{vL}, 4, s70")
    if p.rot:
        A(f"s_mul_i32 s71, s2, {p.rot}"); A("s_lshr_b32 s70, s2, 4"); A("s_add_u32 s71, s71, s70")
        A("s_lshl_b32 s71, s71, 12"); A("s_and_b32 s71, s71, 0xffff")
    else:
        A("s_mov_b32 s71, 0")
    A("s_barrier")
    A(f"s_load_dword s{sTAG}, {sp(sWS)}, {EPOCH}")
    stamp(1)
    for n in range(32):
        if n >= p.D: A(f"s_waitcnt vmcnt({p.D-1})")
        if n < 16: A(f"buffer_load_dwordx4 {r4(KB+4*n)}, v{vK}, {srd(R_A)}, s71 offen {nt}")
        else: A(f"buffer_load_dwordx4 {r4(VB+4*(n-16))}, v{vV}, {srd(R_B)}, s71 offen {nt}")
        A("s_add_u32 s71, s71, 4096"); A("s_and_b32 s71, s71, 0xffff")
        if n == p.D - 1:
            consts()
            A("s_mov_b32 s96, s71")
            tail_setup()
            tagsetup()
            A("s_mov_b32 s71, s96")
    stamp(2)
    for k in range(p.PRE): tail_load(k)
    A(f"v_and_b32 v3, 3, v{vI}")
    A(f"v_lshl_add_u32 v3, v3, 2, v{vG}")
    A(f"v_lshlrev_b32 v3, 4, v3")
    A(f"v_lshrrev_b32 v18, 3, v{vI}")
    A(f"v_lshl_add_u32 v3, v18, 8, v3")
    ldswait(CNT_Q, 4, 24, 25)
    stamp(3)
    A(f"ds_read_b128 {r4(QB)}, v3 offset:{L_Q}")
    A(f"s_waitcnt vmcnt({16+p.PRE}) lgkmcnt(0)")
    for n in range(16): A(f"v_mfma_f32_16x16x32_bf16 {r4(KB+4*n)}, {r4(KB+4*n)}, {r4(QB)}, 0")
    for n0 in range(0, 16, 4):
        for n in range(n0, n0 + 4): A(f"v_mov_b32_dpp v{KB+4*n}, v{KB+4*n} quad_perm:[0,0,0,0] {DPP}")
        for t in range(1, 4):
            for n in range(n0, n0 + 4): A(f"v_add_f32_dpp v{KB+4*n}, v{KB+4*n+t}, v{KB+4*n} quad_perm:[{t},{t},{t},{t}] {DPP}")
    A(f"s_mov_b32 s70, 0x3db504f3")
    for m in range(8):
        b = KB + 8 * m
        A(f"v_cvt_pk_bf16_f32 v{b+2}, v{b}, v{b+4}")
    for m in range(8):
        b = KB + 8 * m
        A(f"v_lshlrev_b32 v{b}, 16, v{b+2}")
        A(f"v_and_b32 v{b+1}, 0xffff0000, v{b+2}")
    for m in range(8):
        b = KB + 8 * m
        A(f"v_pk_mul_f32 {r2(b)}, {r2(b)}, s[70:71] op_sel_hi:[1,0]")
    for m in range(8):
        b = KB + 8 * m
        A(f"v_cvt_pk_bf16_f32 v{b+2}, v{b}, v{b+1}")
    for m in range(8):
        b = KB + 8 * m
        A(f"v_lshlrev_b32 v{b}, 16, v{b+2}")
        A(f"v_and_b32 v{b+1}, 0xffff0000, v{b+2}")
    A(f"v_max_f32 v24, v{KB}, v{KB+1}")
    for m in range(1, 8): A(f"v_max3_f32 v24, v{KB+8*m}, v{KB+8*m+1}, v24")
    rowsall("v_max_f32", 24, 25)
    A(f"s_sub_u32 s70, s3, 4"); A("s_lshl_b32 s70, s70, 2")
    A(f"v_lshl_add_u32 v19, v18, 4, s70")
    A(f"ds_write_b32 v19, v24 offset:{L_MAX}")
    ldssignal(CNT_MAX, 26, 27)
    A(f"v_lshlrev_b32 v3, 4, v18")
    ldswait(CNT_MAX, 4, 26, 27)
    A(f"ds_read_b128 v[24:27], v3 offset:{L_MAX}")
    A("s_waitcnt lgkmcnt(0)")
    A("v_max3_f32 v24, v24, v25, v26")
    A("v_max_f32 v24, v24, v27")
    A(f"s_mov_b32 s70, {hex(LOG2E)}")
    A("v_mul_f32 v26, s70, v24")
    for m in range(8):
        b = KB + 8 * m
        A(f"v_pk_fma_f32 {r2(b)}, {r2(b)}, s[70:71], v[26:27] op_sel_hi:[1,0,0] neg_lo:[0,0,1] neg_hi:[0,0,1]")
    for m in range(8):
        b = KB + 8 * m
        A(f"v_exp_f32 v{b}, v{b}")
        A(f"v_exp_f32 v{b+1}, v{b+1}")
    A(f"v_pk_add_f32 v[28:29], {r2(KB)}, {r2(KB+8)}")
    for m in range(2, 8): A(f"v_pk_add_f32 v[28:29], v[28:29], {r2(KB+8*m)}")
    A("v_add_f32 v28, v28, v29")
    rowsall("v_add_f32", 28, 29)
    A(f"ds_write_b32 v19, v28 offset:{L_LB}")
    ldssignal(CNT_L, 26, 27)
    for m in range(8):
        b = KB + 8 * m
        A(f"v_cvt_pk_bf16_f32 v30, v{b}, v{b}")
        A(f"v_cvt_pk_bf16_f32 v31, v{b+1}, v{b+1}")
        for d in range(4): A(f"v_and_b32 v{b+d}, v30, v{vMASK+d}")
        for d in range(4): A(f"v_and_b32 v{b+4+d}, v31, v{vMASK+d}")
    stamp(4)
    ldswait(CNT_L, 4, 26, 27)
    A("v_mov_b32 v3, 0")
    A(f"ds_read_b128 v[24:27], v3 offset:{L_MAX}")
    A(f"ds_read_b128 v[28:31], v3 offset:{L_MAX+16}")
    A(f"ds_read_b128 v[20:23], v3 offset:{L_LB}")
    A(f"ds_read_b128 v[36:39], v3 offset:{L_LB+16}")
    A("s_waitcnt lgkmcnt(0)")
    A("v_max3_f32 v32, v24, v25, v26"); A("v_max_f32 v32, v32, v27")
    A("v_max3_f32 v34, v28, v29, v30"); A("v_max_f32 v34, v34, v31")
    A("v_pk_add_f32 v[20:21], v[20:21], v[22:23]"); A("v_add_f32 v33, v20, v21")
    A("v_pk_add_f32 v[36:37], v[36:37], v[38:39]"); A("v_add_f32 v35, v36, v37")
    tag4(32)
    A(f"s_lshl_b32 s70, s{sG}, 4"); A(f"s_add_u32 s70, s70, s{sJ}"); A("s_mul_i32 s70, s70, 1152"); A(f"s_add_u32 s97, s70, {OP}")
    A(f"v_lshrrev_b32 v18, 1, v{vG}")
    A(f"v_and_b32 v19, 1, v{vG}")
    A(f"v_lshlrev_b32 v18, 9, v18")
    A(f"v_lshl_add_u32 v18, v19, 4, v18")
    A(f"v_lshl_add_u32 v18, v{vI}, 5, v18")
    A(f"s_sub_u32 s70, s3, 4"); A("s_lshl_b32 s70, s70, 10")
    A(f"v_lshlrev_b32 v20, 4, v{vL}")
    A(f"v_add_u32 v19, s70, v20")
    issued = p.PRE
    for n in range(16):
        A(f"s_waitcnt vmcnt({15-n+issued})")
        mfma(OA, KB + 4 * n, VB + 4 * n, n == 0)
        want = min(18, max(p.PRE, p.D2 - 15 + n))
        while issued < want:
            tail_load(issued); issued += 1
    stamp(5)
    A(f"ds_write_b128 v19, {r4(OA)} offset:{L_OB}")
    ldssignal(CNT_O, 26, 27, rtn=True)
    A(f"s_cmp_lg_u32 s{sT}, 3"); A("s_cbranch_scc1 L_m_pub_done")
    for w in range(4): A(f"ds_read_b128 {r4(KB+4*w)}, v20 offset:{L_OB+1024*w}")
    A("s_waitcnt lgkmcnt(0)")
    addgran(KB, KB + 4); addgran(KB + 8, KB + 12); addgran(KB, KB + 8)
    tag4(KB)
    A(f"buffer_store_dwordx4 {r4(KB)}, v18, {srd(R_WS)}, s97 offen sc1")
    A("s_mov_b64 exec, 1")
    A(f"buffer_store_dwordx4 v[32:35], v20, {srd(R_WS)}, s97 offen offset:1024 sc1")
    A("s_mov_b64 exec, -1")
    A("L_m_pub_done:")
    stamp(6)
    A(f"s_cmp_eq_u32 s{sCLS}, 0"); A("s_cbranch_scc1 L_wphase")
    A(f"s_cmp_eq_u32 s{sCLS}, 3"); A("s_cbranch_scc1 L_m_end")
    while issued < 18:
        A(f"s_waitcnt vmcnt({p.D2-1})")
        tail_load(issued); issued += 1
    A(f"s_cmp_eq_u32 s{sCLS}, 1"); A("s_cbranch_scc1 L_mphase")

    A(f"s_sub_u32 s70, s3, 4"); A("s_mul_i32 s70, s70, 144")
    A(f"v_lshl_add_u32 v3, v{vI}, 3, v{vG}")
    A(f"v_add_lshl_u32 v3, v3, s70, 1")
    A(f"global_load_short_d16_hi v24, v3, {sp(sC)}")
    A(f"global_load_short_d16_hi v25, v3, {sp(sC)} offset:8")
    A(f"v_and_b32 v3, 1, v{vI}")
    A(f"v_lshl_add_u32 v3, v3, 3, v{vG}")
    A(f"v_add_lshl_u32 v3, v3, s70, 1")
    A(f"global_load_short_d16_hi v26, v3, {sp(sC)} offset:256")
    A(f"global_load_short_d16_hi v27, v3, {sp(sC)} offset:264")
    A("s_waitcnt vmcnt(0)")
    silu([24, 25, 26, 27], [28, 29, 30, 31])
    A("v_cvt_pk_bf16_f32 v24, v24, v25")
    A("v_cvt_pk_bf16_f32 v26, v26, v27")
    for n in range(18):
        sparse8(24 if n < 16 else 26, n & 15, KB + 4 * (n & 7), 28 + (n & 1))
        mfma(OA, KB + 4 * (n & 7), T1B + 4 * n, n == 0)
    A(f"s_lshl_b32 s97, s{sBLK}, 8"); A(f"s_add_u32 s97, s97, {MB}")
    A("s_nop 4")
    A("s_branch L_comb")

    A("L_wphase:")
    A(f"v_mul_u32_u24 v3, 1152, v{vG}")
    A(f"v_and_b32 v21, 3, v{vI}")
    A(f"v_mul_u32_u24 v21, 4608, v21")
    A(f"v_add_u32 v21, v21, v3")
    A(f"v_lshl_add_u32 v3, v{vI}, 4, v3")
    A(f"s_mul_i32 s70, s{sG}, {16*1152}"); A(f"s_add_u32 s48, s70, {OP}")
    A(f"s_sub_u32 s71, s3, 4"); A("s_lshl_b32 s71, s71, 8"); A("s_add_u32 s44, s48, s71")
    for a in range(1, 4): A(f"s_add_u32 s{44+a}, s44, {4608*a}")
    A("s_cmp_ge_u32 s3, 6"); A("s_cselect_b64 s[70:71], -1, 0")
    poll([f"buffer_load_dwordx4 {r4(KB+4*a)}, v3, {srd(R_WS)}, s{44+a} offen sc1" for a in range(4)] +
         [f"buffer_load_dwordx4 {r4(KB+16)}, v21, {srd(R_WS)}, s48 offen offset:1024 sc1"],
         [KB + 4 * a for a in range(5)], [], 22)
    stamp(7)
    S = KB + 16
    A(f"v_cndmask_b32 v24, v{S}, v{S+2}, s[70:71]")
    A(f"v_cndmask_b32 v25, v{S+1}, v{S+3}, s[70:71]")
    A("v_and_b32 v24, 0xffff0000, v24")
    A(f"v_max_f32_dpp v26, v24, v24 quad_perm:[1,0,3,2] {DPP}")
    A(f"v_max_f32_dpp v26, v26, v26 quad_perm:[2,3,0,1] {DPP}")
    rowsall("v_max_f32", 26, 27)
    A("v_sub_f32 v24, v24, v26")
    A(f"v_mul_f32 v24, {hex(LOG2E)}, v24")
    A("v_exp_f32 v24, v24")
    A("v_mul_f32 v25, v24, v25")
    for e in range(4): A(f"v_mul_f32_dpp v{28+e}, v24, v{KB+e} quad_perm:[0,0,0,0] {DPP}")
    A(f"v_add_f32_dpp v25, v25, v25 quad_perm:[1,0,3,2] {DPP}")
    for e in range(4): A(f"v_fmac_f32_dpp v{28+e}, v24, v{KB+4+e} quad_perm:[1,1,1,1] {DPP}")
    A(f"v_add_f32_dpp v25, v25, v25 quad_perm:[2,3,0,1] {DPP}")
    for a in (2, 3):
        for e in range(4): A(f"v_fmac_f32_dpp v{28+e}, v24, v{KB+4*a+e} quad_perm:[{a},{a},{a},{a}] {DPP}")
    rowsall("v_add_f32", 25, 27)
    redscat([28])
    A("v_rcp_f32 v25, v25")
    A("v_mul_f32 v28, v28, v25")
    A(f"v_mov_b32_dpp v29, v28 row_ror:8 {DPP}")
    A("v_cvt_pk_bf16_f32 v28, v28, v29")
    for n in range(8):
        sparse8(28, n, KB + 4 * n, 30 + (n & 1))
        mfma(OA, KB + 4 * n, T1B + 4 * n, n == 0)
    A(f"s_mul_i32 s97, s{sG}, 2304"); A(f"s_lshl_b32 s70, s{sJ}, 8"); A("s_add_u32 s97, s97, s70"); A(f"s_add_u32 s97, s97, {AP}")
    A("L_comb:")
    A(f"v_lshlrev_b32 v3, 5, v{vI}")
    A(f"v_lshl_add_u32 v3, v{vG}, 4, v3")
    A(f"ds_write_b128 v19, {r4(OA)} offset:{L_WB}")
    ldssignal(CNT_W, 26, 27, rtn=True)
    A(f"s_cmp_lg_u32 s{sT}, 3"); A("s_cbranch_scc1 L_m_end")
    for w in range(4): A(f"ds_read_b128 {r4(KB+4*w)}, v20 offset:{L_WB+1024*w}")
    A("s_waitcnt lgkmcnt(0)")
    addgran(KB, KB + 4); addgran(KB + 8, KB + 12); addgran(KB, KB + 8)
    halfadd(KB, KB + 4)
    A(f"s_cmp_eq_u32 s{sCLS}, 0"); A("s_cbranch_scc1 L_comb_st")
    for e in range(4): bf16r(KB + e, KB + e)
    A("L_comb_st:")
    tag4(KB)
    A("s_mov_b64 exec, 0x00ff00ff")
    A(f"buffer_store_dwordx4 {r4(KB)}, v3, {srd(R_WS)}, s97 offen sc1")
    A("L_m_end:")
    stamp(8)
    endwave()

    A("L_mphase:")
    stamp(7)
    A(f"v_lshl_add_u32 v14, v{vI}, 2, v{vG}")
    A(f"s_lshl_b32 s70, s3, 6")
    A(f"v_add_u32 v15, s70, v14")
    A(f"v_lshlrev_b32 v3, 1, v15")
    A(f"global_load_short_d16_hi v24, v3, {sp(sX)}")
    A(f"v_lshlrev_b32 v3, 1, v14")
    A(f"global_load_short_d16_hi v25, v3, {sp(sX)} offset:1024")
    A(f"s_lshl_b32 s70, s{sBLK}, 7")
    A(f"v_add_u32 v3, s70, v3")
    A(f"global_load_short_d16_hi v23, v3, {sp(sB1)}")
    A(f"v_lshlrev_b32 v15, 2, v15")
    A(f"v_mul_u32_u24 v3, 2304, v{vG}")
    A(f"v_lshl_add_u32 v3, v{vI}, 4, v3")
    A(f"s_lshl_b32 s70, s3, 8"); A(f"s_add_u32 s44, s70, {AP}")
    for a in range(1, 4): A(f"s_add_u32 s{44+a}, s44, {9216*a}")
    A(f"s_mov_b32 s48, {MB}"); A(f"s_mov_b32 s49, {MB+4608}")
    A(f"v_lshlrev_b32 v18, 5, v{vL}")
    A(f"v_lshlrev_b32 v19, 2, v{vL}")
    A(f"v_min_u32 v20, 8, v{vI}")
    A(f"v_lshl_add_u32 v20, v20, 3, v{vG}")
    A(f"s_mul_i32 s70, s3, 72")
    A(f"v_add_lshl_u32 v20, v20, s70, 2")
    A(f"v_lshrrev_b32 v21, 1, v{vG}")
    A(f"s_lshl_b32 s70, s3, 1")
    A(f"v_add_lshl_u32 v21, v21, s70, 8")
    A(f"v_and_b32 v22, 7, v{vI}")
    A(f"v_lshl_add_u32 v21, v22, 5, v21")
    A(f"v_and_b32 v22, 1, v{vG}")
    A(f"v_lshl_add_u32 v21, v22, 4, v21")
    A(f"v_lshlrev_b32 v22, 2, v14")
    if p.XW < 63: A(f"s_waitcnt vmcnt({p.XW})")
    def blockstep(G, ga, xr):
        addgran(G, G + 4); addgran(G + 8, G + 12); addgran(G, G + 8)
        redscat([G])
        for e in range(3): A(f"v_and_b32 v{ga+e}, 0xffff0000, v{ga+e}")
        bf16r(G, G)
        A(f"v_add_f32 v{ga+2}, 1.0, v{ga+2}")
        A(f"v_mul_f32 v{G}, v{G}, v{ga}")
        bf16r(ga + 2, ga + 2)
        bf16r(G, G)
        A(f"v_add_f32 v{G}, v{G}, v{xr}")
        bf16r(G, G)
    def mloads(G, ga, off):
        return ([f"buffer_load_dwordx4 {r4(G+4*a)}, v3, {srd(R_WS)}, s{44+a} offen offset:{off} sc1" for a in range(4)] +
                [f"buffer_load_dword v{ga}, v15, {srd(R_WS)}, s48 offen offset:{off} sc1",
                 f"buffer_load_dword v{ga+1}, v15, {srd(R_WS)}, s48 offen offset:{off+2304 if off+2304 < 4096 else 0} sc1" if off == 0 else
                 f"buffer_load_dword v{ga+1}, v15, {srd(R_WS)}, s50 offen sc1",
                 f"buffer_load_dword v{ga+2}, v15, {srd(R_WS)}, s49 offen offset:{off} sc1"])
    A("s_cmp_eq_u32 s3, 0"); A("s_cbranch_scc1 L_mp0")
    poll(mloads(40, 26, 0), [40, 44, 48, 52], [26, 27, 28], 72)
    stamp(8)
    blockstep(40, 26, 24)
    A("s_branch L_mp1")
    A("L_mp0:")
    A(f"s_mov_b32 s50, {MB+2304+2048}")
    poll(mloads(40, 26, 0) + mloads(56, 29, 2048), [40, 44, 48, 52, 56, 60, 64, 68], [26, 27, 28, 29, 30, 31], 72)
    stamp(8)
    blockstep(56, 29, 25)
    A(f"ds_write_b32 v15, v56 offset:{L_X2+2048}")
    A(f"ds_write_b32 v15, v31 offset:{L_AA+2048}")
    A(f"ds_write_b32 v15, v30 offset:{L_SS+2048}")
    blockstep(40, 26, 24)
    A("L_mp1:")
    A(f"ds_write_b32 v15, v40 offset:{L_X2}")
    A(f"ds_write_b32 v15, v28 offset:{L_AA}")
    A(f"ds_write_b32 v15, v27 offset:{L_SS}")
    A("s_waitcnt lgkmcnt(0)")
    A("s_barrier")
    XR, AR, SR_ = 40, 52, 64
    for base, off in ((XR, L_X2), (AR, L_AA), (SR_, L_SS)):
        A(f"ds_read_b128 {r4(base)}, v18 offset:{off}")
        A(f"ds_read_b128 {r4(base+4)}, v18 offset:{off+16}")
        A(f"ds_read_b32 v{base+8}, v19 offset:{off+2048}")
    A(f"v_add_u32 v20, {L_X2}, v20")
    A(f"ds_read2_b32 v[76:77], v20 offset0:0 offset1:4")
    A(f"v_add_u32 v20, 2304, v20")
    A(f"ds_read2_b32 v[78:79], v20 offset0:0 offset1:4")
    A(f"v_add_u32 v20, 2304, v20")
    A(f"ds_read2_b32 v[80:81], v20 offset0:0 offset1:4")
    A("s_waitcnt lgkmcnt(9)")
    def lnstats(X, own):
        A(f"v_readfirstlane_b32 s70, v{X}")
        for k in range(4): A(f"v_pk_add_f32 {r2(X+2*k)}, {r2(X+2*k)}, s[70:71] op_sel_hi:[1,0] neg_lo:[0,1] neg_hi:[0,1]")
        A(f"v_subrev_f32 v{X+8}, s70, v{X+8}")
        A(f"v_pk_add_f32 v[82:83], {r2(X)}, {r2(X+2)}")
        A(f"v_pk_mul_f32 v[84:85], {r2(X)}, {r2(X)}")
        A(f"v_pk_add_f32 v[82:83], v[82:83], {r2(X+4)}")
        A(f"v_pk_fma_f32 v[84:85], {r2(X+2)}, {r2(X+2)}, v[84:85]")
        A(f"v_pk_add_f32 v[82:83], v[82:83], {r2(X+6)}")
        A(f"v_pk_fma_f32 v[84:85], {r2(X+4)}, {r2(X+4)}, v[84:85]")
        A(f"v_add_f32 v82, v82, v{X+8}")
        A(f"v_pk_fma_f32 v[84:85], {r2(X+6)}, {r2(X+6)}, v[84:85]")
        A(f"v_add_f32 v82, v82, v83")
        A(f"v_fmac_f32 v84, v{X+8}, v{X+8}")
        A(f"v_add_f32 v84, v84, v85")
        wavesum([82, 84], [83, 85])
        A(f"v_mul_f32 v82, {hex(0x3ae38e39)}, v82")
        A(f"v_mul_f32 v84, {hex(0x3ae38e39)}, v84")
        A(f"v_fma_f32 v84, -v82, v82, v84")
        A(f"v_max_f32 v84, 0, v84")
        A(f"v_add_f32 v84, {hex(0x3727c5ac)}, v84")
        A(f"v_rsq_f32 v84, v84")
        A(f"v_add_f32 v83, s70, v82")
    lnstats(XR, 76)
    A("s_waitcnt lgkmcnt(0)")
    for k in range(4): A(f"v_pk_add_f32 {r2(XR+2*k)}, {r2(XR+2*k)}, v[82:83] op_sel_hi:[1,0] neg_lo:[0,1] neg_hi:[0,1]")
    A(f"v_sub_f32 v{XR+8}, v{XR+8}, v82")
    A(f"v_pk_add_f32 v[76:77], v[76:77], v[82:83] op_sel:[0,1] op_sel_hi:[1,1] neg_lo:[0,1] neg_hi:[0,1]")
    for k in range(4): A(f"v_pk_mul_f32 {r2(AR+2*k)}, {r2(AR+2*k)}, v[84:85] op_sel_hi:[1,0]")
    A(f"v_mul_f32 v{AR+8}, v{AR+8}, v84")
    A(f"v_pk_mul_f32 v[78:79], v[78:79], v[84:85] op_sel_hi:[1,0]")
    for k in range(4): A(f"v_pk_fma_f32 {r2(XR+2*k)}, {r2(XR+2*k)}, {r2(AR+2*k)}, {r2(SR_+2*k)}")
    A(f"v_fma_f32 v{XR+8}, v{XR+8}, v{AR+8}, v{SR_+8}")
    A(f"v_pk_fma_f32 v[76:77], v[76:77], v[78:79], v[80:81]")
    lnstats(XR, 76)
    A(f"v_pk_add_f32 v[76:77], v[76:77], v[82:83] op_sel:[0,1] op_sel_hi:[1,1] neg_lo:[0,1] neg_hi:[0,1]")
    A(f"v_pk_mul_f32 v[76:77], v[76:77], v[84:85] op_sel_hi:[1,0]")
    A("v_cvt_pk_bf16_f32 v76, v76, v77")
    for n in range(9):
        sparse8(76, n, 40 + 4 * n, 78 + (n & 1))
        mfma(OA, 40 + 4 * n, T2B + 4 * n, n == 0)
    A("s_mov_b32 exec_lo, 0x00ff00ff"); A("s_mov_b32 exec_hi, 0xff00ff00")
    A(f"ds_write_b128 v21, {r4(OA)} offset:{L_H1}")
    A("s_mov_b64 exec, -1")
    A(f"v_add_u32 v22, {L_H1}, v22")
    A("s_waitcnt lgkmcnt(0)")
    A("s_barrier")
    stamp(9)
    for k in range(8): A(f"ds_read2st64_b32 {r2(40+2*k)}, v22 offset0:{2*k} offset1:{2*k+1}")
    A("s_waitcnt lgkmcnt(4)")
    A("v_pk_add_f32 v[40:41], v[40:41], v[42:43]"); A("v_pk_add_f32 v[44:45], v[44:45], v[46:47]")
    A("s_waitcnt lgkmcnt(0)")
    A("v_pk_add_f32 v[48:49], v[48:49], v[50:51]"); A("v_pk_add_f32 v[52:53], v[52:53], v[54:55]")
    A("v_pk_add_f32 v[40:41], v[40:41], v[44:45]"); A("v_pk_add_f32 v[48:49], v[48:49], v[52:53]")
    A("v_pk_add_f32 v[40:41], v[40:41], v[48:49]")
    A("v_add_f32 v40, v40, v41")
    bf16r(40, 40)
    A("v_add_f32 v40, v40, v23")
    bf16r(40, 40)
    import struct, math
    f2h = lambda f: hex(struct.unpack("<I", struct.pack("<f", f))[0])
    c0 = -2.0 * math.sqrt(2.0 / math.pi) * math.log2(math.e)
    A("v_mul_f32 v41, v40, v40")
    A(f"v_mov_b32 v42, {f2h(c0)}")
    A(f"v_fmac_f32 v42, {f2h(c0*0.044715)}, v41")
    A("v_mul_f32 v41, v42, v40")
    A("v_exp_f32 v41, v41")
    A("v_add_f32 v41, 1.0, v41")
    A("v_rcp_f32 v41, v41")
    A("v_mul_f32 v40, v40, v41")
    A(f"v_mov_b32_dpp v41, v40 row_ror:8 {DPP}")
    A("v_cvt_pk_bf16_f32 v76, v40, v41")
    A(f"s_mul_i32 s97, s{sBLK}, 2304"); A("s_lshl_b32 s70, s3, 8"); A("s_add_u32 s97, s97, s70"); A(f"s_add_u32 s97, s97, {FP}")
    A(f"v_lshlrev_b32 v3, 5, v{vI}")
    A(f"v_lshl_add_u32 v3, v{vG}, 4, v3")
    A("s_cmp_eq_u32 s3, 0"); A("s_cbranch_scc1 L_w2_0")
    for n in range(8):
        sparse8(76, n, 40 + 4 * n, 78 + (n & 1))
        mfma(OA, 40 + 4 * n, T1B + 4 * n, n == 0)
    A("s_branch L_w2_1")
    A("L_w2_0:")
    for n in range(8):
        sparse8(76, n, 40 + 4 * n, 78 + (n & 1))
        mfma(OA, 40 + 4 * n, T1B + 4 * n, n == 0)
        mfma(OA + 4, 40 + 4 * n, X2B + 4 * n, n == 0)
    halfadd(OA + 4, 84)
    tag4(OA + 4)
    A("s_mov_b64 exec, 0x00ff00ff")
    A(f"buffer_store_dwordx4 {r4(OA+4)}, v3, {srd(R_WS)}, s97 offen offset:2048 sc1")
    A("s_mov_b64 exec, -1")
    A("L_w2_1:")
    A("s_nop 7")
    halfadd(OA, 80)
    tag4(OA)
    A("s_mov_b64 exec, 0x00ff00ff")
    A(f"buffer_store_dwordx4 {r4(OA)}, v3, {srd(R_WS)}, s97 offen sc1")
    stamp(10)
    endwave()
    A("L_exit:")
    A("s_endpgm")
    A('.section .rodata,"a"')
    A(".p2align 6")
    A(f".amdhsa_kernel {KN}")
    A(".amdhsa_next_free_vgpr 248")
    A(".amdhsa_next_free_sgpr 102")
    A(".amdhsa_accum_offset 248")
    A(".amdhsa_group_segment_fixed_size 0")
    A(".amdhsa_kernarg_size 120")
    A(".amdhsa_user_sgpr_count 2")
    A(".amdhsa_user_sgpr_kernarg_segment_ptr 1")
    A(".amdhsa_system_sgpr_workgroup_id_x 1")
    A(".amdhsa_float_denorm_mode_32 3")
    A(".end_amdhsa_kernel")
    return A.text().replace(".ASMLAUNCH @", "; @")

if __name__ == "__main__":
    kw = eval("dict(" + (sys.argv[2] if len(sys.argv) > 2 else "") + ")")
    open(sys.argv[1], "w").write(gen(**kw))
```

```python
import sys, struct, math
sys.path.insert(0, "work")
from asmlib import Asm

KN = "adaLN_cond__sliding_block_cached__mixer_channel_mlp__decode_kernel"

EPOCH = 0
MA = 0x1000
MB = 0xA000
AP = 0xD000
FP = 0x16000
QP = 0x40000
OP = 0x80000
HINT1 = 0xC8000
HINT2 = 0xD2000
HINT3 = 0xDA000
WSREC = 0x100000
DBG = 0x100000

CNT_Q, CNT_P, CNT_L, CNT_O, CNT_W = 0, 4, 8, 12, 16
CNT_H1, CNT_H2, CNT_H3, CNT_MODE, CNT_PUB = 24, 28, 32, 36, 40
L_ZERO = 48
L_MAX = 64
L_LB = 96
L_Q = 256
L_OB = 1024
L_WB = 5120
L_X2 = 9216
L_AA = 11520
L_SS = 13824
L_H1 = 16128
LDS_BYTES = 20480

DPP = "row_mask:0xf bank_mask:0xf"
LOG2E = 0x3fb8aa3b
f2h = lambda f: hex(struct.unpack("<I", struct.pack("<f", f))[0])
INV576 = f2h(1.0 / 576)
EPS = f2h(1e-5)

class P:
    D = 5
    PRE = 3
    D2 = 8
    DC = 4
    XW = 63
    stamps = 0
    preread = 0
    limit = 20000
    nt = "nt"
    prio = 1
    rot = 1
    dbg = 0
    k1 = 1; g1 = 4
    k2 = 1; g2 = 4
    k3 = 1; g3 = 4
    k4 = 1; g4 = 4
    k5 = 1; g5 = 2
    cpf = 0
    diag = 0
    hint = 1
    EM = 0
    EB = 0
    ctrig = 4
    mprio = 2
    X = 0
    D3 = 63
    DW = 0
    c0e = 0
    EB2 = 0
    ZH = 0
    epos = 16
    estep = 1
    E = 8
    pause1 = 0
    pause2 = 0
    inter = 0
    fast = 1
    hsleep = 0
    lsleep = 0

def gen(**kw):
    p = P()
    for k, v in kw.items():
        assert hasattr(p, k), k
        setattr(p, k, v)
    A = Asm()
    nt = p.nt
    sX, sK, sV, sWQ, sWO, sW1, sB1, sW2, sB2, sC, sWM, sOUT, sWS = 16, 18, 20, 22, 24, 28, 30, 32, 34, 36, 38, 40, 42
    sG, sJ, sCLS, sBLK = 4, 5, 6, 7
    sTAG = 8
    sSEL = 12
    R_A, R_B, R_T1, R_T2, R_WS = 44, 48, 52, 56, 60
    sST, sROT = 64, 65
    sO1, sO2 = 66, 67
    sCNT = 68
    sT = 69
    sPUB = 97
    sMODE = 27
    sW = 96
    vL, vG, vI = 0, 1, 2
    vMASK, vSEL, vTAG, vTG = 4, 8, 12, 13
    vTP, vTC, vST, vZ = 244, 245, 246, 247
    def r4(b): return f"v[{b}:{b+3}]"
    def r2(b): return f"v[{b}:{b+1}]"
    def srd(b): return f"s[{b}:{b+3}]"
    def sp(b): return f"s[{b}:{b+1}]"
    WS = srd(R_WS)
    def stamp(k):
        if p.stamps: A(f"s_memrealtime s[{72+2*k}:{73+2*k}]")
    def endwave():
        if p.stamps:
            A("s_mov_b64 exec, -1")
            A("s_waitcnt lgkmcnt(0)")
            A(f"s_lshl_b32 s{sT}, s2, 3")
            A(f"s_add_u32 s{sT}, s{sT}, s3")
            A(f"s_lshl_b32 s{sT}, s{sT}, 6")
            A(f"s_add_u32 s{sT}, s{sT}, {DBG}")
            A("s_waitcnt vmcnt(0)")
            A(f"v_mov_b32 v14, s{sT}")
            A("s_mov_b64 exec, 1")
            for k in range(0, 12, 4):
                for e in range(4): A(f"v_mov_b32 v{16+e}, s{72+2*(k+e)}")
                A(f"global_store_dwordx4 v14, v[16:19], {sp(sWS)} offset:{4*k}")
            for e in range(4): A(f"v_mov_b32 v{16+e}, s{98+e}")
            A(f"global_store_dwordx4 v14, v[16:19], {sp(sWS)} offset:48")
            A("s_waitcnt vmcnt(0)")
        A("s_endpgm")
    def set_srd(r, off_s, ptr, rec):
        A(f"s_add_u32 s{r}, s{ptr}, s{off_s}")
        A(f"s_addc_u32 s{r+1}, s{ptr+1}, 0")
        A(f"s_mov_b32 s{r+2}, {rec}")
        A(f"s_mov_b32 s{r+3}, 0x20000")
    def bf16r(d, s):
        A(f"v_cvt_pk_bf16_f32 v{d}, v{s}, v{s}")
        A(f"v_lshlrev_b32 v{d}, 16, v{d}")
    def rowsall(op, vs, ts):
        for sw in ("v_permlane32_swap_b32", "v_permlane16_swap_b32"):
            for v, t in zip(vs, ts): A(f"v_mov_b32 v{t}, v{v}")
            for v, t in zip(vs, ts): A(f"{sw} v{v}, v{t}")
            for v, t in zip(vs, ts): A(f"{op} v{v}, v{v}, v{t}")
    def wavesum_s(vs, ss):
        for ctl in ("quad_perm:[1,0,3,2]", "quad_perm:[2,3,0,1]", "row_half_mirror", "row_mirror"):
            for v in vs: A(f"v_add_f32_dpp v{v}, v{v}, v{v} {ctl} {DPP}")
        for v in vs: A(f"v_add_f32_dpp v{v}, v{v}, v{v} row_bcast:15 row_mask:0xa bank_mask:0xf")
        for v in vs: A(f"v_add_f32_dpp v{v}, v{v}, v{v} row_bcast:31 row_mask:0xc bank_mask:0xf")
        for v, s in zip(vs, ss): A(f"v_readlane_b32 s{s}, v{v}, 63")
    def redscat(bs):
        for b in bs:
            A(f"v_permlane32_swap_b32 v{b}, v{b+2}")
            A(f"v_permlane32_swap_b32 v{b+1}, v{b+3}")
        for b in bs: A(f"v_pk_add_f32 {r2(b)}, {r2(b)}, {r2(b+2)}")
        for b in bs: A(f"v_permlane16_swap_b32 v{b}, v{b+1}")
        for b in bs: A(f"v_add_f32 v{b}, v{b}, v{b+1}")
    def addgran(d, a, b):
        A(f"v_pk_add_f32 {r2(d)}, {r2(a)}, {r2(b)}")
        A(f"v_pk_add_f32 {r2(d+2)}, {r2(a+2)}, {r2(b+2)}")
    def sum4(d, b):
        addgran(b, b, b + 4); addgran(b + 8, b + 8, b + 12); addgran(d, b, b + 8)
    def tag4(b):
        for e in range(4): A(f"v_perm_b32 v{b+e}, v{b+e}, v{vTAG}, s{sSEL+e}")
    def tag1(b):
        A(f"v_perm_b32 v{b}, v{b}, v{vTP}, s{sSEL}")
    def halfadd(bs, ts):
        for b, t in zip(bs, ts):
            for e in range(4): A(f"v_permlane32_swap_b32 v{t+e}, v{b+e}")
    def halfadd(bs, ts):
        for b, t in zip(bs, ts):
            for e in range(4): A(f"v_permlane32_swap_b32 v{b+e}, v{t+e}")
        for b, t in zip(bs, ts):
            for e in range(4): A(f"v_add_f32_dpp v{b+e}, v{t+e}, v{b+e} row_ror:8 {DPP}")
    def poll(sets, acc, gap=0, slot=None):
        k = len(sets); n = len(sets[0][0])
        L = A.label("poll"); Ld = A.label("pd")
        oks = [A.label("ok") for _ in sets]
        A(f"s_mov_b32 s{sCNT}, {p.limit}")
        for i, (loads, _, _) in enumerate(sets):
            if i and gap: A(f"s_sleep {gap}")
            if k == 1: A(f"{L}:")
            for l in loads: A(l)
        if k > 1: A(f"{L}:")
        for i, (loads, checks, _) in enumerate(sets):
            A(f"s_waitcnt vmcnt({(k-1)*n})")
            for c, (r, t) in enumerate(checks):
                if c == 0: A(f"v_xor_b32 v{acc}, {t}, v{r}")
                else: A(f"v_bitop3_b32 v{acc}, v{r}, {t}, v{acc} bitop3:0xbe")
            A(f"v_and_b32 v{acc}, 0xff, v{acc}")
            A(f"v_cmp_ne_u32 vcc, 0, v{acc}")
            A(f"s_cbranch_vccz {oks[i]}")
            A(f"s_sub_u32 s{sCNT}, s{sCNT}, 1")
            if k == 1:
                A(f"s_cbranch_scc0 {L}")
            else:
                A(f"s_cbranch_scc1 {oks[i]}")
                for l in loads: A(l)
        if k > 1: A(f"s_branch {L}")
        for i in reversed(range(k)):
            A(f"{oks[i]}:")
            sets[i][2]()
            if i: A(f"s_branch {Ld}")
        A(f"{Ld}:")
        if p.stamps and slot is not None: A(f"s_sub_u32 s{98+slot}, {p.limit+1}, s{sCNT}")
    def ldswait(off, target, t):
        L = A.label("lw"); Ld = A.label("lwd")
        A(f"s_mov_b32 s{sCNT}, {p.limit*40}")
        A(f"{L}:")
        A(f"ds_read_b32 v{t}, v{vZ} offset:{off}")
        A("s_waitcnt lgkmcnt(0)")
        A(f"v_cmp_le_u32 vcc, {target}, v{t}")
        A(f"s_cbranch_vccnz {Ld}")
        if p.lsleep: A(f"s_sleep {p.lsleep}")
        A(f"s_sub_u32 s{sCNT}, s{sCNT}, 1")
        A(f"s_cbranch_scc0 {L}")
        A(f"{Ld}:")
    def ldssignal(off, t, rtn=False, last=3):
        A(f"v_mov_b32 v{t}, 1")
        A("s_mov_b64 exec, 1")
        if rtn:
            A(f"ds_add_rtn_u32 v{t}, v{vZ}, v{t} offset:{off}")
            A("s_waitcnt lgkmcnt(0)")
            A(f"v_cmp_eq_u32 vcc, {last}, v{t}")
        else:
            A(f"ds_add_u32 v{vZ}, v{t} offset:{off}")
        A("s_mov_b64 exec, -1")
    def hintwait(offs, width):
        L = A.label("hw"); Lf = A.label("hf"); Ld = A.label("hd")
        A(f"s_and_b32 s70, s{sTAG}, 0xffff"); A("s_mul_i32 s70, s70, 0x10001"); A("s_mov_b32 s71, s70")
        A(f"s_mov_b32 s{sCNT}, {p.limit}")
        A(f"{L}:")
        for k, o in enumerate(offs):
            A(f"s_load_dwordx{width} s[{44+width*k}:{44+width*k+width-1}], {sp(sWS)}, s{o} glc")
        A("s_waitcnt lgkmcnt(0)")
        n = len(offs) * width // 2
        for k in range(n):
            A(f"s_cmp_eq_u64 s[{44+2*k}:{45+2*k}], s[70:71]")
            A(f"s_cbranch_scc0 {Lf}" if k < n - 1 else f"s_cbranch_scc1 {Ld}")
        A(f"{Lf}:")
        if p.hsleep: A(f"s_sleep {p.hsleep}")
        A(f"s_sub_u32 s{sCNT}, s{sCNT}, 1")
        A(f"s_cbranch_scc0 {L}")
        A(f"{Ld}:")
    def hintstore(soff, mask, stride, t):
        A(f"v_mul_u32_u24 v{t}, {stride}, v{vL}")
        A(f"s_mov_b64 exec, {hex(mask)}")
        A(f"buffer_store_short v{vTAG}, v{t}, {WS}, s{soff} offen sc1")
        A("s_mov_b64 exec, -1")
    def pubstore(data, addr, soff, extra=""):
        if not p.fast:
            A(f"buffer_store_dwordx4 {data}, {addr}, {WS}, s{soff} offen {extra} sc1"); return
        La, Lb = A.label("ps"), A.label("pe")
        A(f"s_cmp_eq_u32 s{sMODE}, 2"); A(f"s_cbranch_scc1 {La}")
        A(f"buffer_store_dwordx4 {data}, {addr}, {WS}, s{soff} offen {extra} sc1")
        A(f"s_branch {Lb}")
        A(f"{La}:")
        A(f"buffer_store_dwordx4 {data}, {addr}, {WS}, s{soff} offen {extra}")
        A(f"{Lb}:")
    def consts():
        A(f"v_and_b32 v3, 1, v{vI}")
        A(f"v_lshlrev_b32 v3, 4, v3")
        A(f"v_mov_b32 v{vSEL}, 0xffff")
        A(f"v_lshlrev_b32 v3, v3, v{vSEL}")
        A(f"v_bfe_u32 v{vSEL}, v{vI}, 1, 2")
        for d in range(4):
            A(f"v_cmp_eq_u32 vcc, {d}, v{vSEL}")
            A(f"v_cndmask_b32 v{vMASK+d}, 0, v3, vcc")
        A(f"v_lshrrev_b32 v3, 3, v{vI}")
        A(f"s_mov_b32 s{sT}, 0x02020202")
        A(f"v_mul_lo_u32 v3, v3, s{sT}")
        A(f"v_add_u32 v3, 0x01000100, v3")
        A(f"s_mov_b32 s{sT}, 0x0c0c0c0c")
        for d in range(4):
            A(f"v_bfi_b32 v{vSEL+d}, v{vMASK+d}, v3, s{sT}")
        A(f"v_lshlrev_b32 v{vST}, 5, v{vI}")
        A(f"v_lshl_add_u32 v{vST}, v{vG}, 4, v{vST}")
    def tagsetup():
        A("s_waitcnt lgkmcnt(0)")
        A(f"s_mul_i32 s{sT}, s{sTAG}, 0x9E3779B1")
        A(f"s_add_u32 s{sT}, s{sT}, 0x7F4A7C15")
        A(f"s_or_b32 s{sT}, s{sT}, 0x01010101")
        A(f"s_xor_b32 s{sTAG}, s{sTAG}, s{sT}")
        for e in range(1, 4): A(f"s_lshr_b32 s{sTAG+e}, s{sTAG}, {8*e}")
        for e in range(4): A(f"s_mov_b32 s{sSEL+e}, {hex(0x07060500 + e)}")
        A(f"v_mov_b32 v{vTAG}, s{sTAG}")
        A(f"v_lshlrev_b32 v{vTG}, 3, v{vG}")
        A(f"v_lshrrev_b32 v{vTG}, v{vTG}, v{vTAG}")
        A(f"v_and_b32 v{vTC}, 1, v{vG}")
        A(f"v_lshl_add_u32 v{vTP}, v{vI}, 1, v{vTC}")
        A(f"v_lshlrev_b32 v{vTP}, 3, v{vTP}")
        A(f"v_lshrrev_b32 v{vTP}, v{vTP}, v{vTAG}")
        A(f"v_lshlrev_b32 v{vTC}, 3, v{vI}")
        A(f"v_lshrrev_b32 v{vTC}, v{vTC}, v{vTAG}")
    def silu(regs, tmps):
        for v, t in zip(regs, tmps): A(f"v_mul_f32 v{t}, 0xbfb8aa3b, v{v}")
        for v, t in zip(regs, tmps): A(f"v_exp_f32 v{t}, v{t}")
        for v, t in zip(regs, tmps): A(f"v_add_f32 v{t}, 1.0, v{t}")
        for v, t in zip(regs, tmps): A(f"v_rcp_f32 v{t}, v{t}")
        for v, t in zip(regs, tmps): A(f"v_mul_f32 v{v}, v{v}, v{t}")
    def mfma(d, a, b, first):
        A(f"v_mfma_f32_16x16x32_bf16 {r4(d)}, {r4(a)}, {r4(b)}, {'0' if first else r4(d)}")
    def gemv8(srs, N, tmp, t0, accs, waits=None):
        def build(n):
            sr, ln = srs(n)
            d = tmp[n % len(tmp)]
            A(f"v_mov_b32_dpp v{t0+(n&1)}, v{sr} row_newbcast:{ln} {DPP}")
            for e in range(4): A(f"v_perm_b32 v{d+e}, v{t0+(n&1)}, v{t0+(n&1)}, v{vSEL+e}")
        build(0)
        for n in range(N):
            if n + 1 < N: build(n + 1)
            if waits: waits(n)
            for acc, wb in accs: mfma(acc, tmp[n % len(tmp)], wb + 4 * n, n == 0)
    vT = 16
    T1B, T2B = 168, 200
    def tail_load(k):
        if k < 8:
            A(f"buffer_load_dwordx4 {r4(T1B+4*k)}, v{vT}, {srd(R_T1)}, s{sO1} offen {nt}")
            A(f"s_add_u32 s{sO1}, s{sO1}, s{sST}")
        else:
            A(f"buffer_load_dwordx4 {r4(T1B+4*k)}, v{vT}, {srd(R_T2)}, s{sO2} offen {nt}")
            A(f"s_add_u32 s{sO2}, s{sO2}, s{sST}")

    def w1setup():
        A(f"s_mul_i32 s{sT}, s3, {144*9216}")
        A(f"s_lshl_b32 s70, s{sBLK}, 7")
        A(f"s_add_u32 s{sT}, s{sT}, s70")
        set_srd(R_T1, sT, sW1, 144 * 9216)
        A(f"v_lshrrev_b32 v3, 3, v{vI}")
        A(f"v_lshl_add_u32 v3, v3, 2, v{vG}")
        A(f"v_mul_u32_u24 v3, 9216, v3")
        A(f"v_and_b32 v{vT}, 7, v{vI}")
        A(f"v_lshl_add_u32 v{vT}, v{vT}, 4, v3")
    def w1loads(depth):
        for k in range(18):
            if k >= depth: A(f"s_waitcnt vmcnt({depth-1})")
            A(f"s_mov_b32 s{sO1}, {k*8*9216}")
            A(f"buffer_load_dwordx4 {r4(T1B+4*k)}, v{vT}, {srd(R_T1)}, s{sO1} offen {nt}")

    A(f".ASMLAUNCH @launch grid=(256,1,1) block=(512,1,1) lds={LDS_BYTES}")
    A('.amdgcn_target "amdgcn-amd-amdhsa--gfx950"')
    A(".text")
    A(f".globl {KN}")
    A(".p2align 8")
    A(f".type {KN},@function")
    A(f"{KN}:")
    stamp(0)
    if p.dbg: A("s_memrealtime s[98:99]")
    if p.stamps:
        for k in range(1, 12): A(f"s_mov_b32 s{72+2*k}, 0")
        for k in range(4): A(f"s_mov_b32 s{98+k}, 0")
    A("s_cmp_ge_u32 s2, 256")
    A("s_cbranch_scc1 L_exit")
    A("s_load_dwordx16 s[16:31], s[0:1], 0")
    A("s_load_dwordx8 s[32:39], s[0:1], 64")
    A(f"s_load_dwordx2 {sp(sOUT)}, s[0:1], 96")
    A(f"s_load_dwordx2 {sp(sWS)}, s[0:1], 112")
    A("v_lshrrev_b32 v1, 6, v0")
    A("v_and_b32 v0, 63, v0")
    A("v_readfirstlane_b32 s3, v1")
    A(f"v_lshrrev_b32 v{vG}, 4, v{vL}")
    A(f"v_and_b32 v{vI}, 15, v{vL}")
    A(f"v_mov_b32 v{vZ}, 0")
    A("v_mov_b32 v16, 0")
    A(f"s_and_b32 s{sG}, s2, 7")
    A(f"s_lshl_b32 s{sG}, s{sG}, 1")
    A(f"s_bfe_u32 s{sT}, s2, 0x10003")
    A(f"s_add_u32 s{sG}, s{sG}, s{sT}")
    A(f"s_lshr_b32 s{sJ}, s2, 4")
    A(f"s_mov_b32 s{R_WS+2}, {WSREC}")
    A(f"s_mov_b32 s{R_WS+3}, 0x20000")
    def classify():
        A(f"s_lshl_b32 s{sT}, s{sJ}, 4"); A(f"s_add_u32 s{sT}, s{sT}, s{sG}")
        A(f"s_sub_u32 s{sT}, s{sT}, {144+72}")
        A(f"s_cmp_ge_u32 s{sT}, 36"); A(f"s_cselect_b32 s{sCLS}, 3, 2")
        A(f"s_lshr_b32 s70, s{sG}, 1")
        A(f"s_and_b32 s71, s{sG}, 1")
        A(f"s_mul_i32 s{sBLK}, s70, 9"); A(f"s_add_u32 s{sBLK}, s{sBLK}, s71")
        A(f"s_cmp_eq_u32 s{sJ}, 13")
        A(f"s_cselect_b32 s{sT}, s70, s{sT}")
        A(f"s_cselect_b32 s{sCLS}, 2, s{sCLS}")
        A(f"s_lshl_b32 s70, s{sJ}, 1"); A(f"s_add_u32 s{sBLK}, s{sBLK}, s70"); A(f"s_sub_u32 s{sBLK}, s{sBLK}, 18")
        A(f"s_add_u32 s70, s70, s71")
        A(f"s_cmp_le_u32 s70, 26")
        A(f"s_cselect_b32 s{sBLK}, s{sBLK}, s{sT}")
        A(f"s_cselect_b32 s{sCLS}, 1, s{sCLS}")
        A(f"s_cmp_lt_u32 s{sJ}, 9")
        A(f"s_cselect_b32 s{sBLK}, s{sJ}, s{sBLK}")
        A(f"s_cselect_b32 s{sCLS}, 0, s{sCLS}")
    A("s_cmp_ge_u32 s3, 4")
    A("s_cbranch_scc1 L_main")

    WB = 40
    SB = 80
    G1 = 104
    if p.prio: A(f"s_setprio {p.prio}")
    A("s_cmp_eq_u32 s3, 0"); A("s_cbranch_scc1 L_c0_load")
    A("s_cmp_eq_u32 s3, 3"); A("s_cbranch_scc1 L_c3_load")
    A(f"v_lshlrev_b32 v17, 3, v{vL}")
    A(f"v_lshlrev_b32 v18, 3, v{vI}")
    A(f"v_min_u32 v15, 8, v{vI}")
    A(f"v_lshl_add_u32 v3, v15, 2, v{vG}")
    A(f"s_mul_i32 s{sT}, s{sJ}, 36")
    A(f"v_add_lshl_u32 v3, v3, s{sT}, 1")
    A(f"s_mul_i32 s{sT}, s{sJ}, {36*8192}")
    A(f"s_lshl_b32 s{sO1}, s{sG}, 9")
    A(f"s_add_u32 s{sT}, s{sT}, s{sO1}")
    A(f"s_lshl_b32 s{sO1}, s3, 8")
    A(f"s_add_u32 s{sT}, s{sT}, s{sO1}")
    A(f"s_sub_u32 s{sT}, s{sT}, 256")
    A(f"v_lshlrev_b32 v14, 13, v{vG}")
    A(f"v_lshl_add_u32 v14, v{vI}, 4, v14")
    A("s_waitcnt lgkmcnt(0)")
    set_srd(R_A, sT, sWQ, 36 * 8192)
    A(f"global_load_dwordx2 v[20:21], v17, {sp(sX)}")
    A(f"global_load_dwordx2 v[22:23], v17, {sp(sX)} offset:512")
    A(f"global_load_dwordx2 v[24:25], v18, {sp(sX)} offset:1024")
    A(f"global_load_short_d16_hi v26, v3, {sp(sX)}")
    for n in range(9):
        A(f"s_mov_b32 s{sO1}, {n*4*8192}")
        A(f"buffer_load_dwordx4 {r4(WB+4*n)}, v14, {srd(R_A)}, s{sO1} offen {nt}")
    A("s_branch L_c_bar")
    A("L_c3_load:")
    for e in range(4): A(f"v_mov_b32 v{20+e}, 0")
    A(f"v_lshlrev_b32 v3, 4, v{vI}")
    A(f"ds_write_b128 v3, v[20:23]")
    A("s_waitcnt lgkmcnt(0)")
    A("s_branch L_c_bar")
    A("L_c0_load:")
    A(f"s_lshr_b32 s70, s{sG}, 1")
    A(f"s_and_b32 s71, s{sG}, 1"); A(f"s_mul_i32 s71, s71, 9"); A(f"s_add_u32 s71, s71, s{sJ}")
    A(f"v_min_u32 v3, 8, v{vI}")
    A(f"v_lshl_add_u32 v3, v3, 3, v{vG}")
    A(f"s_mul_i32 s{sT}, s70, 72")
    A(f"v_add_lshl_u32 v17, v3, s{sT}, 1")
    A(f"s_mul_i32 s{sT}, s70, {72*6912}")
    A(f"s_lshl_b32 s{sO1}, s71, 7")
    A(f"s_add_u32 s{sT}, s{sT}, s{sO1}")
    A(f"s_mul_i32 s70, s70, 4608"); A(f"s_lshl_b32 s71, s71, 8"); A(f"s_add_u32 s70, s70, s71"); A(f"s_add_u32 s{sPUB}, s70, {MA}")
    A(f"v_lshrrev_b32 v3, 3, v{vI}")
    A(f"v_lshl_add_u32 v3, v3, 2, v{vG}")
    A(f"v_mul_u32_u24 v3, 6912, v3")
    A(f"v_and_b32 v14, 7, v{vI}")
    A(f"v_lshl_add_u32 v14, v14, 4, v3")
    A("s_waitcnt lgkmcnt(0)")
    A(f"s_cmp_ge_u32 s{sJ}, 9"); A("s_cbranch_scc1 L_c_bar")
    set_srd(R_A, sT, sWM, 72 * 6912)
    A(f"global_load_short_d16_hi v20, v17, {sp(sC)}")
    A(f"global_load_short_d16_hi v21, v17, {sp(sC)} offset:8")
    for n in range(9):
        A(f"s_mov_b32 s{sO1}, {n*8*6912}")
        A(f"buffer_load_dwordx4 {r4(WB+4*n)}, v14, {srd(R_A)}, s{sO1} offen {nt}")
    A("L_c_bar:")
    A("s_barrier")
    A(f"s_load_dword s{sTAG}, {sp(sWS)}, {EPOCH}")
    A(f"s_mov_b64 {sp(R_WS)}, {sp(sWS)}")
    stamp(1)
    classify()
    consts()
    A("s_cmp_eq_u32 s3, 3"); A("s_cbranch_scc0 L_c_n3")
    if p.cpf:
        A("s_getpc_b64 s[70:71]")
        A("L_pc:")
        A(f"s_sub_u32 s70, s70, L_pc-{KN}")
        A("s_subb_u32 s71, s71, 0")
        A("s_lshr_b32 s69, s2, 3"); A("s_lshl_b32 s69, s69, 10")
        A(f"v_lshl_add_u32 v3, v{vL}, 4, s69")
        A(f"v_min_u32 v3, L_exit-{KN}-12, v3")
        A("v_and_b32 v3, -4, v3")
        A("global_load_dwordx4 v[20:23], v3, s[70:71]")
    if p.preread:
        A(f"s_lshl_b32 s70, s{sG}, 4"); A(f"s_add_u32 s70, s70, s{sJ}"); A("s_mul_i32 s70, s70, 1152"); A(f"s_add_u32 s70, s70, {OP}")
        A(f"v_lshlrev_b32 v3, 7, v{vL}")
        A("s_mov_b64 exec, 0x1ff")
        A(f"buffer_load_dword v24, v3, {WS}, s70 offen")
        A(f"s_mul_i32 s70, s{sG}, 2304"); A(f"s_lshl_b32 s71, s{sBLK}, 8"); A("s_add_u32 s70, s70, s71"); A(f"s_add_u32 s70, s70, {AP}")
        A(f"s_add_u32 s71, s71, {MB}")
        A(f"s_cmp_eq_u32 s{sCLS}, 2"); A("s_cselect_b32 s70, s71, s70")
        A(f"s_mul_i32 s71, s{sBLK}, 2304"); A(f"s_add_u32 s71, s71, {FP}")
        A(f"s_cmp_eq_u32 s{sCLS}, 1"); A("s_cselect_b32 s70, s71, s70")
        A("s_cselect_b32 exec_lo, 0x3ffff, 3")
        A(f"s_cmp_eq_u32 s{sCLS}, 3"); A(f"s_cselect_b32 s70, {AP}, s70")
        A(f"buffer_load_dword v25, v3, {WS}, s70 offen")
        if p.preread >= 2:
            A(f"s_lshl_b32 s70, s{sG}, 4"); A(f"s_add_u32 s70, s70, s{sJ}"); A("s_lshl_b32 s70, s70, 10"); A(f"s_add_u32 s70, s70, {QP}")
            A("s_mov_b64 exec, 0xff")
            A(f"buffer_load_dword v26, v3, {WS}, s70 offen")
            A("s_lshl_b32 s70, s2, 8"); A(f"s_min_u32 s70, s70, {143*256}"); A(f"s_add_u32 s70, s70, {MA}")
            A("s_mov_b64 exec, 3")
            A(f"buffer_load_dword v27, v3, {WS}, s70 offen")
        A("s_mov_b64 exec, -1")
    tagsetup()
    if p.fast:
        A("s_getreg_b32 s26, hwreg(HW_REG_XCC_ID)"); A("s_and_b32 s26, s26, 15")
        A(f"s_and_b32 s70, s{sTAG}, 0xfffffff0"); A("s_or_b32 s26, s26, s70")
        A("v_mov_b32 v21, s26")
        A(f"s_lshl_b32 s70, s{sG}, 11"); A(f"s_lshl_b32 s71, s{sJ}, 2"); A("s_add_u32 s70, s70, s71"); A(f"s_add_u32 s70, s70, {HINT2}")
        A(f"v_lshlrev_b32 v3, 7, v{vL}")
        A("s_mov_b64 exec, 0xffff")
        A(f"buffer_store_dword v21, v3, {WS}, s70 offen sc1")
        A("s_mov_b64 exec, -1")
    if p.hint:
        A(f"s_mul_i32 s64, s{sJ}, 36"); A("s_add_u32 s65, s64, 35"); A("s_lshr_b32 s64, s64, 6"); A("s_lshr_b32 s65, s65, 6")
        A(f"s_mul_i32 s69, s{sG}, 18")
        for r in (64, 65):
            A(f"s_add_u32 s{r}, s{r}, s69"); A(f"s_lshl_b32 s{r}, s{r}, 7"); A(f"s_add_u32 s{r}, s{r}, {HINT1}"); A(f"s_add_u32 s{r+2}, s{r}, {9*128}")
        hintwait([64, 65, 66, 67], 4)
    ldssignal(CNT_H1, 21)
    stamp(2)
    if p.fast:
        A(f"s_lshl_b32 s64, s{sG}, 4"); A(f"s_add_u32 s64, s64, s{sJ}"); A("s_lshl_b32 s64, s64, 7"); A(f"s_add_u32 s64, s64, {HINT2}")
        L = A.label("iw"); Lf = A.label("if"); Ld = A.label("id")
        A(f"s_mov_b32 s{sCNT}, {p.limit}")
        A(f"{L}:")
        A(f"s_load_dwordx16 s[44:59], {sp(sWS)}, s64 glc")
        A(f"s_mov_b32 s{sMODE}, 2")
        A("s_waitcnt lgkmcnt(0)")
        for k in range(16):
            A(f"s_xor_b32 s65, s{44+k}, s26")
            A(f"s_cselect_b32 s{sMODE}, 1, s{sMODE}")
            A("s_cmp_ge_u32 s65, 16")
            A(f"s_cbranch_scc1 {Lf}")
        A(f"s_branch {Ld}")
        A(f"{Lf}:")
        A(f"s_mov_b32 s{sMODE}, 1")
        A("s_sleep 2")
        A(f"s_sub_u32 s{sCNT}, s{sCNT}, 1")
        A(f"s_cbranch_scc0 {L}")
        A(f"{Ld}:")
        stamp(3)
    else:
        A(f"s_mov_b32 s{sMODE}, 1")
    A(f"v_mov_b32 v21, s{sMODE}")
    A("s_mov_b64 exec, 1")
    A(f"ds_add_u32 v{vZ}, v21 offset:{CNT_MODE}")
    A("s_mov_b64 exec, -1")
    if p.hint and not p.fast:
        A(f"s_lshl_b32 s64, s{sG}, 4"); A(f"s_add_u32 s64, s64, s{sJ}"); A("s_lshl_b32 s64, s64, 7"); A(f"s_add_u32 s64, s64, {HINT2}")
        hintwait([64], 8)
        ldssignal(CNT_H2, 21)
        stamp(3)
    A("s_branch L_c_s2w")
    A("L_c_n3:")
    tagsetup()
    A("s_cmp_lg_u32 s3, 0"); A("s_cbranch_scc1 L_c_wq")
    if p.c0e:
        A(f"s_cmp_lg_u32 s{sCLS}, 1"); A("s_cbranch_scc1 L_c0_nm")
        A("s_setprio 0")
        w1setup()
        w1loads(p.c0e)
        A("s_branch L_c_s2w")
        A("L_c0_nm:")
    A(f"s_cmp_lg_u32 s{sCLS}, 0"); A("s_cbranch_scc1 L_c_s2w")
    A("s_waitcnt vmcnt(9)")
    silu([20, 21], [22, 23])
    A("v_cvt_pk_bf16_f32 v20, v20, v21")
    gemv8(lambda n: (20, n), 9, [SB, SB + 4, SB + 8], 22, [(24, WB)], waits=lambda n: A(f"s_waitcnt vmcnt({8-n})"))
    stamp(2)
    halfadd([24], [28])
    tag1(24)
    A("s_mov_b64 exec, 0x00ff00ff")
    A(f"buffer_store_dwordx4 v[24:27], v{vST}, {WS}, s{sPUB} offen sc1")
    if p.hint:
        A(f"s_and_b32 s70, s{sG}, 1"); A("s_mul_i32 s70, s70, 9"); A(f"s_add_u32 s70, s70, s{sJ}"); A("s_lshl_b32 s70, s70, 7")
        A(f"s_and_b32 s71, s{sG}, 14"); A("s_add_u32 s70, s70, s71"); A(f"s_add_u32 s70, s70, {HINT1}")
        A("s_mov_b64 exec, -1")
        hintstore(70, 0xffff, 18 * 128, 3)
    A("s_mov_b64 exec, -1")
    stamp(3)
    A("s_branch L_c_s2w")
    A("L_c_wq:")
    A("s_waitcnt vmcnt(9)")
    for k in range(6):
        A(f"v_lshlrev_b32 v{28+2*k}, 16, v{20+k}")
        A(f"v_and_b32 v{29+2*k}, 0xffff0000, v{20+k}")
    A(f"v_cmp_gt_u32 vcc, 16, v{vL}")
    for k in range(8, 12): A(f"v_cndmask_b32 v{28+k}, 0, v{28+k}, vcc")
    A("v_pk_add_f32 v[20:21], v[28:29], v[30:31]")
    for k in range(2, 6): A(f"v_pk_add_f32 v[20:21], v[20:21], {r2(28+2*k)}")
    A("v_add_f32 v20, v20, v21")
    wavesum_s([20], [70])
    A(f"v_mov_b32 v20, {INV576}")
    A(f"v_mul_f32 v20, s70, v20")
    for k in range(12): A(f"v_sub_f32 v{28+k}, v{28+k}, v20")
    for k in range(8, 12): A(f"v_cndmask_b32 v{28+k}, 0, v{28+k}, vcc")
    A("v_pk_mul_f32 v[22:23], v[28:29], v[28:29]")
    for k in range(1, 6): A(f"v_pk_fma_f32 v[22:23], {r2(28+2*k)}, {r2(28+2*k)}, v[22:23]")
    A("v_add_f32 v22, v22, v23")
    wavesum_s([22], [70])
    A(f"v_mov_b32 v22, {INV576}")
    A(f"v_mul_f32 v22, s70, v22")
    bf16r(20, 20); bf16r(22, 22)
    A(f"v_add_f32 v22, {EPS}, v22")
    bf16r(22, 22)
    A("v_sqrt_f32 v22, v22")
    bf16r(22, 22)
    A("v_sub_f32 v26, v26, v20")
    bf16r(26, 26)
    A("v_rcp_f32 v23, v22")
    A("v_mul_f32 v21, v26, v23")
    A("v_fma_f32 v24, -v21, v22, v26")
    A("v_fma_f32 v21, v24, v23, v21")
    bf16r(26, 21)
    A(f"v_mul_u32_u24 v3, 4608, v{vG}")
    A(f"v_lshl_add_u32 v3, v15, 4, v3")
    A(f"v_add_lshl_u32 v15, v15, s{sJ}, 3")
    A(f"v_lshrrev_b32 v15, v15, v{vTAG}")
    A(f"s_mul_i32 s70, s{sJ}, 144"); A(f"s_add_u32 s70, s70, {MA}"); A(f"s_add_u32 s71, s70, 18432")
    A(f"s_lshl_b32 s44, s{sG}, 4"); A(f"s_add_u32 s44, s44, s{sJ}"); A(f"s_lshl_b32 s44, s44, 10")
    A(f"s_lshl_b32 s45, s3, 9"); A("s_add_u32 s44, s44, s45"); A(f"s_add_u32 s{sPUB}, s44, {QP-512}")
    A("s_waitcnt vmcnt(0)")
    stamp(2)
    if p.diag: ldswait(20, 4, 20)
    ldswait(CNT_H1, 1, 20)
    def s1set(b):
        def epi():
            addgran(28, b, b + 4); addgran(32, b + 8, b + 12)
        return ([f"buffer_load_dwordx4 {r4(b+4*a)}, v3, {WS}, s{70+(a&1)} offen offset:{2304*(a>>1)} sc1" for a in range(4)],
                [(b + 4 * a, "v15") for a in range(4)], epi)
    poll([s1set(G1 + 16 * i) for i in range(p.k1)], 20, p.g1, 0)
    stamp(3)
    redscat([28, 32])
    A("v_cvt_pk_bf16_f32 v28, v28, v32")
    A("v_and_b32 v32, 0xffff0000, v28")
    A("v_lshlrev_b32 v28, 16, v28")
    A(f"v_add_f32 v32, 1.0, v32")
    bf16r(32, 32)
    A(f"v_mul_f32 v26, v26, v32")
    bf16r(26, 26)
    A(f"v_add_f32 v26, v26, v28")
    A("v_cvt_pk_bf16_f32 v26, v26, v26")
    def bld(n):
        for d in range(4): A(f"v_and_b32_dpp v{SB+4*(n%3)+d}, v26, v{vMASK+d} row_newbcast:{n} {DPP}")
    bld(0)
    for n in range(9):
        if n < 8: bld(n + 1)
        mfma(28, SB + 4 * (n % 3), WB + 4 * n, n == 0)
    ldswait(CNT_MODE, 1, 20)
    A(f"v_readfirstlane_b32 s{sMODE}, v20")
    tag1(28)
    A("s_mov_b32 exec_hi, 0")
    pubstore("v[28:31]", f"v{vST}", sPUB)
    A("s_mov_b64 exec, -1")
    if p.hint and not p.fast:
        ldssignal(CNT_P, 21, rtn=True, last=1)
        A("s_cbranch_vccz L_c_s2w")
        A(f"s_lshl_b32 s70, s{sG}, 11"); A(f"s_lshl_b32 s71, s{sJ}, 1"); A("s_add_u32 s70, s70, s71"); A(f"s_add_u32 s70, s70, {HINT2}")
        hintstore(70, 0xffff, 128, 3)
    else:
        ldssignal(CNT_P, 21)
    stamp(4)
    A("L_c_s2w:")
    A(f"v_lshlrev_b32 v3, 10, v{vG}")
    A(f"v_lshl_add_u32 v3, v{vI}, 4, v3")
    A(f"s_lshl_b32 s70, s{sG}, 14"); A("s_lshl_b32 s71, s3, 8"); A("s_add_u32 s70, s70, s71"); A(f"s_add_u32 s44, s70, {QP}")
    for a in range(1, 4): A(f"s_add_u32 s{44+a}, s44, {4096*a}")
    A(f"v_lshl_add_u32 v14, v{vI}, 2, v{vG}")
    A(f"s_lshl_b32 s70, s3, 6")
    A(f"v_add_lshl_u32 v14, v14, s70, 1")
    if p.hint and not p.fast: ldswait(CNT_H2, 1, 20)
    else: ldswait(CNT_P, 2, 20)
    G2 = 40
    def s2set(b):
        return ([f"buffer_load_dwordx4 {r4(b+4*a)}, v3, {WS}, s{44+a} offen sc1" for a in range(4)],
                [(b + 4 * a, f"v{vTC}") for a in range(4)], lambda: sum4(28, b))
    poll([s2set(G2 + 16 * i) for i in range(p.k2)], 20, p.g2, 1)
    stamp(5)
    redscat([28])
    A(f"v_cvt_pk_bf16_f32 v20, v28, v28")
    A(f"ds_write_b16 v14, v20 offset:{L_Q}")
    ldssignal(CNT_Q, 21)
    stamp(6)
    A(f"s_cmp_eq_u32 s{sCLS}, 1"); A("s_cbranch_scc1 L_c_m")
    A("s_cmp_lg_u32 s3, 3"); A("s_cbranch_scc1 L_c_end")
    if p.hint and not p.fast:
        A(f"s_cmp_lg_u32 s{sCLS}, 0"); A("s_cbranch_scc1 L_c_end")
        A(f"s_add_u32 s64, s64, {HINT3-HINT2}")
        hintwait([64], 8)
        ldssignal(CNT_H3, 21)
        stamp(4)
    A(f"s_mov_b32 s{sBLK}, s{sG}")
    A(f"s_cmp_eq_u32 s{sJ}, 8"); A("s_cbranch_scc1 L_red")
    A(f"s_add_u32 s{sBLK}, s{sG}, 16")
    A(f"s_cmp_lg_u32 s{sJ}, 7"); A("s_cbranch_scc1 L_c_end")
    A(f"s_cmp_lt_u32 s{sG}, 2"); A("s_cbranch_scc1 L_red")
    A("L_c_end:")
    endwave()

    A("L_red:")
    A(f"v_and_b32 v14, 7, v{vI}")
    A(f"v_lshl_add_u32 v15, v14, 2, v{vG}")
    A(f"s_lshl_b32 s70, s{sBLK}, 5")
    A(f"v_add_u32 v15, s70, v15")
    A(f"v_lshlrev_b32 v18, 1, v15")
    A(f"global_load_short_d16_hi v24, v18, {sp(sX)}")
    A(f"global_load_short_d16_hi v25, v18, {sp(sB2)}")
    A(f"v_lshlrev_b32 v15, 2, v15")
    A(f"v_lshrrev_b32 v3, 3, v{vL}")
    A(f"v_mul_u32_u24 v3, 2304, v3")
    A(f"v_lshl_add_u32 v3, v14, 4, v3")
    A(f"s_lshl_b32 s70, s{sBLK}, 7")
    A(f"v_add_u32 v3, s70, v3")
    A(f"s_mov_b32 s44, {AP}"); A(f"s_mov_b32 s45, {AP+18432}"); A(f"s_mov_b32 s46, {MB}"); A(f"s_mov_b32 s47, {MB+1728*4}")
    ldswait(CNT_W, 4, 20)
    stamp(7)
    poll([([f"buffer_load_dwordx4 {r4(40+4*a)}, v3, {WS}, s{44+a} offen sc1" for a in range(2)] +
           [f"buffer_load_dword v26, v15, {WS}, s46 offen sc1", f"buffer_load_dword v27, v15, {WS}, s47 offen sc1"],
           [(40, f"v{vTC}"), (44, f"v{vTC}"), (26, f"v{vTG}"), (27, f"v{vTG}")], lambda: None)], 20, 0, 2)
    stamp(8)
    addgran(40, 40, 44)
    redscat([40])
    A(f"v_add_f32_dpp v40, v40, v40 row_ror:8 {DPP}")
    A("v_and_b32 v26, 0xffff0000, v26")
    A("v_and_b32 v27, 0xffff0000, v27")
    bf16r(40, 40)
    A("v_mul_f32 v40, v40, v26")
    bf16r(40, 40)
    A("v_add_f32 v24, v24, v40")
    bf16r(24, 24)
    for a in range(9): A(f"s_mov_b32 s{44+a}, {FP+18432*a}")
    def s5set(b):
        def epi():
            addgran(b, b, b + 32); sum4(28, b); sum4(32, b + 16); addgran(28, 28, 32)
        return ([f"buffer_load_dwordx4 {r4(b+4*a)}, v3, {WS}, s{44+a} offen sc1" for a in range(9)],
                [(b + 4 * a, f"v{vTC}") for a in range(9)], epi)
    poll([s5set(40 + 36 * i) for i in range(p.k5)], 20, p.g5, 3)
    stamp(9)
    redscat([28])
    A(f"v_add_f32_dpp v28, v28, v28 row_ror:8 {DPP}")
    bf16r(28, 28)
    A("v_add_f32 v28, v28, v25")
    bf16r(28, 28)
    A("v_mul_f32 v28, v28, v27")
    bf16r(28, 28)
    A("v_add_f32 v28, v28, v24")
    A("v_cvt_pk_bf16_f32 v28, v28, v28")
    A("s_mov_b32 exec_lo, 0x00ff00ff"); A("s_mov_b32 exec_hi, 0x00ff00ff")
    A(f"global_store_short v18, v28, {sp(sOUT)}")
    A(f"s_cmp_lg_u32 s{sBLK}, 0"); A("s_cbranch_scc1 L_red_end")
    A("s_mov_b64 exec, 1")
    A(f"global_store_dword v{vZ}, v{vTAG}, {sp(sWS)} offset:{EPOCH} sc1")
    A("L_red_end:")
    if p.dbg:
        A("s_memrealtime s[96:97]")
        A("s_load_dwordx2 s[70:71], s[0:1], 104")
        A("s_waitcnt lgkmcnt(0)")
        A("s_sub_u32 s96, s96, s98")
        A("s_mov_b64 exec, 1")
        A(f"s_lshl_b32 s97, s{sBLK}, 2")
        A("v_mov_b32 v3, s97")
        A("v_mov_b32 v4, s96")
        A("global_store_dword v3, v4, s[70:71]")
    stamp(10)
    endwave()

    A("L_c_m:")
    if p.c0e:
        A("s_cmp_eq_u32 s3, 0"); A("s_cbranch_scc1 L_mphase")
    w1setup()
    if p.k2 > 1: A("s_waitcnt vmcnt(0)")
    if p.ctrig:
        A("s_setprio 0")
        ldswait(CNT_PUB, 1, 20)
    w1loads(p.DC)
    A("s_branch L_mphase")

    KB, VB, OA = 40, 104, 240
    vK, vV, QA, QB = 14, 15, 20, 24
    A("L_main:")
    A(f"s_sub_u32 s{sW}, s3, 4")
    A(f"s_lshl_b32 s{sT}, s{sG}, 23")
    KVSH = 16 if p.inter else 12
    A(f"s_lshl_b32 s70, s{sJ}, {28-KVSH}")
    A(f"s_add_u32 s{sT}, s{sT}, s70")
    A(f"s_add_u32 s{sT}, s{sT}, 7340032")
    A(f"s_lshl_b32 s70, s{sW}, 10")
    A(f"v_lshlrev_b32 v{vK}, 6, v{vI}")
    A(f"v_lshl_add_u32 v{vK}, v{vG}, 4, v{vK}")
    A(f"v_add_u32 v{vK}, s70, v{vK}")
    A(f"v_lshl_add_u32 v{vV}, v{vL}, 4, s70")
    if p.rot:
        A(f"s_mul_i32 s{sROT}, s2, {p.rot}"); A("s_lshr_b32 s70, s2, 4"); A(f"s_add_u32 s{sROT}, s{sROT}, s70")
        A(f"s_lshl_b32 s{sROT}, s{sROT}, {KVSH}"); A(f"s_and_b32 s{sROT}, s{sROT}, {hex((16<<KVSH)-1)}")
    else:
        A(f"s_mov_b32 s{sROT}, 0")
    A("s_waitcnt lgkmcnt(0)")
    set_srd(R_A, sT, sK, (15 << KVSH) + 4096)
    set_srd(R_B, sT, sV, (15 << KVSH) + 4096)
    A("s_barrier")
    stamp(1)
    def tail_setup():
        LM, LB_, LE = A.label("tM"), A.label("tB"), A.label("tE")
        sSA, sHA = 70, 71
        A(f"s_cmp_eq_u32 s{sCLS}, 2"); A(f"s_cbranch_scc1 {LB_}")
        A(f"s_mov_b32 s{sST}, 4608")
        A(f"s_mov_b32 s{sSA}, 1152"); A(f"s_mov_b32 s{sHA}, {32*1152}")
        A(f"s_cmp_eq_u32 s{sCLS}, 1"); A(f"s_cbranch_scc1 {LM}")
        A(f"s_lshl_b32 s{sT}, s{sG}, 2")
        A(f"s_add_u32 s{sT}, s{sT}, s{sW}")
        A(f"s_mul_i32 s{sT}, s{sT}, {64*1152}")
        A(f"s_lshl_b32 s{sO1}, s{sJ}, 7")
        A(f"s_add_u32 s{sT}, s{sT}, s{sO1}")
        set_srd(R_T1, sT, sWO, 64 * 1152)
        set_srd(R_T2, sT, sWO, 0)
        A(f"s_cmp_eq_u32 s{sCLS}, 0")
        A(f"s_cselect_b32 s{R_T1+2}, s{R_T1+2}, 0")
        A(f"s_branch {LE}")
        A(f"{LM}:")
        A(f"s_mul_i32 s{sT}, s{sBLK}, {64*1152}")
        A(f"s_lshl_b32 s{sO1}, s{sW}, 7")
        A(f"s_add_u32 s{sT}, s{sT}, s{sO1}")
        set_srd(R_T1, sT, sW2, 64 * 1152)
        A(f"s_add_u32 s{sT}, s{sT}, 512")
        set_srd(R_T2, sT, sW2, 64 * 1152)
        A(f"s_branch {LE}")
        A(f"{LB_}:")
        A(f"s_mul_i32 s{sT}, s{sW}, {144*6912}")
        A(f"s_lshl_b32 s{sO1}, s{sBLK}, 7")
        A(f"s_add_u32 s{sT}, s{sT}, s{sO1}")
        A(f"s_add_u32 s{sT}, s{sT}, 2304")
        set_srd(R_T1, sT, sWM, 64 * 6912)
        A(f"s_add_u32 s{sT}, s{sT}, {64*6912}")
        set_srd(R_T2, sT, sWM, 80 * 6912)
        A(f"s_mov_b32 s{sST}, {8*6912}")
        A(f"s_mov_b32 s{sSA}, 6912"); A(f"s_mov_b32 s{sHA}, {4*6912}")
        A(f"{LE}:")
        A(f"v_and_b32 v3, 7, v{vI}")
        A(f"v_lshlrev_b32 v3, 4, v3")
        A(f"v_lshrrev_b32 v18, 3, v{vI}")
        A(f"v_mad_u32_u24 v{vT}, v{vG}, s{sSA}, v3")
        A(f"v_mad_u32_u24 v{vT}, v18, s{sHA}, v{vT}")
        A(f"s_mov_b32 s{sO1}, 0"); A(f"s_mov_b32 s{sO2}, 0")
    seq = []
    ne = 0
    for n in range(32):
        seq.append(("kv", n))
        if n + 1 >= p.epos and (n + 1 - p.epos) % p.estep == 0:
            for _ in range(p.E if p.estep == 1 and False else 1):
                if ne < p.E: seq.append(("e", ne)); ne += 1
    assert ne == p.E
    if p.EB2:
        assert p.E == 0
        seq = []
        for n in range(32):
            seq.append(("kv", n))
            if n >= 8 and (n - 8) % 3 == 0 and (n - 8) // 3 < 8: seq.append(("b", (n - 8) // 3))
    lastk = max(i for i, x in enumerate(seq) if x == ("kv", 15))
    vpos = [seq.index(("kv", 16 + n)) for n in range(16)]
    for idx, (kind, n) in enumerate(seq):
        if idx >= p.D and idx < len(seq) - p.X:
            if p.DW and idx > p.D + 4:
                Lk = A.label("dw")
                A(f"s_waitcnt vmcnt({p.DW-1})")
                A(f"s_cbranch_vccnz {Lk}")
                A(f"s_waitcnt vmcnt({p.D-1})")
                A(f"{Lk}:")
            else:
                A(f"s_waitcnt vmcnt({p.D-1})")
        if p.pause1 and idx == p.pause1: ldswait(CNT_H1, 1, 30)
        if p.pause2 and idx == p.pause2: ldswait(CNT_H2, 1, 30)
        if kind == "b":
            if n == 0:
                A(f"s_mov_b32 s26, s{R_T2+2}")
                A(f"s_cmp_eq_u32 s{sCLS}, 2"); A(f"s_cselect_b32 s{R_T2+2}, s{R_T2+2}, 0")
            tail_load(8 + n)
            if n == 7:
                A(f"s_mov_b32 s{R_T2+2}, s26")
                A(f"s_cmp_eq_u32 s{sCLS}, 2"); A(f"s_cselect_b32 s{sO2}, s{sO2}, 0")
            continue
        if kind == "e":
            if n == 0 and not p.EB and p.EM:
                A(f"s_mov_b32 s19, s{R_T1+2}")
                A(f"s_cmp_eq_u32 s{sCLS}, 2"); A(f"s_cselect_b32 s{R_T1+2}, 0, s{R_T1+2}")
            if n == p.EM:
                A(f"s_mov_b32 s26, s{R_T1+2}"); A(f"s_mov_b32 s27, s{sO1}")
                A(f"s_cmp_eq_u32 s{sCLS}, 0"); A(f"s_cselect_b32 s{R_T1+2}, s{R_T1+2}, 0")
            tail_load(n)
            if n == p.E - 1 and p.EM < p.E:
                A(f"s_mov_b32 s{R_T1+2}, s26"); A(f"s_mov_b32 s{sO1}, s27")
            continue
        if n < 16: A(f"buffer_load_dwordx4 {r4(KB+4*n)}, v{vK}, {srd(R_A)}, s{sROT} offen {nt}")
        else: A(f"buffer_load_dwordx4 {r4(VB+4*(n-16))}, v{vV}, {srd(R_B)}, s{sROT} offen {nt}")
        A(f"s_add_u32 s{sROT}, s{sROT}, {1<<KVSH}"); A(f"s_and_b32 s{sROT}, s{sROT}, {hex((16<<KVSH)-1)}")
        if n == p.D - 1:
            A(f"s_load_dword s{sTAG}, {sp(sWS)}, {EPOCH}")
            A(f"s_mov_b64 {sp(R_WS)}, {sp(sWS)}")
            classify()
            consts()
            tail_setup()
        if n == p.D + 3:
            tagsetup()
            A(f"v_and_b32 v3, 3, v{vI}")
            A(f"v_lshl_add_u32 v3, v3, 2, v{vG}")
            A(f"v_lshlrev_b32 v3, 4, v3")
            A(f"v_lshrrev_b32 v18, 3, v{vI}")
            A(f"v_lshl_add_u32 v3, v18, 8, v3")
            A(f"v_add_u32 v3, {L_Q}, v3")
            A(f"v_and_b32 v19, 4, v{vI}")
            A(f"v_cmp_eq_u32 vcc, 0, v19")
            A(f"v_mov_b32 v19, {L_ZERO}")
            A(f"v_cndmask_b32 v28, v19, v3, vcc")
            A(f"v_cndmask_b32 v29, v3, v19, vcc")
            A(f"s_lshl_b32 s70, s{sW}, 2")
            A(f"v_lshl_add_u32 v19, v18, 4, s70")
            A(f"v_lshrrev_b32 v17, 1, v{vG}")
            A(f"v_lshlrev_b32 v17, 4, v17")
            A(f"s_lshl_b32 s70, s{sG}, 4"); A(f"s_add_u32 s70, s70, s{sJ}"); A("s_mul_i32 s70, s70, 1152"); A(f"s_add_u32 s{sPUB}, s70, {OP}")
            A(f"v_and_b32 v3, 1, v{vG}")
            A(f"v_lshlrev_b32 v18, 5, v17")
            A(f"v_lshl_add_u32 v18, v3, 4, v18")
            A(f"v_lshl_add_u32 v18, v{vI}, 5, v18")
            if p.DW:
                A(f"s_cmp_le_u32 s{sCLS}, {1 if p.EM else 0}"); A("s_cselect_b64 vcc, -1, 0")
    stamp(2)
    if p.diag:
        A("s_waitcnt vmcnt(0)")
        stamp(11)
        ldssignal(20, 30)
    later = list(range(8, 16)) + list(range(min(p.EM, p.E), 8))
    if p.E == 0: later = list(range(16))
    for k in range(p.PRE): tail_load(later[k])
    for k, m in ((44, 0x22222222), (46, 0x44444444), (48, 0x88888888)):
        A(f"s_mov_b32 s{k}, {hex(m)}"); A(f"s_mov_b32 s{k+1}, {hex(m)}")
    A(f"s_mov_b32 s70, 0x3db504f3")
    A(f"s_mov_b32 s71, {hex(LOG2E)}")
    ldswait(CNT_Q, 4, 30)
    stamp(3)
    A(f"ds_read_b128 {r4(QA)}, v28")
    A(f"ds_read_b128 {r4(QB)}, v29")
    A(f"s_waitcnt vmcnt({len(seq)-1-lastk+p.PRE}) lgkmcnt(1)")
    T = [KB + 4 * (8 * r + u) for r in range(2) for u in range(4)]
    for t in T: A(f"v_mfma_f32_16x16x32_bf16 {r4(t)}, {r4(t)}, {r4(QA)}, 0")
    A("s_waitcnt lgkmcnt(0)")
    for t in T: A(f"v_mfma_f32_16x16x32_bf16 {r4(t)}, {r4(t+16)}, {r4(QB)}, {r4(t)}")
    for r in range(2):
        for t in T[4*r:4*r+4]: A(f"v_mov_b32_dpp v{t}, v{t} quad_perm:[0,0,0,0] {DPP}")
        for e in range(1, 4):
            for t in T[4*r:4*r+4]: A(f"v_add_f32_dpp v{t}, v{t+e}, v{t} quad_perm:[{e},{e},{e},{e}] {DPP}")
    PR = 30
    for r in range(2): A(f"v_cndmask_b32 v{PR+r}, v{T[4*r]}, v{T[4*r+1]}, s[44:45]")
    for r in range(2): A(f"v_cndmask_b32 v{PR+r}, v{PR+r}, v{T[4*r+2]}, s[46:47]")
    for r in range(2): A(f"v_cndmask_b32 v{PR+r}, v{PR+r}, v{T[4*r+3]}, s[48:49]")
    A("v_cvt_pk_bf16_f32 v32, v30, v31")
    A("v_lshlrev_b32 v30, 16, v32"); A("v_and_b32 v31, 0xffff0000, v32")
    A("v_pk_mul_f32 v[30:31], v[30:31], s[70:71] op_sel_hi:[1,0]")
    A("v_cvt_pk_bf16_f32 v32, v30, v31")
    A("v_lshlrev_b32 v30, 16, v32"); A("v_and_b32 v31, 0xffff0000, v32")
    A("v_max_f32 v32, v30, v31")
    for ctl in ("quad_perm:[1,0,3,2]", "quad_perm:[2,3,0,1]", "row_half_mirror"):
        A(f"v_max_f32_dpp v32, v32, v32 {ctl} {DPP}")
    rowsall("v_max_f32", [32], [33])
    A("v_pk_add_f32 v[30:31], v[30:31], v[32:33] op_sel_hi:[1,0] neg_lo:[0,1] neg_hi:[0,1]")
    A(f"ds_write_b32 v19, v32 offset:{L_MAX}")
    A("v_pk_mul_f32 v[30:31], v[30:31], s[70:71] op_sel:[0,1] op_sel_hi:[1,1]")
    A("v_exp_f32 v30, v30"); A("v_exp_f32 v31, v31")
    A("v_add_f32 v33, v30, v31")
    A("v_cvt_pk_bf16_f32 v30, v30, v30"); A("v_cvt_pk_bf16_f32 v31, v31, v31")
    A(f"v_add_f32_dpp v33, v33, v33 quad_perm:[1,0,3,2] {DPP}")
    A(f"v_mov_b32_dpp v34, v30 row_half_mirror {DPP}")
    A(f"v_mov_b32_dpp v35, v31 row_half_mirror {DPP}")
    A(f"v_add_f32_dpp v33, v33, v33 quad_perm:[2,3,0,1] {DPP}")
    def pbuild(n):
        r, k = n >> 3, n & 7
        for d in range(4):
            if (k >> 2) == (d >> 1): src, q = 30 + r, k & 3
            else: src, q = 34 + r, (7 - k) & 3
            A(f"v_and_b32_dpp v{KB+4*n+d}, v{src}, v{vMASK+d} quad_perm:[{q},{q},{q},{q}] {DPP}")
    pbuild(0)
    A(f"v_add_f32_dpp v33, v33, v33 row_half_mirror {DPP}")
    pbuild(1)
    rowsall("v_add_f32", [33], [36])
    A(f"ds_write_b32 v19, v33 offset:{L_LB}")
    ldssignal(CNT_L, 36)
    for n in range(2, 16): pbuild(n)
    stamp(4)
    A(f"s_lshl_b32 s70, s{sW}, 2")
    A(f"v_add_u32 v3, s70, v17")
    ldswait(CNT_L, 4, 36)
    A(f"ds_read_b128 v[20:23], v17 offset:{L_MAX}")
    A(f"ds_read_b128 v[24:27], v17 offset:{L_LB}")
    A(f"ds_read_b32 v36, v3 offset:{L_MAX}")
    A(f"ds_read_b32 v37, v{vZ} offset:{CNT_MODE}")
    A("s_waitcnt lgkmcnt(0)")
    A(f"v_readfirstlane_b32 s{sMODE}, v37")
    A("v_max3_f32 v32, v20, v21, v22"); A("v_max_f32 v32, v32, v23")
    for v in (20, 21, 22, 23, 36): A(f"v_sub_f32 v{v}, v{v}, v32")
    for v in (20, 21, 22, 23, 36): A(f"v_mul_f32 v{v}, s71, v{v}")
    for v in (20, 21, 22, 23, 36): A(f"v_exp_f32 v{v}, v{v}")
    A("v_mul_f32 v33, v20, v24")
    for e in range(1, 4): A(f"v_fmac_f32 v33, v{20+e}, v{24+e}")
    A("v_permlane32_swap_b32 v32, v34")
    A("v_permlane32_swap_b32 v33, v35")
    tag4(32)
    A(f"s_lshl_b32 s70, s{sW}, 10")
    A(f"v_lshlrev_b32 v20, 4, v{vL}")
    A(f"v_add_u32 v19, s70, v20")
    issued = p.PRE
    if p.mprio: A(f"s_setprio {p.mprio}")
    for n in range(16):
        A(f"s_waitcnt vmcnt({len(seq)-1-vpos[n]+issued})")
        mfma(OA, KB + 4 * n, VB + 4 * n, n == 0)
        want = min(8, max(p.PRE, p.D2 - 15 + n))
        while issued < want:
            tail_load(later[issued]); issued += 1
    stamp(5)
    A(f"v_pk_mul_f32 {r2(OA)}, {r2(OA)}, v[36:37] op_sel_hi:[1,0]")
    A(f"v_pk_mul_f32 {r2(OA+2)}, {r2(OA+2)}, v[36:37] op_sel_hi:[1,0]")
    A(f"ds_write_b128 v19, {r4(OA)} offset:{L_OB}")
    ldssignal(CNT_O, 26, rtn=True)
    A("s_cbranch_vccz L_m_pub_done")
    for w in range(4): A(f"ds_read_b128 {r4(KB+4*w)}, v20 offset:{L_OB+1024*w}")
    A("s_waitcnt lgkmcnt(0)")
    sum4(KB, KB)
    tag1(KB)
    pubstore(r4(KB), "v18", sPUB)
    A("s_mov_b64 exec, 1")
    pubstore("v[32:35]", f"v{vZ}", sPUB, "offset:1024")
    A("s_mov_b64 exec, -1")
    if p.hint and not p.fast:
        A(f"s_lshl_b32 s70, s{sG}, 11"); A(f"s_lshl_b32 s71, s{sJ}, 1"); A("s_add_u32 s70, s70, s71"); A(f"s_add_u32 s70, s70, {HINT3}")
        hintstore(70, 0x1ff, 128, 3)
    ldssignal(CNT_PUB, 26)
    A("L_m_pub_done:")
    if p.mprio: A("s_setprio 0")
    stamp(6)
    A(f"s_cmp_eq_u32 s{sCLS}, 0"); A("s_cbranch_scc1 L_wphase")
    A(f"s_cmp_eq_u32 s{sCLS}, 3"); A("s_cbranch_scc1 L_m_end")
    if p.ctrig: ldswait(CNT_PUB, 1, 26)
    rest = later[issued:]
    common = [k for k in rest if k < 8] if p.E == 0 else rest
    t2 = [k for k in rest if k >= 8] if p.E == 0 else []
    for k in common:
        if p.D3 < 63: A(f"s_waitcnt vmcnt({p.D3-1})")
        tail_load(k)
    A(f"s_cmp_eq_u32 s{sCLS}, 1"); A("s_cbranch_scc1 L_m_m")
    if not p.EB2:
        for k in t2: tail_load(k)

    if not p.EB and p.EM:
        A(f"s_mov_b32 s{R_T1+2}, s19"); A(f"s_mov_b32 s{sO1}, 0")
        for k in range(p.EM):
            if p.D3 < 63: A(f"s_waitcnt vmcnt({p.D3-1})")
            tail_load(k)
    for k in (16, 17):
        if p.D3 < 63: A(f"s_waitcnt vmcnt({p.D3-1})")
        tail_load(k)
    A(f"s_mul_i32 s70, s{sW}, 144")
    A(f"v_lshl_add_u32 v3, v{vI}, 3, v{vG}")
    A(f"v_add_lshl_u32 v3, v3, s70, 1")
    A(f"global_load_short_d16_hi v24, v3, {sp(sC)}")
    A(f"global_load_short_d16_hi v25, v3, {sp(sC)} offset:8")
    A(f"v_and_b32 v3, 1, v{vI}")
    A(f"v_lshl_add_u32 v3, v3, 3, v{vG}")
    A(f"v_add_lshl_u32 v3, v3, s70, 1")
    A(f"global_load_short_d16_hi v26, v3, {sp(sC)} offset:256")
    A(f"global_load_short_d16_hi v27, v3, {sp(sC)} offset:264")
    A(f"s_lshl_b32 s{sPUB}, s{sBLK}, 8"); A(f"s_add_u32 s{sPUB}, s{sPUB}, {MB}")
    A("s_waitcnt vmcnt(0)")
    silu([24, 25, 26, 27], [28, 29, 30, 31])
    A("v_cvt_pk_bf16_f32 v24, v24, v25")
    A("v_cvt_pk_bf16_f32 v26, v26, v27")
    gemv8(lambda n: (24 if n < 16 else 26, n & 15), 18, [KB, KB + 4, KB + 8], 28, [(OA, T1B)])
    A("s_nop 7")
    A("s_branch L_comb")

    A("L_wphase:")
    if p.E == 0:
        for k in range(issued, 8): tail_load(k)
    A(f"v_mul_u32_u24 v3, 1152, v{vG}")
    A(f"v_and_b32 v21, 3, v{vI}")
    A(f"v_mul_u32_u24 v21, 4608, v21")
    A(f"v_add_u32 v21, v21, v3")
    A(f"v_lshl_add_u32 v3, v{vI}, 4, v3")
    A(f"s_mul_i32 s70, s{sG}, {16*1152}"); A(f"s_add_u32 s48, s70, {OP}")
    A(f"s_lshl_b32 s71, s{sW}, 8"); A("s_add_u32 s44, s48, s71")
    for a in range(1, 4): A(f"s_add_u32 s{44+a}, s44, {4608*a}")
    A(f"s_mul_i32 s{sPUB}, s{sG}, 2304"); A(f"s_lshl_b32 s70, s{sJ}, 8"); A(f"s_add_u32 s{sPUB}, s{sPUB}, s70"); A(f"s_add_u32 s{sPUB}, s{sPUB}, {AP}")
    A(f"s_cmp_ge_u32 s{sW}, 2"); A("s_cselect_b64 s[70:71], -1, 0")
    if p.hint and not p.fast: ldswait(CNT_H3, 1, 22)
    b = VB; S = VB + 16
    L3 = A.label("s3")
    A(f"s_mov_b32 s49, {p.limit}")
    A(f"{L3}:")
    poll([([f"buffer_load_dwordx4 {r4(S)}, v21, {WS}, s48 offen offset:1024 sc1"], [(S + e, f"s{sTAG+e}") for e in range(4)], lambda: None)], 22, 0, 2)
    stamp(9)
    for a in range(4): A(f"buffer_load_dwordx4 {r4(b+4*a)}, v3, {WS}, s{44+a} offen sc1")
    A(f"v_cndmask_b32 v24, v{S}, v{S+2}, s[70:71]")
    A(f"v_cndmask_b32 v25, v{S+1}, v{S+3}, s[70:71]")
    A("v_and_b32 v24, 0xffff0000, v24")
    A(f"v_max_f32_dpp v26, v24, v24 quad_perm:[1,0,3,2] {DPP}")
    A(f"v_max_f32_dpp v26, v26, v26 quad_perm:[2,3,0,1] {DPP}")
    rowsall("v_max_f32", [26], [27])
    A("v_sub_f32 v24, v24, v26")
    A(f"v_mul_f32 v24, {hex(LOG2E)}, v24")
    A("v_exp_f32 v24, v24")
    A("v_mul_f32 v25, v24, v25")
    A(f"v_add_f32_dpp v25, v25, v25 quad_perm:[1,0,3,2] {DPP}")
    A(f"v_add_f32_dpp v25, v25, v25 quad_perm:[2,3,0,1] {DPP}")
    rowsall("v_add_f32", [25], [27])
    A("v_rcp_f32 v25, v25")
    A("v_mul_f32 v24, v24, v25")
    for a in range(4):
        A(f"s_waitcnt vmcnt({3-a})")
        if a == 0: A(f"v_xor_b32 v22, v{vTC}, v{b}")
        else: A(f"v_bitop3_b32 v22, v{b+4*a}, v{vTC}, v22 bitop3:0xbe")
        for e in range(4):
            A(f"{'v_mul_f32_dpp' if a == 0 else 'v_fmac_f32_dpp'} v{28+e}, v24, v{b+4*a+e} quad_perm:[{a},{a},{a},{a}] {DPP}")
    A("v_and_b32 v22, 0xff, v22")
    A("v_cmp_ne_u32 vcc, 0, v22")
    A("s_cbranch_vccz L_s3ok")
    A("s_sub_u32 s49, s49, 1")
    A(f"s_cbranch_scc0 {L3}")
    A("L_s3ok:")
    stamp(7)
    redscat([28])
    A(f"v_mov_b32_dpp v29, v28 row_ror:8 {DPP}")
    A("v_cvt_pk_bf16_f32 v28, v28, v29")
    gemv8(lambda n: (28, n), 8, [KB, KB + 4, KB + 8], 30, [(OA, T1B)])
    A("L_comb:")
    A(f"ds_write_b128 v19, {r4(OA)} offset:{L_WB}")
    ldssignal(CNT_W, 26, rtn=True)
    A("s_cbranch_vccz L_m_end")
    for w in range(4): A(f"ds_read_b128 {r4(KB+4*w)}, v20 offset:{L_WB+1024*w}")
    A("s_waitcnt lgkmcnt(0)")
    sum4(KB, KB)
    halfadd([KB], [KB + 4])
    A(f"s_cmp_eq_u32 s{sCLS}, 0"); A("s_cbranch_scc1 L_comb_w")
    for e in range(4): bf16r(KB + e, KB + e)
    tag4(KB)
    A("s_branch L_comb_st")
    A("L_comb_w:")
    tag1(KB)
    A("L_comb_st:")
    A("s_mov_b64 exec, 0x00ff00ff")
    A(f"buffer_store_dwordx4 {r4(KB)}, v{vST}, {WS}, s{sPUB} offen sc1")
    A("L_m_end:")
    stamp(8)
    endwave()

    X2B = KB
    A("L_m_m:")
    def m_rest(lab):
        for k in t2: tail_load(k)
        A(f"s_cmp_lg_u32 s{sW}, 0"); A(f"s_cbranch_scc1 {lab}")
        A(f"s_mov_b32 s{sO1}, 1024")
        for k in range(8):
            A(f"buffer_load_dwordx4 {r4(X2B+4*k)}, v{vT}, {srd(R_T1)}, s{sO1} offen {nt}")
            A(f"s_add_u32 s{sO1}, s{sO1}, s{sST}")
    if not p.ZH: m_rest("L_mphase")
    A("L_mphase:")
    stamp(7)
    A(f"v_lshl_add_u32 v14, v{vI}, 2, v{vG}")
    A(f"s_lshl_b32 s70, s3, 6")
    A(f"v_add_u32 v15, s70, v14")
    A(f"v_lshlrev_b32 v3, 1, v15")
    A(f"global_load_short_d16_hi v24, v3, {sp(sX)}")
    A(f"v_lshlrev_b32 v3, 1, v14")
    A(f"global_load_short_d16_hi v25, v3, {sp(sX)} offset:1024")
    A(f"s_lshl_b32 s70, s{sBLK}, 7")
    A(f"v_add_u32 v3, s70, v3")
    A(f"global_load_short_d16_hi v23, v3, {sp(sB1)}")
    A(f"v_lshlrev_b32 v15, 2, v15")
    A(f"v_lshlrev_b32 v22, 2, v14")
    A(f"v_mul_u32_u24 v3, 2304, v{vG}")
    A(f"v_lshl_add_u32 v3, v{vI}, 4, v3")
    A(f"s_lshl_b32 s70, s3, 8"); A(f"s_add_u32 s44, s70, {AP}")
    for a in range(1, 4): A(f"s_add_u32 s{44+a}, s44, {9216*a}")
    A(f"s_mov_b32 s48, {MB}"); A(f"s_mov_b32 s49, {MB+4608}")
    for a in range(4): A(f"s_mov_b32 s{18+a}, {AP+2048+9216*a}")
    A(f"s_mov_b32 s50, {MB+2048}"); A(f"s_mov_b32 s51, {MB+2048+2304}"); A(f"s_mov_b32 s22, {MB+2048+4608}")
    A(f"v_lshlrev_b32 v18, 4, v{vL}")
    A(f"v_lshlrev_b32 v19, 2, v{vL}")
    A(f"s_mul_i32 s70, s3, 144")
    A(f"v_lshl_add_u32 v20, v{vI}, 3, v{vG}")
    A(f"v_add_lshl_u32 v20, v20, s70, 2")
    A(f"v_and_b32 v17, 1, v{vI}")
    A(f"v_lshl_add_u32 v17, v17, 3, v{vG}")
    A(f"s_add_u32 s70, s70, 128")
    A(f"v_add_lshl_u32 v17, v17, s70, 2")
    for k, off in enumerate((L_X2, L_AA, L_SS)):
        A(f"v_add_u32 v{72+2*k}, {off}, v20")
        A(f"v_add_u32 v{73+2*k}, {off}, v17")
    A(f"v_lshrrev_b32 v21, 1, v{vG}")
    A(f"s_lshl_b32 s70, s3, 1")
    A(f"v_add_lshl_u32 v21, v21, s70, 8")
    A(f"v_and_b32 v17, 7, v{vI}")
    A(f"v_lshl_add_u32 v21, v17, 5, v21")
    A(f"v_and_b32 v17, 1, v{vG}")
    A(f"v_lshl_add_u32 v21, v17, 4, v21")
    A(f"s_mul_i32 s{sPUB}, s{sBLK}, 2304"); A("s_lshl_b32 s70, s3, 8"); A(f"s_add_u32 s{sPUB}, s{sPUB}, s70"); A(f"s_add_u32 s{sPUB}, s{sPUB}, {FP-1024}")
    if p.XW < 63:
        A(f"s_waitcnt vmcnt({p.XW})")
        A("s_barrier")
        stamp(11)
    def blockstep(items):
        redscat([G for G, _, _ in items])
        for G, ga, xr in items:
            A(f"v_and_b32 v{ga+2}, 0xffff0000, v{ga+2}")
            A(f"v_cvt_pk_bf16_f32 v{G}, v{G}, v{G}")
            A(f"v_and_b32 v{ga}, 0xffff0000, v{ga}")
            A(f"v_lshlrev_b32 v{G}, 16, v{G}")
            A(f"v_add_f32 v{ga+2}, 1.0, v{ga+2}")
            A(f"v_mul_f32 v{G}, v{G}, v{ga}")
            A(f"v_cvt_pk_bf16_f32 v{G}, v{G}, v{ga+2}")
            A(f"v_and_b32 v{ga+2}, 0xffff0000, v{G}")
            A(f"v_lshlrev_b32 v{G}, 16, v{G}")
            A(f"v_add_f32 v{G}, v{G}, v{xr}")
            bf16r(G, G)
            A(f"v_and_b32 v{ga+1}, 0xffff0000, v{ga+1}")
    def s4set(b, two):
        loads = [f"buffer_load_dwordx4 {r4(b+4*a)}, v3, {WS}, s{44+a} offen sc1" for a in range(4)]
        loads += [f"buffer_load_dword v{b+16}, v15, {WS}, s48 offen sc1",
                  f"buffer_load_dword v{b+17}, v15, {WS}, s48 offen offset:2304 sc1",
                  f"buffer_load_dword v{b+18}, v15, {WS}, s49 offen sc1"]
        checks = [(b + 4 * a, f"v{vTC}") for a in range(4)] + [(b + 16 + e, f"v{vTG}") for e in range(3)]
        if two:
            c = b + 20
            loads += [f"buffer_load_dwordx4 {r4(c+4*a)}, v3, {WS}, s{18+a} offen sc1" for a in range(4)]
            loads += [f"buffer_load_dword v{c+16}, v22, {WS}, s50 offen sc1",
                      f"buffer_load_dword v{c+17}, v22, {WS}, s51 offen sc1",
                      f"buffer_load_dword v{c+18}, v22, {WS}, s22 offen sc1"]
            checks += [(c + 4 * a, f"v{vTC}") for a in range(4)] + [(c + 16 + e, f"v{vTG}") for e in range(3)]
        def epi():
            sum4(28, b)
            for e in range(3): A(f"v_mov_b32 v{32+e}, v{b+16+e}")
            if two:
                sum4(36, b + 20)
                for e in range(3): A(f"v_mov_b32 v{78+e}, v{b+36+e}")
        return loads, checks, epi
    A("s_cmp_eq_u32 s3, 5"); A("s_cbranch_scc1 L_mp0")
    poll([s4set(VB + 20 * i, False) for i in range(p.k4)], 26, p.g4, 2)
    stamp(8)
    blockstep([(28, 32, 24)])
    A("s_branch L_mp1")
    A("L_mp0:")
    poll([s4set(VB, True)], 26, p.g4, 2)
    stamp(8)
    blockstep([(28, 32, 24), (36, 78, 25)])
    A(f"ds_write_b32 v22, v36 offset:{L_X2+2048}")
    A(f"ds_write_b32 v22, v80 offset:{L_AA+2048}")
    A(f"ds_write_b32 v22, v79 offset:{L_SS+2048}")
    A("L_mp1:")
    A(f"ds_write_b32 v15, v28 offset:{L_X2}")
    A(f"ds_write_b32 v15, v34 offset:{L_AA}")
    A(f"ds_write_b32 v15, v33 offset:{L_SS}")
    A("s_waitcnt lgkmcnt(0)")
    A("s_barrier")
    A("s_cmp_ge_u32 s3, 4"); A("s_cbranch_scc1 L_mw2")
    XR, AR, SR_ = 40, 50, 60
    OX, OA_, OS = 84, 88, 92
    for base, off in ((XR, L_X2), (AR, L_AA), (SR_, L_SS)):
        A(f"ds_read_b128 {r4(base)}, v18 offset:{off}")
        A(f"ds_read_b128 {r4(base+4)}, v18 offset:{off+1024}")
        A(f"ds_read_b32 v{base+8}, v19 offset:{off+2048}")
        A(f"ds_read_b32 v{base+9}, v{vZ} offset:{off}")
        if base == XR: pass
    A("s_waitcnt lgkmcnt(8)")
    def lnstats(first):
        X = XR
        for k in range(4): A(f"v_pk_add_f32 {r2(X+2*k)}, {r2(X+2*k)}, {r2(X+8)} op_sel:[0,1] op_sel_hi:[1,1] neg_lo:[0,1] neg_hi:[0,1]")
        if first:
            for k, d in enumerate((OX, OA_, OS)):
                A(f"ds_read2_b32 {r2(d)}, v{72+2*k} offset0:0 offset1:4")
                A(f"ds_read2_b32 {r2(d+2)}, v{73+2*k} offset0:0 offset1:4")
        A(f"v_sub_f32 v80, v{X+8}, v{X+9}")
        A(f"v_pk_add_f32 v[96:97], {r2(X)}, {r2(X+2)}")
        A(f"v_pk_mul_f32 v[98:99], {r2(X)}, {r2(X)}")
        A(f"v_pk_add_f32 v[82:83], {r2(X+4)}, {r2(X+6)}")
        A(f"v_pk_fma_f32 v[98:99], {r2(X+2)}, {r2(X+2)}, v[98:99]")
        A(f"v_pk_add_f32 v[96:97], v[96:97], v[82:83]")
        A(f"v_pk_fma_f32 v[98:99], {r2(X+4)}, {r2(X+4)}, v[98:99]")
        A(f"v_add_f32 v96, v96, v80")
        A(f"v_pk_fma_f32 v[98:99], {r2(X+6)}, {r2(X+6)}, v[98:99]")
        A(f"v_add_f32 v96, v96, v97")
        A(f"v_fmac_f32 v98, v80, v80")
        A(f"v_add_f32 v98, v98, v99")
        wavesum_s([96, 98], [70, 71])
        A(f"v_mov_b32 v97, {INV576}")
        A(f"v_mul_f32 v96, s70, v97")
        A(f"v_mul_f32 v98, s71, v97")
        A(f"v_fma_f32 v98, -v96, v96, v98")
        A(f"v_max_f32 v98, 0, v98")
        A(f"v_add_f32 v98, {EPS}, v98")
        A(f"v_rsq_f32 v98, v98")
        A(f"v_add_f32 v97, v96, v{X+9}")
    lnstats(True)
    A("s_waitcnt lgkmcnt(0)")
    neg = "neg_lo:[0,1] neg_hi:[0,1]"
    for k in range(4): A(f"v_pk_add_f32 {r2(XR+2*k)}, {r2(XR+2*k)}, v[96:97] op_sel_hi:[1,0] {neg}")
    for b in (XR + 8, OX, OX + 2): A(f"v_pk_add_f32 {r2(b)}, {r2(b)}, v[96:97] op_sel:[0,1] op_sel_hi:[1,1] {neg}")
    for b in [AR + 2 * k for k in range(5)] + [OA_, OA_ + 2]: A(f"v_pk_mul_f32 {r2(b)}, {r2(b)}, v[98:99] op_sel_hi:[1,0]")
    for k in range(5): A(f"v_pk_fma_f32 {r2(XR+2*k)}, {r2(XR+2*k)}, {r2(AR+2*k)}, {r2(SR_+2*k)}")
    for k in range(2): A(f"v_pk_fma_f32 {r2(OX+2*k)}, {r2(OX+2*k)}, {r2(OA_+2*k)}, {r2(OS+2*k)}")
    lnstats(False)
    for b in (OX, OX + 2): A(f"v_pk_add_f32 {r2(b)}, {r2(b)}, v[96:97] op_sel:[0,1] op_sel_hi:[1,1] {neg}")
    for b in (OX, OX + 2): A(f"v_pk_mul_f32 {r2(b)}, {r2(b)}, v[98:99] op_sel_hi:[1,0]")
    A(f"v_cvt_pk_bf16_f32 v{OX}, v{OX}, v{OX+1}")
    A(f"v_cvt_pk_bf16_f32 v{OX+2}, v{OX+2}, v{OX+3}")
    stamp(9)
    gemv8(lambda n: (OX if n < 16 else OX + 2, n & 15), 18, [40, 44, 48], 52, [(OA, T1B)])
    A("s_mov_b32 exec_lo, 0x00ff00ff"); A("s_mov_b32 exec_hi, 0xff00ff00")
    A(f"ds_write_b128 v21, {r4(OA)} offset:{L_H1}")
    A("s_waitcnt lgkmcnt(0)")
    A("s_barrier")
    stamp(10)
    endwave()
    A("L_mw2:")
    if p.ZH:
        A(f"s_mul_i32 s{sT}, s{sBLK}, {64*1152}")
        A(f"s_lshl_b32 s70, s{sW}, 7")
        A(f"s_add_u32 s{sT}, s{sT}, s70")
        set_srd(R_T1, sT, sW2, 64 * 1152)
        A(f"s_add_u32 s{sT}, s{sT}, 512")
        set_srd(R_T2, sT, sW2, 64 * 1152)
        m_rest("L_mw2b")
        A("L_mw2b:")
    A(f"v_add_u32 v22, {L_H1}, v22")
    c0 = -2.0 * math.sqrt(2.0 / math.pi) * math.log2(math.e)
    A(f"v_mov_b32 v82, {f2h(c0)}")
    A("s_barrier")
    stamp(9)
    for k in range(4): A(f"ds_read2st64_b32 {r2(72+2*k)}, v22 offset0:{2*k} offset1:{2*k+1}")
    A("s_waitcnt lgkmcnt(2)")
    A("v_pk_add_f32 v[72:73], v[72:73], v[74:75]")
    A("s_waitcnt lgkmcnt(0)")
    A("v_pk_add_f32 v[76:77], v[76:77], v[78:79]")
    A("v_pk_add_f32 v[72:73], v[72:73], v[76:77]")
    A("v_add_f32 v80, v72, v73")
    bf16r(80, 80)
    A("v_add_f32 v80, v80, v23")
    bf16r(80, 80)
    A("v_mul_f32 v81, v80, v80")
    A(f"v_fmac_f32 v82, {f2h(c0*0.044715)}, v81")
    A("v_mul_f32 v81, v82, v80")
    A("v_exp_f32 v81, v81")
    A("v_add_f32 v81, 1.0, v81")
    A("v_rcp_f32 v81, v81")
    A("v_mul_f32 v80, v80, v81")
    A(f"v_mov_b32_dpp v81, v80 row_ror:8 {DPP}")
    A("v_cvt_pk_bf16_f32 v80, v80, v81")
    if p.ZH: A("s_waitcnt vmcnt(0)")
    OB, OC = 232, 236
    A(f"s_cmp_eq_u32 s{sW}, 0"); A("s_cbranch_scc1 L_w2_0")
    gemv8(lambda n: (80, n), 8, [84, 88, 92], 82, [(OA, T1B), (OB, T2B)])
    halfadd([OA, OB], [84, 88])
    A("s_branch L_w2_1")
    A("L_w2_0:")
    gemv8(lambda n: (80, n), 8, [84, 88, 92], 82, [(OC, X2B), (OA, T1B), (OB, T2B)])
    halfadd([OC, OA, OB], [92, 84, 88])
    tag1(OC)
    A("s_mov_b64 exec, 0x00ff00ff")
    A(f"buffer_store_dwordx4 {r4(OC)}, v{vST}, {WS}, s{sPUB} offen offset:2048 sc1")
    A("L_w2_1:")
    A("s_mov_b64 exec, 0x00ff00ff")
    tag1(OA); tag1(OB)
    A(f"buffer_store_dwordx4 {r4(OA)}, v{vST}, {WS}, s{sPUB} offen sc1")
    A(f"buffer_store_dwordx4 {r4(OB)}, v{vST}, {WS}, s{sPUB} offen offset:1024 sc1")
    stamp(10)
    endwave()
    A("L_exit:")
    A("s_endpgm")
    A('.section .rodata,"a"')
    A(".p2align 6")
    A(f".amdhsa_kernel {KN}")
    A(".amdhsa_next_free_vgpr 248")
    A(".amdhsa_next_free_sgpr 102")
    A(".amdhsa_accum_offset 248")
    A(".amdhsa_group_segment_fixed_size 0")
    A(".amdhsa_kernarg_size 120")
    A(".amdhsa_user_sgpr_count 2")
    A(".amdhsa_user_sgpr_kernarg_segment_ptr 1")
    A(".amdhsa_system_sgpr_workgroup_id_x 1")
    A(".amdhsa_float_denorm_mode_32 3")
    A(".end_amdhsa_kernel")
    return A.text().replace(".ASMLAUNCH @", "; @")

if __name__ == "__main__":
    kw = eval("dict(" + (sys.argv[2] if len(sys.argv) > 2 else "") + ")")
    open(sys.argv[1], "w").write(gen(**kw))
```

```python
import sys, struct, math
sys.path.insert(0, "work")
from asmlib import Asm

KN = "adaLN_cond__sliding_block_cached__mixer_channel_mlp__decode_kernel"

EPOCH = 0
MA = 0x1000
MB = 0xA000
AP = 0xD000
FP = 0x16000
QP = 0x40000
OP = 0x80000
HINT1 = 0xC8000
HINT2 = 0xD2000
HINT3 = 0xDA000
WSREC = 0x100000
DBG = 0x100000

CNT_Q, CNT_P, CNT_L, CNT_O, CNT_W = 0, 4, 8, 12, 16
CNT_H1, CNT_H2, CNT_H3, CNT_MODE, CNT_PUB = 24, 28, 32, 36, 40
L_ZERO = 48
L_MAX = 64
L_LB = 96
L_Q = 256
L_OB = 1024
L_WB = 5120
L_X2 = 9216
L_AA = 11520
L_SS = 13824
L_H1 = 16128
LDS_BYTES = 20480

DPP = "row_mask:0xf bank_mask:0xf"
LOG2E = 0x3fb8aa3b
f2h = lambda f: hex(struct.unpack("<I", struct.pack("<f", f))[0])
INV576 = f2h(1.0 / 576)
EPS = f2h(1e-5)

class P:
    D = 5
    PRE = 3
    D2 = 8
    DC = 4
    XW = 63
    stamps = 0
    preread = 0
    limit = 20000
    nt = "nt"
    prio = 1
    rot = 1
    dbg = 0
    k1 = 1; g1 = 4
    k2 = 1; g2 = 4
    k3 = 1; g3 = 4
    k4 = 1; g4 = 4
    k5 = 1; g5 = 2
    cpf = 0
    diag = 0
    hint = 1
    EM = 0
    EB = 0
    ctrig = 4
    mprio = 2
    X = 0
    D3 = 63
    DW = 0
    c0e = 0
    EB2 = 0
    ZH = 0
    xfix = 0
    epos = 16
    estep = 1
    E = 8
    pause1 = 0
    pause2 = 0
    inter = 0
    fast = 1
    hsleep = 0
    lsleep = 0

def gen(**kw):
    p = P()
    for k, v in kw.items():
        assert hasattr(p, k), k
        setattr(p, k, v)
    A = Asm()
    nt = p.nt
    sX, sK, sV, sWQ, sWO, sW1, sB1, sW2, sB2, sC, sWM, sOUT, sWS = 16, 18, 20, 22, 24, 28, 30, 32, 34, 36, 38, 40, 42
    sG, sJ, sCLS, sBLK = 4, 5, 6, 7
    sTAG = 8
    sSEL = 12
    R_A, R_B, R_T1, R_T2, R_WS = 44, 48, 52, 56, 60
    sST, sROT = 64, 65
    sO1, sO2 = 66, 67
    sCNT = 68
    sT = 69
    sPUB = 97
    sMODE = 27
    sW = 96
    vL, vG, vI = 0, 1, 2
    vMASK, vSEL, vTAG, vTG = 4, 8, 12, 13
    vTP, vTC, vST, vZ = 244, 245, 246, 247
    def r4(b): return f"v[{b}:{b+3}]"
    def r2(b): return f"v[{b}:{b+1}]"
    def srd(b): return f"s[{b}:{b+3}]"
    def sp(b): return f"s[{b}:{b+1}]"
    WS = srd(R_WS)
    def stamp(k):
        if p.stamps: A(f"s_memrealtime s[{72+2*k}:{73+2*k}]")
    def endwave():
        if p.stamps:
            A("s_mov_b64 exec, -1")
            A("s_waitcnt lgkmcnt(0)")
            A(f"s_lshl_b32 s{sT}, s2, 3")
            A(f"s_add_u32 s{sT}, s{sT}, s3")
            A(f"s_lshl_b32 s{sT}, s{sT}, 6")
            A(f"s_add_u32 s{sT}, s{sT}, {DBG}")
            A("s_waitcnt vmcnt(0)")
            A(f"v_mov_b32 v14, s{sT}")
            A("s_mov_b64 exec, 1")
            for k in range(0, 12, 4):
                for e in range(4): A(f"v_mov_b32 v{16+e}, s{72+2*(k+e)}")
                A(f"global_store_dwordx4 v14, v[16:19], {sp(sWS)} offset:{4*k}")
            for e in range(4): A(f"v_mov_b32 v{16+e}, s{98+e}")
            A(f"global_store_dwordx4 v14, v[16:19], {sp(sWS)} offset:48")
            A("s_waitcnt vmcnt(0)")
        A("s_endpgm")
    def set_srd(r, off_s, ptr, rec):
        A(f"s_add_u32 s{r}, s{ptr}, s{off_s}")
        A(f"s_addc_u32 s{r+1}, s{ptr+1}, 0")
        A(f"s_mov_b32 s{r+2}, {rec}")
        A(f"s_mov_b32 s{r+3}, 0x20000")
    def bf16r(d, s):
        A(f"v_cvt_pk_bf16_f32 v{d}, v{s}, v{s}")
        A(f"v_lshlrev_b32 v{d}, 16, v{d}")
    def rowsall(op, vs, ts):
        for sw in ("v_permlane32_swap_b32", "v_permlane16_swap_b32"):
            for v, t in zip(vs, ts): A(f"v_mov_b32 v{t}, v{v}")
            for v, t in zip(vs, ts): A(f"{sw} v{v}, v{t}")
            for v, t in zip(vs, ts): A(f"{op} v{v}, v{v}, v{t}")
    def wavesum_s(vs, ss):
        for ctl in ("quad_perm:[1,0,3,2]", "quad_perm:[2,3,0,1]", "row_half_mirror", "row_mirror"):
            for v in vs: A(f"v_add_f32_dpp v{v}, v{v}, v{v} {ctl} {DPP}")
        for v in vs: A(f"v_add_f32_dpp v{v}, v{v}, v{v} row_bcast:15 row_mask:0xa bank_mask:0xf")
        for v in vs: A(f"v_add_f32_dpp v{v}, v{v}, v{v} row_bcast:31 row_mask:0xc bank_mask:0xf")
        for v, s in zip(vs, ss): A(f"v_readlane_b32 s{s}, v{v}, 63")
    def redscat(bs):
        for b in bs:
            A(f"v_permlane32_swap_b32 v{b}, v{b+2}")
            A(f"v_permlane32_swap_b32 v{b+1}, v{b+3}")
        for b in bs: A(f"v_pk_add_f32 {r2(b)}, {r2(b)}, {r2(b+2)}")
        for b in bs: A(f"v_permlane16_swap_b32 v{b}, v{b+1}")
        for b in bs: A(f"v_add_f32 v{b}, v{b}, v{b+1}")
    def addgran(d, a, b):
        A(f"v_pk_add_f32 {r2(d)}, {r2(a)}, {r2(b)}")
        A(f"v_pk_add_f32 {r2(d+2)}, {r2(a+2)}, {r2(b+2)}")
    def sum4(d, b):
        addgran(b, b, b + 4); addgran(b + 8, b + 8, b + 12); addgran(d, b, b + 8)
    def tag4(b):
        for e in range(4): A(f"v_perm_b32 v{b+e}, v{b+e}, v{vTAG}, s{sSEL+e}")
    def tag1(b):
        A(f"v_perm_b32 v{b}, v{b}, v{vTP}, s{sSEL}")
    def halfadd(bs, ts):
        for b, t in zip(bs, ts):
            for e in range(4): A(f"v_permlane32_swap_b32 v{t+e}, v{b+e}")
    def halfadd(bs, ts):
        for b, t in zip(bs, ts):
            for e in range(4): A(f"v_permlane32_swap_b32 v{b+e}, v{t+e}")
        for b, t in zip(bs, ts):
            for e in range(4): A(f"v_add_f32_dpp v{b+e}, v{t+e}, v{b+e} row_ror:8 {DPP}")
    def poll(sets, acc, gap=0, slot=None):
        k = len(sets); n = len(sets[0][0])
        L = A.label("poll"); Ld = A.label("pd")
        oks = [A.label("ok") for _ in sets]
        A(f"s_mov_b32 s{sCNT}, {p.limit}")
        for i, (loads, _, _) in enumerate(sets):
            if i and gap: A(f"s_sleep {gap}")
            if k == 1: A(f"{L}:")
            for l in loads: A(l)
        if k > 1: A(f"{L}:")
        for i, (loads, checks, _) in enumerate(sets):
            A(f"s_waitcnt vmcnt({(k-1)*n})")
            for c, (r, t) in enumerate(checks):
                if c == 0: A(f"v_xor_b32 v{acc}, {t}, v{r}")
                else: A(f"v_bitop3_b32 v{acc}, v{r}, {t}, v{acc} bitop3:0xbe")
            A(f"v_and_b32 v{acc}, 0xff, v{acc}")
            A(f"v_cmp_ne_u32 vcc, 0, v{acc}")
            A(f"s_cbranch_vccz {oks[i]}")
            A(f"s_sub_u32 s{sCNT}, s{sCNT}, 1")
            if k == 1:
                A(f"s_cbranch_scc0 {L}")
            else:
                A(f"s_cbranch_scc1 {oks[i]}")
                for l in loads: A(l)
        if k > 1: A(f"s_branch {L}")
        for i in reversed(range(k)):
            A(f"{oks[i]}:")
            sets[i][2]()
            if i: A(f"s_branch {Ld}")
        A(f"{Ld}:")
        if p.stamps and slot is not None: A(f"s_sub_u32 s{98+slot}, {p.limit+1}, s{sCNT}")
    def ldswait(off, target, t):
        L = A.label("lw"); Ld = A.label("lwd")
        A(f"s_mov_b32 s{sCNT}, {p.limit*40}")
        A(f"{L}:")
        A(f"ds_read_b32 v{t}, v{vZ} offset:{off}")
        A("s_waitcnt lgkmcnt(0)")
        A(f"v_cmp_le_u32 vcc, {target}, v{t}")
        A(f"s_cbranch_vccnz {Ld}")
        if p.lsleep: A(f"s_sleep {p.lsleep}")
        A(f"s_sub_u32 s{sCNT}, s{sCNT}, 1")
        A(f"s_cbranch_scc0 {L}")
        A(f"{Ld}:")
    def ldssignal(off, t, rtn=False, last=3):
        A(f"v_mov_b32 v{t}, 1")
        A("s_mov_b64 exec, 1")
        if rtn:
            A(f"ds_add_rtn_u32 v{t}, v{vZ}, v{t} offset:{off}")
            A("s_waitcnt lgkmcnt(0)")
            A(f"v_cmp_eq_u32 vcc, {last}, v{t}")
        else:
            A(f"ds_add_u32 v{vZ}, v{t} offset:{off}")
        A("s_mov_b64 exec, -1")
    def hintwait(offs, width):
        L = A.label("hw"); Lf = A.label("hf"); Ld = A.label("hd")
        A(f"s_and_b32 s70, s{sTAG}, 0xffff"); A("s_mul_i32 s70, s70, 0x10001"); A("s_mov_b32 s71, s70")
        A(f"s_mov_b32 s{sCNT}, {p.limit}")
        A(f"{L}:")
        for k, o in enumerate(offs):
            A(f"s_load_dwordx{width} s[{44+width*k}:{44+width*k+width-1}], {sp(sWS)}, s{o} glc")
        A("s_waitcnt lgkmcnt(0)")
        n = len(offs) * width // 2
        for k in range(n):
            A(f"s_cmp_eq_u64 s[{44+2*k}:{45+2*k}], s[70:71]")
            A(f"s_cbranch_scc0 {Lf}" if k < n - 1 else f"s_cbranch_scc1 {Ld}")
        A(f"{Lf}:")
        if p.hsleep: A(f"s_sleep {p.hsleep}")
        A(f"s_sub_u32 s{sCNT}, s{sCNT}, 1")
        A(f"s_cbranch_scc0 {L}")
        A(f"{Ld}:")
    def hintstore(soff, mask, stride, t):
        A(f"v_mul_u32_u24 v{t}, {stride}, v{vL}")
        A(f"s_mov_b64 exec, {hex(mask)}")
        A(f"buffer_store_short v{vTAG}, v{t}, {WS}, s{soff} offen sc1")
        A("s_mov_b64 exec, -1")
    def pubstore(data, addr, soff, extra=""):
        if not p.fast:
            A(f"buffer_store_dwordx4 {data}, {addr}, {WS}, s{soff} offen {extra} sc1"); return
        La, Lb = A.label("ps"), A.label("pe")
        A(f"s_cmp_eq_u32 s{sMODE}, 2"); A(f"s_cbranch_scc1 {La}")
        A(f"buffer_store_dwordx4 {data}, {addr}, {WS}, s{soff} offen {extra} sc1")
        A(f"s_branch {Lb}")
        A(f"{La}:")
        A(f"buffer_store_dwordx4 {data}, {addr}, {WS}, s{soff} offen {extra}")
        A(f"{Lb}:")
    def consts():
        A(f"v_and_b32 v3, 1, v{vI}")
        A(f"v_lshlrev_b32 v3, 4, v3")
        A(f"v_mov_b32 v{vSEL}, 0xffff")
        A(f"v_lshlrev_b32 v3, v3, v{vSEL}")
        A(f"v_bfe_u32 v{vSEL}, v{vI}, 1, 2")
        for d in range(4):
            A(f"v_cmp_eq_u32 vcc, {d}, v{vSEL}")
            A(f"v_cndmask_b32 v{vMASK+d}, 0, v3, vcc")
        A(f"v_lshrrev_b32 v3, 3, v{vI}")
        A(f"s_mov_b32 s{sT}, 0x02020202")
        A(f"v_mul_lo_u32 v3, v3, s{sT}")
        A(f"v_add_u32 v3, 0x01000100, v3")
        A(f"s_mov_b32 s{sT}, 0x0c0c0c0c")
        for d in range(4):
            A(f"v_bfi_b32 v{vSEL+d}, v{vMASK+d}, v3, s{sT}")
        A(f"v_lshlrev_b32 v{vST}, 5, v{vI}")
        A(f"v_lshl_add_u32 v{vST}, v{vG}, 4, v{vST}")
    def tagsetup():
        A("s_waitcnt lgkmcnt(0)")
        A(f"s_mul_i32 s{sT}, s{sTAG}, 0x9E3779B1")
        A(f"s_add_u32 s{sT}, s{sT}, 0x7F4A7C15")
        A(f"s_or_b32 s{sT}, s{sT}, 0x01010101")
        A(f"s_xor_b32 s{sTAG}, s{sTAG}, s{sT}")
        for e in range(1, 4): A(f"s_lshr_b32 s{sTAG+e}, s{sTAG}, {8*e}")
        for e in range(4): A(f"s_mov_b32 s{sSEL+e}, {hex(0x07060500 + e)}")
        A(f"v_mov_b32 v{vTAG}, s{sTAG}")
        A(f"v_lshlrev_b32 v{vTG}, 3, v{vG}")
        A(f"v_lshrrev_b32 v{vTG}, v{vTG}, v{vTAG}")
        A(f"v_and_b32 v{vTC}, 1, v{vG}")
        A(f"v_lshl_add_u32 v{vTP}, v{vI}, 1, v{vTC}")
        A(f"v_lshlrev_b32 v{vTP}, 3, v{vTP}")
        A(f"v_lshrrev_b32 v{vTP}, v{vTP}, v{vTAG}")
        A(f"v_lshlrev_b32 v{vTC}, 3, v{vI}")
        A(f"v_lshrrev_b32 v{vTC}, v{vTC}, v{vTAG}")
    def silu(regs, tmps):
        for v, t in zip(regs, tmps): A(f"v_mul_f32 v{t}, 0xbfb8aa3b, v{v}")
        for v, t in zip(regs, tmps): A(f"v_exp_f32 v{t}, v{t}")
        for v, t in zip(regs, tmps): A(f"v_add_f32 v{t}, 1.0, v{t}")
        for v, t in zip(regs, tmps): A(f"v_rcp_f32 v{t}, v{t}")
        for v, t in zip(regs, tmps): A(f"v_mul_f32 v{v}, v{v}, v{t}")
    def mfma(d, a, b, first):
        A(f"v_mfma_f32_16x16x32_bf16 {r4(d)}, {r4(a)}, {r4(b)}, {'0' if first else r4(d)}")
    def gemv8(srs, N, tmp, t0, accs, waits=None):
        def build(n):
            sr, ln = srs(n)
            d = tmp[n % len(tmp)]
            A(f"v_mov_b32_dpp v{t0+(n&1)}, v{sr} row_newbcast:{ln} {DPP}")
            for e in range(4): A(f"v_perm_b32 v{d+e}, v{t0+(n&1)}, v{t0+(n&1)}, v{vSEL+e}")
        build(0)
        for n in range(N):
            if n + 1 < N: build(n + 1)
            if waits: waits(n)
            for acc, wb in accs: mfma(acc, tmp[n % len(tmp)], wb + 4 * n, n == 0)
    vT = 16
    T1B, T2B = 168, 200
    def tail_load(k):
        if k < 8:
            A(f"buffer_load_dwordx4 {r4(T1B+4*k)}, v{vT}, {srd(R_T1)}, s{sO1} offen {nt}")
            A(f"s_add_u32 s{sO1}, s{sO1}, s{sST}")
        else:
            A(f"buffer_load_dwordx4 {r4(T1B+4*k)}, v{vT}, {srd(R_T2)}, s{sO2} offen {nt}")
            A(f"s_add_u32 s{sO2}, s{sO2}, s{sST}")

    def w1setup():
        A(f"s_mul_i32 s{sT}, s3, {144*9216}")
        A(f"s_lshl_b32 s70, s{sBLK}, 7")
        A(f"s_add_u32 s{sT}, s{sT}, s70")
        set_srd(R_T1, sT, sW1, 144 * 9216)
        A(f"v_lshrrev_b32 v3, 3, v{vI}")
        A(f"v_lshl_add_u32 v3, v3, 2, v{vG}")
        A(f"v_mul_u32_u24 v3, 9216, v3")
        A(f"v_and_b32 v{vT}, 7, v{vI}")
        A(f"v_lshl_add_u32 v{vT}, v{vT}, 4, v3")
    def w1loads(depth):
        for k in range(18):
            if k >= depth: A(f"s_waitcnt vmcnt({depth-1})")
            A(f"s_mov_b32 s{sO1}, {k*8*9216}")
            A(f"buffer_load_dwordx4 {r4(T1B+4*k)}, v{vT}, {srd(R_T1)}, s{sO1} offen {nt}")

    A(f".ASMLAUNCH @launch grid=(256,1,1) block=(512,1,1) lds={LDS_BYTES}")
    A('.amdgcn_target "amdgcn-amd-amdhsa--gfx950"')
    A(".text")
    A(f".globl {KN}")
    A(".p2align 8")
    A(f".type {KN},@function")
    A(f"{KN}:")
    stamp(0)
    if p.dbg or p.xfix: A("s_memrealtime s[98:99]")
    if p.stamps:
        for k in range(1, 12): A(f"s_mov_b32 s{72+2*k}, 0")
        for k in range(4): A(f"s_mov_b32 s{98+k}, 0")
    A("s_cmp_ge_u32 s2, 256")
    A("s_cbranch_scc1 L_exit")
    A("s_load_dwordx16 s[16:31], s[0:1], 0")
    A("s_load_dwordx8 s[32:39], s[0:1], 64")
    A(f"s_load_dwordx2 {sp(sOUT)}, s[0:1], 96")
    A(f"s_load_dwordx2 {sp(sWS)}, s[0:1], 112")
    A("v_lshrrev_b32 v1, 6, v0")
    A("v_and_b32 v0, 63, v0")
    A("v_readfirstlane_b32 s3, v1")
    A(f"v_lshrrev_b32 v{vG}, 4, v{vL}")
    A(f"v_and_b32 v{vI}, 15, v{vL}")
    A(f"v_mov_b32 v{vZ}, 0")
    A("v_mov_b32 v16, 0")
    A(f"s_and_b32 s{sG}, s2, 7")
    A(f"s_lshl_b32 s{sG}, s{sG}, 1")
    A(f"s_bfe_u32 s{sT}, s2, 0x10003")
    A(f"s_add_u32 s{sG}, s{sG}, s{sT}")
    A(f"s_lshr_b32 s{sJ}, s2, 4")
    A(f"s_mov_b32 s{R_WS+2}, {WSREC}")
    A(f"s_mov_b32 s{R_WS+3}, 0x20000")
    def classify():
        A(f"s_lshl_b32 s{sT}, s{sJ}, 4"); A(f"s_add_u32 s{sT}, s{sT}, s{sG}")
        A(f"s_sub_u32 s{sT}, s{sT}, {144+72}")
        A(f"s_cmp_ge_u32 s{sT}, 36"); A(f"s_cselect_b32 s{sCLS}, 3, 2")
        A(f"s_lshr_b32 s70, s{sG}, 1")
        A(f"s_and_b32 s71, s{sG}, 1")
        A(f"s_mul_i32 s{sBLK}, s70, 9"); A(f"s_add_u32 s{sBLK}, s{sBLK}, s71")
        A(f"s_cmp_eq_u32 s{sJ}, 13")
        A(f"s_cselect_b32 s{sT}, s70, s{sT}")
        A(f"s_cselect_b32 s{sCLS}, 2, s{sCLS}")
        A(f"s_lshl_b32 s70, s{sJ}, 1"); A(f"s_add_u32 s{sBLK}, s{sBLK}, s70"); A(f"s_sub_u32 s{sBLK}, s{sBLK}, 18")
        A(f"s_add_u32 s70, s70, s71")
        A(f"s_cmp_le_u32 s70, 26")
        A(f"s_cselect_b32 s{sBLK}, s{sBLK}, s{sT}")
        A(f"s_cselect_b32 s{sCLS}, 1, s{sCLS}")
        A(f"s_cmp_lt_u32 s{sJ}, 9")
        A(f"s_cselect_b32 s{sBLK}, s{sJ}, s{sBLK}")
        A(f"s_cselect_b32 s{sCLS}, 0, s{sCLS}")
    A("s_cmp_ge_u32 s3, 4")
    A("s_cbranch_scc1 L_main")

    WB = 40
    SB = 80
    G1 = 104
    if p.prio: A(f"s_setprio {p.prio}")
    A("s_cmp_eq_u32 s3, 0"); A("s_cbranch_scc1 L_c0_load")
    A("s_cmp_eq_u32 s3, 3"); A("s_cbranch_scc1 L_c3_load")
    A(f"v_lshlrev_b32 v17, 3, v{vL}")
    A(f"v_lshlrev_b32 v18, 3, v{vI}")
    A(f"v_min_u32 v15, 8, v{vI}")
    A(f"v_lshl_add_u32 v3, v15, 2, v{vG}")
    A(f"s_mul_i32 s{sT}, s{sJ}, 36")
    A(f"v_add_lshl_u32 v3, v3, s{sT}, 1")
    A(f"s_mul_i32 s{sT}, s{sJ}, {36*8192}")
    A(f"s_lshl_b32 s{sO1}, s{sG}, 9")
    A(f"s_add_u32 s{sT}, s{sT}, s{sO1}")
    A(f"s_lshl_b32 s{sO1}, s3, 8")
    A(f"s_add_u32 s{sT}, s{sT}, s{sO1}")
    A(f"s_sub_u32 s{sT}, s{sT}, 256")
    A(f"v_lshlrev_b32 v14, 13, v{vG}")
    A(f"v_lshl_add_u32 v14, v{vI}, 4, v14")
    A("s_waitcnt lgkmcnt(0)")
    set_srd(R_A, sT, sWQ, 36 * 8192)
    A(f"global_load_dwordx2 v[20:21], v17, {sp(sX)}")
    A(f"global_load_dwordx2 v[22:23], v17, {sp(sX)} offset:512")
    A(f"global_load_dwordx2 v[24:25], v18, {sp(sX)} offset:1024")
    A(f"global_load_short_d16_hi v26, v3, {sp(sX)}")
    for n in range(9):
        A(f"s_mov_b32 s{sO1}, {n*4*8192}")
        A(f"buffer_load_dwordx4 {r4(WB+4*n)}, v14, {srd(R_A)}, s{sO1} offen {nt}")
    A("s_branch L_c_bar")
    A("L_c3_load:")
    for e in range(4): A(f"v_mov_b32 v{20+e}, 0")
    A(f"v_lshlrev_b32 v3, 4, v{vI}")
    A(f"ds_write_b128 v3, v[20:23]")
    A("s_waitcnt lgkmcnt(0)")
    A("s_branch L_c_bar")
    A("L_c0_load:")
    A(f"s_lshr_b32 s70, s{sG}, 1")
    A(f"s_and_b32 s71, s{sG}, 1"); A(f"s_mul_i32 s71, s71, 9"); A(f"s_add_u32 s71, s71, s{sJ}")
    A(f"v_min_u32 v3, 8, v{vI}")
    A(f"v_lshl_add_u32 v3, v3, 3, v{vG}")
    A(f"s_mul_i32 s{sT}, s70, 72")
    A(f"v_add_lshl_u32 v17, v3, s{sT}, 1")
    A(f"s_mul_i32 s{sT}, s70, {72*6912}")
    A(f"s_lshl_b32 s{sO1}, s71, 7")
    A(f"s_add_u32 s{sT}, s{sT}, s{sO1}")
    A(f"s_mul_i32 s70, s70, 4608"); A(f"s_lshl_b32 s71, s71, 8"); A(f"s_add_u32 s70, s70, s71"); A(f"s_add_u32 s{sPUB}, s70, {MA}")
    A(f"v_lshrrev_b32 v3, 3, v{vI}")
    A(f"v_lshl_add_u32 v3, v3, 2, v{vG}")
    A(f"v_mul_u32_u24 v3, 6912, v3")
    A(f"v_and_b32 v14, 7, v{vI}")
    A(f"v_lshl_add_u32 v14, v14, 4, v3")
    A("s_waitcnt lgkmcnt(0)")
    A(f"s_cmp_ge_u32 s{sJ}, 9"); A("s_cbranch_scc1 L_c_bar")
    set_srd(R_A, sT, sWM, 72 * 6912)
    A(f"global_load_short_d16_hi v20, v17, {sp(sC)}")
    A(f"global_load_short_d16_hi v21, v17, {sp(sC)} offset:8")
    for n in range(9):
        A(f"s_mov_b32 s{sO1}, {n*8*6912}")
        A(f"buffer_load_dwordx4 {r4(WB+4*n)}, v14, {srd(R_A)}, s{sO1} offen {nt}")
    A("L_c_bar:")
    A("s_barrier")
    A(f"s_load_dword s{sTAG}, {sp(sWS)}, {EPOCH}")
    A(f"s_mov_b64 {sp(R_WS)}, {sp(sWS)}")
    stamp(1)
    classify()
    consts()
    A("s_cmp_eq_u32 s3, 3"); A("s_cbranch_scc0 L_c_n3")
    if p.cpf:
        A("s_getpc_b64 s[70:71]")
        A("L_pc:")
        A(f"s_sub_u32 s70, s70, L_pc-{KN}")
        A("s_subb_u32 s71, s71, 0")
        A("s_lshr_b32 s69, s2, 3"); A("s_lshl_b32 s69, s69, 10")
        A(f"v_lshl_add_u32 v3, v{vL}, 4, s69")
        A(f"v_min_u32 v3, L_exit-{KN}-12, v3")
        A("v_and_b32 v3, -4, v3")
        A("global_load_dwordx4 v[236:239], v3, s[70:71]")
    if p.preread:
        A(f"s_lshl_b32 s70, s{sG}, 4"); A(f"s_add_u32 s70, s70, s{sJ}"); A("s_mul_i32 s70, s70, 1152"); A(f"s_add_u32 s70, s70, {OP}")
        A(f"v_lshlrev_b32 v3, 7, v{vL}")
        A("s_mov_b64 exec, 0x1ff")
        A(f"buffer_load_dword v232, v3, {WS}, s70 offen")
        A(f"s_mul_i32 s70, s{sG}, 2304"); A(f"s_lshl_b32 s71, s{sBLK}, 8"); A("s_add_u32 s70, s70, s71"); A(f"s_add_u32 s70, s70, {AP}")
        A(f"s_add_u32 s71, s71, {MB}")
        A(f"s_cmp_eq_u32 s{sCLS}, 2"); A("s_cselect_b32 s70, s71, s70")
        A(f"s_mul_i32 s71, s{sBLK}, 2304"); A(f"s_add_u32 s71, s71, {FP}")
        A(f"s_cmp_eq_u32 s{sCLS}, 1"); A("s_cselect_b32 s70, s71, s70")
        A("s_cselect_b32 exec_lo, 0x3ffff, 3")
        A(f"s_cmp_eq_u32 s{sCLS}, 3"); A(f"s_cselect_b32 s70, {AP}, s70")
        A(f"buffer_load_dword v233, v3, {WS}, s70 offen")
        if p.preread >= 2:
            A(f"s_lshl_b32 s70, s{sG}, 4"); A(f"s_add_u32 s70, s70, s{sJ}"); A("s_lshl_b32 s70, s70, 10"); A(f"s_add_u32 s70, s70, {QP}")
            A("s_mov_b64 exec, 0xff")
            A(f"buffer_load_dword v234, v3, {WS}, s70 offen")
            A("s_lshl_b32 s70, s2, 8"); A(f"s_min_u32 s70, s70, {143*256}"); A(f"s_add_u32 s70, s70, {MA}")
            A("s_mov_b64 exec, 3")
            A(f"buffer_load_dword v235, v3, {WS}, s70 offen")
        A("s_mov_b64 exec, -1")
    tagsetup()
    if p.fast:
        A("s_getreg_b32 s26, hwreg(HW_REG_XCC_ID)"); A("s_and_b32 s26, s26, 15")
        A(f"s_and_b32 s70, s{sTAG}, 0xfffffff0"); A("s_or_b32 s26, s26, s70")
        A("v_mov_b32 v21, s26")
        A(f"s_lshl_b32 s70, s{sG}, 11"); A(f"s_lshl_b32 s71, s{sJ}, 2"); A("s_add_u32 s70, s70, s71"); A(f"s_add_u32 s70, s70, {HINT2}")
        A(f"v_lshlrev_b32 v3, 7, v{vL}")
        A("s_mov_b64 exec, 0xffff")
        A(f"buffer_store_dword v21, v3, {WS}, s70 offen sc1")
        A("s_mov_b64 exec, -1")
    if p.hint:
        A(f"s_mul_i32 s64, s{sJ}, 36"); A("s_add_u32 s65, s64, 35"); A("s_lshr_b32 s64, s64, 6"); A("s_lshr_b32 s65, s65, 6")
        A(f"s_mul_i32 s69, s{sG}, 18")
        for r in (64, 65):
            A(f"s_add_u32 s{r}, s{r}, s69"); A(f"s_lshl_b32 s{r}, s{r}, 7"); A(f"s_add_u32 s{r}, s{r}, {HINT1}"); A(f"s_add_u32 s{r+2}, s{r}, {9*128}")
        hintwait([64, 65, 66, 67], 4)
    ldssignal(CNT_H1, 21)
    stamp(2)
    if p.fast:
        A(f"s_lshl_b32 s64, s{sG}, 4"); A(f"s_add_u32 s64, s64, s{sJ}"); A("s_lshl_b32 s64, s64, 7"); A(f"s_add_u32 s64, s64, {HINT2}")
        L = A.label("iw"); Lf = A.label("if"); Ld = A.label("id")
        A(f"s_mov_b32 s{sCNT}, {p.limit}")
        A(f"{L}:")
        A(f"s_load_dwordx16 s[44:59], {sp(sWS)}, s64 glc")
        A(f"s_mov_b32 s{sMODE}, 2")
        A("s_waitcnt lgkmcnt(0)")
        for k in range(16):
            A(f"s_xor_b32 s65, s{44+k}, s26")
            A(f"s_cselect_b32 s{sMODE}, 1, s{sMODE}")
            A("s_cmp_ge_u32 s65, 16")
            A(f"s_cbranch_scc1 {Lf}")
        A(f"s_branch {Ld}")
        A(f"{Lf}:")
        A(f"s_mov_b32 s{sMODE}, 1")
        A("s_sleep 2")
        A(f"s_sub_u32 s{sCNT}, s{sCNT}, 1")
        A(f"s_cbranch_scc0 {L}")
        A(f"{Ld}:")
        stamp(3)
    else:
        A(f"s_mov_b32 s{sMODE}, 1")
    A(f"v_mov_b32 v21, s{sMODE}")
    A("s_mov_b64 exec, 1")
    A(f"ds_add_u32 v{vZ}, v21 offset:{CNT_MODE}")
    A("s_mov_b64 exec, -1")
    if p.hint and not p.fast:
        A(f"s_lshl_b32 s64, s{sG}, 4"); A(f"s_add_u32 s64, s64, s{sJ}"); A("s_lshl_b32 s64, s64, 7"); A(f"s_add_u32 s64, s64, {HINT2}")
        hintwait([64], 8)
        ldssignal(CNT_H2, 21)
        stamp(3)
    A("s_branch L_c_s2w")
    A("L_c_n3:")
    tagsetup()
    A("s_cmp_lg_u32 s3, 0"); A("s_cbranch_scc1 L_c_wq")
    if p.c0e:
        A(f"s_cmp_lg_u32 s{sCLS}, 1"); A("s_cbranch_scc1 L_c0_nm")
        A("s_setprio 0")
        w1setup()
        w1loads(p.c0e)
        A("s_branch L_c_s2w")
        A("L_c0_nm:")
    A(f"s_cmp_lg_u32 s{sCLS}, 0"); A("s_cbranch_scc1 L_c_s2w")
    A("s_waitcnt vmcnt(9)")
    silu([20, 21], [22, 23])
    A("v_cvt_pk_bf16_f32 v20, v20, v21")
    gemv8(lambda n: (20, n), 9, [SB, SB + 4, SB + 8], 22, [(24, WB)], waits=lambda n: A(f"s_waitcnt vmcnt({8-n})"))
    stamp(2)
    halfadd([24], [28])
    tag1(24)
    A("s_mov_b64 exec, 0x00ff00ff")
    A(f"buffer_store_dwordx4 v[24:27], v{vST}, {WS}, s{sPUB} offen sc1")
    if p.hint:
        A(f"s_and_b32 s70, s{sG}, 1"); A("s_mul_i32 s70, s70, 9"); A(f"s_add_u32 s70, s70, s{sJ}"); A("s_lshl_b32 s70, s70, 7")
        A(f"s_and_b32 s71, s{sG}, 14"); A("s_add_u32 s70, s70, s71"); A(f"s_add_u32 s70, s70, {HINT1}")
        A("s_mov_b64 exec, -1")
        hintstore(70, 0xffff, 18 * 128, 3)
    A("s_mov_b64 exec, -1")
    stamp(3)
    A("s_branch L_c_s2w")
    A("L_c_wq:")
    A("s_waitcnt vmcnt(9)")
    for k in range(6):
        A(f"v_lshlrev_b32 v{28+2*k}, 16, v{20+k}")
        A(f"v_and_b32 v{29+2*k}, 0xffff0000, v{20+k}")
    A(f"v_cmp_gt_u32 vcc, 16, v{vL}")
    for k in range(8, 12): A(f"v_cndmask_b32 v{28+k}, 0, v{28+k}, vcc")
    A("v_pk_add_f32 v[20:21], v[28:29], v[30:31]")
    for k in range(2, 6): A(f"v_pk_add_f32 v[20:21], v[20:21], {r2(28+2*k)}")
    A("v_add_f32 v20, v20, v21")
    wavesum_s([20], [70])
    A(f"v_mov_b32 v20, {INV576}")
    A(f"v_mul_f32 v20, s70, v20")
    for k in range(12): A(f"v_sub_f32 v{28+k}, v{28+k}, v20")
    for k in range(8, 12): A(f"v_cndmask_b32 v{28+k}, 0, v{28+k}, vcc")
    A("v_pk_mul_f32 v[22:23], v[28:29], v[28:29]")
    for k in range(1, 6): A(f"v_pk_fma_f32 v[22:23], {r2(28+2*k)}, {r2(28+2*k)}, v[22:23]")
    A("v_add_f32 v22, v22, v23")
    wavesum_s([22], [70])
    A(f"v_mov_b32 v22, {INV576}")
    A(f"v_mul_f32 v22, s70, v22")
    bf16r(20, 20); bf16r(22, 22)
    A(f"v_add_f32 v22, {EPS}, v22")
    bf16r(22, 22)
    A("v_sqrt_f32 v22, v22")
    bf16r(22, 22)
    A("v_sub_f32 v26, v26, v20")
    bf16r(26, 26)
    A("v_rcp_f32 v23, v22")
    A("v_mul_f32 v21, v26, v23")
    A("v_fma_f32 v24, -v21, v22, v26")
    A("v_fma_f32 v21, v24, v23, v21")
    bf16r(26, 21)
    A(f"v_mul_u32_u24 v3, 4608, v{vG}")
    A(f"v_lshl_add_u32 v3, v15, 4, v3")
    A(f"v_add_lshl_u32 v15, v15, s{sJ}, 3")
    A(f"v_lshrrev_b32 v15, v15, v{vTAG}")
    A(f"s_mul_i32 s70, s{sJ}, 144"); A(f"s_add_u32 s70, s70, {MA}"); A(f"s_add_u32 s71, s70, 18432")
    A(f"s_lshl_b32 s44, s{sG}, 4"); A(f"s_add_u32 s44, s44, s{sJ}"); A(f"s_lshl_b32 s44, s44, 10")
    A(f"s_lshl_b32 s45, s3, 9"); A("s_add_u32 s44, s44, s45"); A(f"s_add_u32 s{sPUB}, s44, {QP-512}")
    A("s_waitcnt vmcnt(0)")
    stamp(2)
    if p.diag: ldswait(20, 4, 20)
    ldswait(CNT_H1, 1, 20)
    def s1set(b):
        def epi():
            addgran(28, b, b + 4); addgran(32, b + 8, b + 12)
        return ([f"buffer_load_dwordx4 {r4(b+4*a)}, v3, {WS}, s{70+(a&1)} offen offset:{2304*(a>>1)} sc1" for a in range(4)],
                [(b + 4 * a, "v15") for a in range(4)], epi)
    poll([s1set(G1 + 16 * i) for i in range(p.k1)], 20, p.g1, 0)
    stamp(3)
    redscat([28, 32])
    A("v_cvt_pk_bf16_f32 v28, v28, v32")
    A("v_and_b32 v32, 0xffff0000, v28")
    A("v_lshlrev_b32 v28, 16, v28")
    A(f"v_add_f32 v32, 1.0, v32")
    bf16r(32, 32)
    A(f"v_mul_f32 v26, v26, v32")
    bf16r(26, 26)
    A(f"v_add_f32 v26, v26, v28")
    A("v_cvt_pk_bf16_f32 v26, v26, v26")
    def bld(n):
        for d in range(4): A(f"v_and_b32_dpp v{SB+4*(n%3)+d}, v26, v{vMASK+d} row_newbcast:{n} {DPP}")
    bld(0)
    for n in range(9):
        if n < 8: bld(n + 1)
        mfma(28, SB + 4 * (n % 3), WB + 4 * n, n == 0)
    ldswait(CNT_MODE, 1, 20)
    A(f"v_readfirstlane_b32 s{sMODE}, v20")
    tag1(28)
    A("s_mov_b32 exec_hi, 0")
    pubstore("v[28:31]", f"v{vST}", sPUB)
    A("s_mov_b64 exec, -1")
    if p.hint and not p.fast:
        ldssignal(CNT_P, 21, rtn=True, last=1)
        A("s_cbranch_vccz L_c_s2w")
        A(f"s_lshl_b32 s70, s{sG}, 11"); A(f"s_lshl_b32 s71, s{sJ}, 1"); A("s_add_u32 s70, s70, s71"); A(f"s_add_u32 s70, s70, {HINT2}")
        hintstore(70, 0xffff, 128, 3)
    else:
        ldssignal(CNT_P, 21)
    stamp(4)
    A("L_c_s2w:")
    A(f"v_lshlrev_b32 v3, 10, v{vG}")
    A(f"v_lshl_add_u32 v3, v{vI}, 4, v3")
    A(f"s_lshl_b32 s70, s{sG}, 14"); A("s_lshl_b32 s71, s3, 8"); A("s_add_u32 s70, s70, s71"); A(f"s_add_u32 s44, s70, {QP}")
    for a in range(1, 4): A(f"s_add_u32 s{44+a}, s44, {4096*a}")
    A(f"v_lshl_add_u32 v14, v{vI}, 2, v{vG}")
    A(f"s_lshl_b32 s70, s3, 6")
    A(f"v_add_lshl_u32 v14, v14, s70, 1")
    if p.hint and not p.fast: ldswait(CNT_H2, 1, 20)
    else: ldswait(CNT_P, 2, 20)
    G2 = 40
    def s2set(b):
        return ([f"buffer_load_dwordx4 {r4(b+4*a)}, v3, {WS}, s{44+a} offen sc1" for a in range(4)],
                [(b + 4 * a, f"v{vTC}") for a in range(4)], lambda: sum4(28, b))
    poll([s2set(G2 + 16 * i) for i in range(p.k2)], 20, p.g2, 1)
    stamp(5)
    redscat([28])
    A(f"v_cvt_pk_bf16_f32 v20, v28, v28")
    A(f"ds_write_b16 v14, v20 offset:{L_Q}")
    ldssignal(CNT_Q, 21)
    stamp(6)
    A(f"s_cmp_eq_u32 s{sCLS}, 1"); A("s_cbranch_scc1 L_c_m")
    A("s_cmp_lg_u32 s3, 3"); A("s_cbranch_scc1 L_c_end")
    if p.hint and not p.fast:
        A(f"s_cmp_lg_u32 s{sCLS}, 0"); A("s_cbranch_scc1 L_c_end")
        A(f"s_add_u32 s64, s64, {HINT3-HINT2}")
        hintwait([64], 8)
        ldssignal(CNT_H3, 21)
        stamp(4)
    A(f"s_mov_b32 s{sBLK}, s{sG}")
    A(f"s_cmp_eq_u32 s{sJ}, 8"); A("s_cbranch_scc1 L_red")
    A(f"s_add_u32 s{sBLK}, s{sG}, 16")
    A(f"s_cmp_lg_u32 s{sJ}, 7"); A("s_cbranch_scc1 L_c_end")
    A(f"s_cmp_lt_u32 s{sG}, 2"); A("s_cbranch_scc1 L_red")
    A("L_c_end:")
    endwave()

    A("L_red:")
    A(f"v_and_b32 v14, 7, v{vI}")
    A(f"v_lshl_add_u32 v15, v14, 2, v{vG}")
    A(f"s_lshl_b32 s70, s{sBLK}, 5")
    A(f"v_add_u32 v15, s70, v15")
    A(f"v_lshlrev_b32 v18, 1, v15")
    A(f"global_load_short_d16_hi v24, v18, {sp(sX)}")
    A(f"global_load_short_d16_hi v25, v18, {sp(sB2)}")
    A(f"v_lshlrev_b32 v15, 2, v15")
    A(f"v_lshrrev_b32 v3, 3, v{vL}")
    A(f"v_mul_u32_u24 v3, 2304, v3")
    A(f"v_lshl_add_u32 v3, v14, 4, v3")
    A(f"s_lshl_b32 s70, s{sBLK}, 7")
    A(f"v_add_u32 v3, s70, v3")
    A(f"s_mov_b32 s44, {AP}"); A(f"s_mov_b32 s45, {AP+18432}"); A(f"s_mov_b32 s46, {MB}"); A(f"s_mov_b32 s47, {MB+1728*4}")
    ldswait(CNT_W, 4, 20)
    stamp(7)
    poll([([f"buffer_load_dwordx4 {r4(40+4*a)}, v3, {WS}, s{44+a} offen sc1" for a in range(2)] +
           [f"buffer_load_dword v26, v15, {WS}, s46 offen sc1", f"buffer_load_dword v27, v15, {WS}, s47 offen sc1"],
           [(40, f"v{vTC}"), (44, f"v{vTC}"), (26, f"v{vTG}"), (27, f"v{vTG}")], lambda: None)], 20, 0, 2)
    stamp(8)
    addgran(40, 40, 44)
    redscat([40])
    A(f"v_add_f32_dpp v40, v40, v40 row_ror:8 {DPP}")
    A("v_and_b32 v26, 0xffff0000, v26")
    A("v_and_b32 v27, 0xffff0000, v27")
    bf16r(40, 40)
    A("v_mul_f32 v40, v40, v26")
    bf16r(40, 40)
    A("v_add_f32 v24, v24, v40")
    bf16r(24, 24)
    for a in range(9): A(f"s_mov_b32 s{44+a}, {FP+18432*a}")
    def s5set(b):
        def epi():
            addgran(b, b, b + 32); sum4(28, b); sum4(32, b + 16); addgran(28, 28, 32)
        return ([f"buffer_load_dwordx4 {r4(b+4*a)}, v3, {WS}, s{44+a} offen sc1" for a in range(9)],
                [(b + 4 * a, f"v{vTC}") for a in range(9)], epi)
    poll([s5set(40 + 36 * i) for i in range(p.k5)], 20, p.g5, 3)
    stamp(9)
    redscat([28])
    A(f"v_add_f32_dpp v28, v28, v28 row_ror:8 {DPP}")
    bf16r(28, 28)
    A("v_add_f32 v28, v28, v25")
    bf16r(28, 28)
    A("v_mul_f32 v28, v28, v27")
    bf16r(28, 28)
    A("v_add_f32 v28, v28, v24")
    A("v_cvt_pk_bf16_f32 v28, v28, v28")
    if p.xfix:
        A("L_xf:"); A("s_memrealtime s[96:97]"); A("s_waitcnt lgkmcnt(0)"); A("s_sub_u32 s96, s96, s98"); A(f"s_cmp_lt_u32 s96, {p.xfix}"); A("s_cbranch_scc1 L_xf")
    A("s_mov_b32 exec_lo, 0x00ff00ff"); A("s_mov_b32 exec_hi, 0x00ff00ff")
    A(f"global_store_short v18, v28, {sp(sOUT)}")
    A(f"s_cmp_lg_u32 s{sBLK}, 0"); A("s_cbranch_scc1 L_red_end")
    A("s_mov_b64 exec, 1")
    A(f"global_store_dword v{vZ}, v{vTAG}, {sp(sWS)} offset:{EPOCH} sc1")
    A("L_red_end:")
    if p.dbg:
        A("s_memrealtime s[96:97]")
        A("s_load_dwordx2 s[70:71], s[0:1], 104")
        A("s_waitcnt lgkmcnt(0)")
        A("s_sub_u32 s96, s96, s98")
        A("s_mov_b64 exec, 1")
        A(f"s_lshl_b32 s97, s{sBLK}, 2")
        A("v_mov_b32 v3, s97")
        A("v_mov_b32 v4, s96")
        A("global_store_dword v3, v4, s[70:71]")
    stamp(10)
    endwave()

    A("L_c_m:")
    if p.c0e:
        A("s_cmp_eq_u32 s3, 0"); A("s_cbranch_scc1 L_mphase")
    w1setup()
    if p.k2 > 1: A("s_waitcnt vmcnt(0)")
    if p.ctrig:
        A("s_setprio 0")
        ldswait(CNT_PUB, 1, 20)
    w1loads(p.DC)
    A("s_branch L_mphase")

    KB, VB, OA = 40, 104, 240
    vK, vV, QA, QB = 14, 15, 20, 24
    A("L_main:")
    A(f"s_sub_u32 s{sW}, s3, 4")
    A(f"s_lshl_b32 s{sT}, s{sG}, 23")
    KVSH = 16 if p.inter else 12
    A(f"s_lshl_b32 s70, s{sJ}, {28-KVSH}")
    A(f"s_add_u32 s{sT}, s{sT}, s70")
    A(f"s_add_u32 s{sT}, s{sT}, 7340032")
    A(f"s_lshl_b32 s70, s{sW}, 10")
    A(f"v_lshlrev_b32 v{vK}, 6, v{vI}")
    A(f"v_lshl_add_u32 v{vK}, v{vG}, 4, v{vK}")
    A(f"v_add_u32 v{vK}, s70, v{vK}")
    A(f"v_lshl_add_u32 v{vV}, v{vL}, 4, s70")
    if p.rot:
        A(f"s_mul_i32 s{sROT}, s2, {p.rot}"); A("s_lshr_b32 s70, s2, 4"); A(f"s_add_u32 s{sROT}, s{sROT}, s70")
        A(f"s_lshl_b32 s{sROT}, s{sROT}, {KVSH}"); A(f"s_and_b32 s{sROT}, s{sROT}, {hex((16<<KVSH)-1)}")
    else:
        A(f"s_mov_b32 s{sROT}, 0")
    A("s_waitcnt lgkmcnt(0)")
    set_srd(R_A, sT, sK, (15 << KVSH) + 4096)
    set_srd(R_B, sT, sV, (15 << KVSH) + 4096)
    A("s_barrier")
    stamp(1)
    def tail_setup():
        LM, LB_, LE = A.label("tM"), A.label("tB"), A.label("tE")
        sSA, sHA = 70, 71
        A(f"s_cmp_eq_u32 s{sCLS}, 2"); A(f"s_cbranch_scc1 {LB_}")
        A(f"s_mov_b32 s{sST}, 4608")
        A(f"s_mov_b32 s{sSA}, 1152"); A(f"s_mov_b32 s{sHA}, {32*1152}")
        A(f"s_cmp_eq_u32 s{sCLS}, 1"); A(f"s_cbranch_scc1 {LM}")
        A(f"s_lshl_b32 s{sT}, s{sG}, 2")
        A(f"s_add_u32 s{sT}, s{sT}, s{sW}")
        A(f"s_mul_i32 s{sT}, s{sT}, {64*1152}")
        A(f"s_lshl_b32 s{sO1}, s{sJ}, 7")
        A(f"s_add_u32 s{sT}, s{sT}, s{sO1}")
        set_srd(R_T1, sT, sWO, 64 * 1152)
        set_srd(R_T2, sT, sWO, 0)
        A(f"s_cmp_eq_u32 s{sCLS}, 0")
        A(f"s_cselect_b32 s{R_T1+2}, s{R_T1+2}, 0")
        A(f"s_branch {LE}")
        A(f"{LM}:")
        A(f"s_mul_i32 s{sT}, s{sBLK}, {64*1152}")
        A(f"s_lshl_b32 s{sO1}, s{sW}, 7")
        A(f"s_add_u32 s{sT}, s{sT}, s{sO1}")
        set_srd(R_T1, sT, sW2, 64 * 1152)
        A(f"s_add_u32 s{sT}, s{sT}, 512")
        set_srd(R_T2, sT, sW2, 64 * 1152)
        A(f"s_branch {LE}")
        A(f"{LB_}:")
        A(f"s_mul_i32 s{sT}, s{sW}, {144*6912}")
        A(f"s_lshl_b32 s{sO1}, s{sBLK}, 7")
        A(f"s_add_u32 s{sT}, s{sT}, s{sO1}")
        A(f"s_add_u32 s{sT}, s{sT}, 2304")
        set_srd(R_T1, sT, sWM, 64 * 6912)
        A(f"s_add_u32 s{sT}, s{sT}, {64*6912}")
        set_srd(R_T2, sT, sWM, 80 * 6912)
        A(f"s_mov_b32 s{sST}, {8*6912}")
        A(f"s_mov_b32 s{sSA}, 6912"); A(f"s_mov_b32 s{sHA}, {4*6912}")
        A(f"{LE}:")
        A(f"v_and_b32 v3, 7, v{vI}")
        A(f"v_lshlrev_b32 v3, 4, v3")
        A(f"v_lshrrev_b32 v18, 3, v{vI}")
        A(f"v_mad_u32_u24 v{vT}, v{vG}, s{sSA}, v3")
        A(f"v_mad_u32_u24 v{vT}, v18, s{sHA}, v{vT}")
        A(f"s_mov_b32 s{sO1}, 0"); A(f"s_mov_b32 s{sO2}, 0")
    seq = []
    ne = 0
    for n in range(32):
        seq.append(("kv", n))
        if n + 1 >= p.epos and (n + 1 - p.epos) % p.estep == 0:
            for _ in range(p.E if p.estep == 1 and False else 1):
                if ne < p.E: seq.append(("e", ne)); ne += 1
    assert ne == p.E
    if p.EB2:
        assert p.E == 0
        seq = []
        for n in range(32):
            seq.append(("kv", n))
            if n >= 8 and (n - 8) % 3 == 0 and (n - 8) // 3 < 8: seq.append(("b", (n - 8) // 3))
    lastk = max(i for i, x in enumerate(seq) if x == ("kv", 15))
    vpos = [seq.index(("kv", 16 + n)) for n in range(16)]
    for idx, (kind, n) in enumerate(seq):
        if idx >= p.D and idx < len(seq) - p.X:
            if p.DW and idx > p.D + 4:
                Lk = A.label("dw")
                A(f"s_waitcnt vmcnt({p.DW-1})")
                A(f"s_cbranch_vccnz {Lk}")
                A(f"s_waitcnt vmcnt({p.D-1})")
                A(f"{Lk}:")
            else:
                A(f"s_waitcnt vmcnt({p.D-1})")
        if p.pause1 and idx == p.pause1: ldswait(CNT_H1, 1, 30)
        if p.pause2 and idx == p.pause2: ldswait(CNT_H2, 1, 30)
        if kind == "b":
            if n == 0:
                A(f"s_mov_b32 s26, s{R_T2+2}")
                A(f"s_cmp_eq_u32 s{sCLS}, 2"); A(f"s_cselect_b32 s{R_T2+2}, s{R_T2+2}, 0")
            tail_load(8 + n)
            if n == 7:
                A(f"s_mov_b32 s{R_T2+2}, s26")
                A(f"s_cmp_eq_u32 s{sCLS}, 2"); A(f"s_cselect_b32 s{sO2}, s{sO2}, 0")
            continue
        if kind == "e":
            if n == 0 and not p.EB and p.EM:
                A(f"s_mov_b32 s19, s{R_T1+2}")
                A(f"s_cmp_eq_u32 s{sCLS}, 2"); A(f"s_cselect_b32 s{R_T1+2}, 0, s{R_T1+2}")
            if n == p.EM:
                A(f"s_mov_b32 s26, s{R_T1+2}"); A(f"s_mov_b32 s27, s{sO1}")
                A(f"s_cmp_eq_u32 s{sCLS}, 0"); A(f"s_cselect_b32 s{R_T1+2}, s{R_T1+2}, 0")
            tail_load(n)
            if n == p.E - 1 and p.EM < p.E:
                A(f"s_mov_b32 s{R_T1+2}, s26"); A(f"s_mov_b32 s{sO1}, s27")
            continue
        if n < 16: A(f"buffer_load_dwordx4 {r4(KB+4*n)}, v{vK}, {srd(R_A)}, s{sROT} offen {nt}")
        else: A(f"buffer_load_dwordx4 {r4(VB+4*(n-16))}, v{vV}, {srd(R_B)}, s{sROT} offen {nt}")
        A(f"s_add_u32 s{sROT}, s{sROT}, {1<<KVSH}"); A(f"s_and_b32 s{sROT}, s{sROT}, {hex((16<<KVSH)-1)}")
        if n == p.D - 1:
            A(f"s_load_dword s{sTAG}, {sp(sWS)}, {EPOCH}")
            A(f"s_mov_b64 {sp(R_WS)}, {sp(sWS)}")
            classify()
            consts()
            tail_setup()
        if n == p.D + 3:
            tagsetup()
            A(f"v_and_b32 v3, 3, v{vI}")
            A(f"v_lshl_add_u32 v3, v3, 2, v{vG}")
            A(f"v_lshlrev_b32 v3, 4, v3")
            A(f"v_lshrrev_b32 v18, 3, v{vI}")
            A(f"v_lshl_add_u32 v3, v18, 8, v3")
            A(f"v_add_u32 v3, {L_Q}, v3")
            A(f"v_and_b32 v19, 4, v{vI}")
            A(f"v_cmp_eq_u32 vcc, 0, v19")
            A(f"v_mov_b32 v19, {L_ZERO}")
            A(f"v_cndmask_b32 v28, v19, v3, vcc")
            A(f"v_cndmask_b32 v29, v3, v19, vcc")
            A(f"s_lshl_b32 s70, s{sW}, 2")
            A(f"v_lshl_add_u32 v19, v18, 4, s70")
            A(f"v_lshrrev_b32 v17, 1, v{vG}")
            A(f"v_lshlrev_b32 v17, 4, v17")
            A(f"s_lshl_b32 s70, s{sG}, 4"); A(f"s_add_u32 s70, s70, s{sJ}"); A("s_mul_i32 s70, s70, 1152"); A(f"s_add_u32 s{sPUB}, s70, {OP}")
            A(f"v_and_b32 v3, 1, v{vG}")
            A(f"v_lshlrev_b32 v18, 5, v17")
            A(f"v_lshl_add_u32 v18, v3, 4, v18")
            A(f"v_lshl_add_u32 v18, v{vI}, 5, v18")
            if p.DW:
                A(f"s_cmp_le_u32 s{sCLS}, {1 if p.EM else 0}"); A("s_cselect_b64 vcc, -1, 0")
    stamp(2)
    if p.diag:
        A("s_waitcnt vmcnt(0)")
        stamp(11)
        ldssignal(20, 30)
    later = list(range(8, 16)) + list(range(min(p.EM, p.E), 8))
    if p.E == 0: later = list(range(16))
    for k in range(p.PRE): tail_load(later[k])
    for k, m in ((44, 0x22222222), (46, 0x44444444), (48, 0x88888888)):
        A(f"s_mov_b32 s{k}, {hex(m)}"); A(f"s_mov_b32 s{k+1}, {hex(m)}")
    A(f"s_mov_b32 s70, 0x3db504f3")
    A(f"s_mov_b32 s71, {hex(LOG2E)}")
    ldswait(CNT_Q, 4, 30)
    stamp(3)
    A(f"ds_read_b128 {r4(QA)}, v28")
    A(f"ds_read_b128 {r4(QB)}, v29")
    A(f"s_waitcnt vmcnt({len(seq)-1-lastk+p.PRE}) lgkmcnt(1)")
    T = [KB + 4 * (8 * r + u) for r in range(2) for u in range(4)]
    for t in T: A(f"v_mfma_f32_16x16x32_bf16 {r4(t)}, {r4(t)}, {r4(QA)}, 0")
    A("s_waitcnt lgkmcnt(0)")
    for t in T: A(f"v_mfma_f32_16x16x32_bf16 {r4(t)}, {r4(t+16)}, {r4(QB)}, {r4(t)}")
    for r in range(2):
        for t in T[4*r:4*r+4]: A(f"v_mov_b32_dpp v{t}, v{t} quad_perm:[0,0,0,0] {DPP}")
        for e in range(1, 4):
            for t in T[4*r:4*r+4]: A(f"v_add_f32_dpp v{t}, v{t+e}, v{t} quad_perm:[{e},{e},{e},{e}] {DPP}")
    PR = 30
    for r in range(2): A(f"v_cndmask_b32 v{PR+r}, v{T[4*r]}, v{T[4*r+1]}, s[44:45]")
    for r in range(2): A(f"v_cndmask_b32 v{PR+r}, v{PR+r}, v{T[4*r+2]}, s[46:47]")
    for r in range(2): A(f"v_cndmask_b32 v{PR+r}, v{PR+r}, v{T[4*r+3]}, s[48:49]")
    A("v_cvt_pk_bf16_f32 v32, v30, v31")
    A("v_lshlrev_b32 v30, 16, v32"); A("v_and_b32 v31, 0xffff0000, v32")
    A("v_pk_mul_f32 v[30:31], v[30:31], s[70:71] op_sel_hi:[1,0]")
    A("v_cvt_pk_bf16_f32 v32, v30, v31")
    A("v_lshlrev_b32 v30, 16, v32"); A("v_and_b32 v31, 0xffff0000, v32")
    A("v_max_f32 v32, v30, v31")
    for ctl in ("quad_perm:[1,0,3,2]", "quad_perm:[2,3,0,1]", "row_half_mirror"):
        A(f"v_max_f32_dpp v32, v32, v32 {ctl} {DPP}")
    rowsall("v_max_f32", [32], [33])
    A("v_pk_add_f32 v[30:31], v[30:31], v[32:33] op_sel_hi:[1,0] neg_lo:[0,1] neg_hi:[0,1]")
    A(f"ds_write_b32 v19, v32 offset:{L_MAX}")
    A("v_pk_mul_f32 v[30:31], v[30:31], s[70:71] op_sel:[0,1] op_sel_hi:[1,1]")
    A("v_exp_f32 v30, v30"); A("v_exp_f32 v31, v31")
    A("v_add_f32 v33, v30, v31")
    A("v_cvt_pk_bf16_f32 v30, v30, v30"); A("v_cvt_pk_bf16_f32 v31, v31, v31")
    A(f"v_add_f32_dpp v33, v33, v33 quad_perm:[1,0,3,2] {DPP}")
    A(f"v_mov_b32_dpp v34, v30 row_half_mirror {DPP}")
    A(f"v_mov_b32_dpp v35, v31 row_half_mirror {DPP}")
    A(f"v_add_f32_dpp v33, v33, v33 quad_perm:[2,3,0,1] {DPP}")
    def pbuild(n):
        r, k = n >> 3, n & 7
        for d in range(4):
            if (k >> 2) == (d >> 1): src, q = 30 + r, k & 3
            else: src, q = 34 + r, (7 - k) & 3
            A(f"v_and_b32_dpp v{KB+4*n+d}, v{src}, v{vMASK+d} quad_perm:[{q},{q},{q},{q}] {DPP}")
    pbuild(0)
    A(f"v_add_f32_dpp v33, v33, v33 row_half_mirror {DPP}")
    pbuild(1)
    rowsall("v_add_f32", [33], [36])
    A(f"ds_write_b32 v19, v33 offset:{L_LB}")
    ldssignal(CNT_L, 36)
    for n in range(2, 16): pbuild(n)
    stamp(4)
    A(f"s_lshl_b32 s70, s{sW}, 2")
    A(f"v_add_u32 v3, s70, v17")
    ldswait(CNT_L, 4, 36)
    A(f"ds_read_b128 v[20:23], v17 offset:{L_MAX}")
    A(f"ds_read_b128 v[24:27], v17 offset:{L_LB}")
    A(f"ds_read_b32 v36, v3 offset:{L_MAX}")
    A(f"ds_read_b32 v37, v{vZ} offset:{CNT_MODE}")
    A("s_waitcnt lgkmcnt(0)")
    A(f"v_readfirstlane_b32 s{sMODE}, v37")
    A("v_max3_f32 v32, v20, v21, v22"); A("v_max_f32 v32, v32, v23")
    for v in (20, 21, 22, 23, 36): A(f"v_sub_f32 v{v}, v{v}, v32")
    for v in (20, 21, 22, 23, 36): A(f"v_mul_f32 v{v}, s71, v{v}")
    for v in (20, 21, 22, 23, 36): A(f"v_exp_f32 v{v}, v{v}")
    A("v_mul_f32 v33, v20, v24")
    for e in range(1, 4): A(f"v_fmac_f32 v33, v{20+e}, v{24+e}")
    A("v_permlane32_swap_b32 v32, v34")
    A("v_permlane32_swap_b32 v33, v35")
    tag4(32)
    A(f"s_lshl_b32 s70, s{sW}, 10")
    A(f"v_lshlrev_b32 v20, 4, v{vL}")
    A(f"v_add_u32 v19, s70, v20")
    issued = p.PRE
    if p.mprio: A(f"s_setprio {p.mprio}")
    for n in range(16):
        A(f"s_waitcnt vmcnt({len(seq)-1-vpos[n]+issued})")
        mfma(OA, KB + 4 * n, VB + 4 * n, n == 0)
        want = min(8, max(p.PRE, p.D2 - 15 + n))
        while issued < want:
            tail_load(later[issued]); issued += 1
    stamp(5)
    A(f"v_pk_mul_f32 {r2(OA)}, {r2(OA)}, v[36:37] op_sel_hi:[1,0]")
    A(f"v_pk_mul_f32 {r2(OA+2)}, {r2(OA+2)}, v[36:37] op_sel_hi:[1,0]")
    A(f"ds_write_b128 v19, {r4(OA)} offset:{L_OB}")
    ldssignal(CNT_O, 26, rtn=True)
    A("s_cbranch_vccz L_m_pub_done")
    for w in range(4): A(f"ds_read_b128 {r4(KB+4*w)}, v20 offset:{L_OB+1024*w}")
    A("s_waitcnt lgkmcnt(0)")
    sum4(KB, KB)
    tag1(KB)
    pubstore(r4(KB), "v18", sPUB)
    A("s_mov_b64 exec, 1")
    pubstore("v[32:35]", f"v{vZ}", sPUB, "offset:1024")
    A("s_mov_b64 exec, -1")
    if p.hint and not p.fast:
        A(f"s_lshl_b32 s70, s{sG}, 11"); A(f"s_lshl_b32 s71, s{sJ}, 1"); A("s_add_u32 s70, s70, s71"); A(f"s_add_u32 s70, s70, {HINT3}")
        hintstore(70, 0x1ff, 128, 3)
    ldssignal(CNT_PUB, 26)
    A("L_m_pub_done:")
    if p.mprio: A("s_setprio 0")
    stamp(6)
    A(f"s_cmp_eq_u32 s{sCLS}, 0"); A("s_cbranch_scc1 L_wphase")
    A(f"s_cmp_eq_u32 s{sCLS}, 3"); A("s_cbranch_scc1 L_m_end")
    if p.ctrig: ldswait(CNT_PUB, 1, 26)
    rest = later[issued:]
    common = [k for k in rest if k < 8] if p.E == 0 else rest
    t2 = [k for k in rest if k >= 8] if p.E == 0 else []
    for k in common:
        if p.D3 < 63: A(f"s_waitcnt vmcnt({p.D3-1})")
        tail_load(k)
    A(f"s_cmp_eq_u32 s{sCLS}, 1"); A("s_cbranch_scc1 L_m_m")
    if not p.EB2:
        for k in t2: tail_load(k)

    if not p.EB and p.EM:
        A(f"s_mov_b32 s{R_T1+2}, s19"); A(f"s_mov_b32 s{sO1}, 0")
        for k in range(p.EM):
            if p.D3 < 63: A(f"s_waitcnt vmcnt({p.D3-1})")
            tail_load(k)
    for k in (16, 17):
        if p.D3 < 63: A(f"s_waitcnt vmcnt({p.D3-1})")
        tail_load(k)
    A(f"s_mul_i32 s70, s{sW}, 144")
    A(f"v_lshl_add_u32 v3, v{vI}, 3, v{vG}")
    A(f"v_add_lshl_u32 v3, v3, s70, 1")
    A(f"global_load_short_d16_hi v24, v3, {sp(sC)}")
    A(f"global_load_short_d16_hi v25, v3, {sp(sC)} offset:8")
    A(f"v_and_b32 v3, 1, v{vI}")
    A(f"v_lshl_add_u32 v3, v3, 3, v{vG}")
    A(f"v_add_lshl_u32 v3, v3, s70, 1")
    A(f"global_load_short_d16_hi v26, v3, {sp(sC)} offset:256")
    A(f"global_load_short_d16_hi v27, v3, {sp(sC)} offset:264")
    A(f"s_lshl_b32 s{sPUB}, s{sBLK}, 8"); A(f"s_add_u32 s{sPUB}, s{sPUB}, {MB}")
    A("s_waitcnt vmcnt(0)")
    silu([24, 25, 26, 27], [28, 29, 30, 31])
    A("v_cvt_pk_bf16_f32 v24, v24, v25")
    A("v_cvt_pk_bf16_f32 v26, v26, v27")
    gemv8(lambda n: (24 if n < 16 else 26, n & 15), 18, [KB, KB + 4, KB + 8], 28, [(OA, T1B)])
    A("s_nop 7")
    A("s_branch L_comb")

    A("L_wphase:")
    if p.E == 0:
        for k in range(issued, 8): tail_load(k)
    A(f"v_mul_u32_u24 v3, 1152, v{vG}")
    A(f"v_and_b32 v21, 3, v{vI}")
    A(f"v_mul_u32_u24 v21, 4608, v21")
    A(f"v_add_u32 v21, v21, v3")
    A(f"v_lshl_add_u32 v3, v{vI}, 4, v3")
    A(f"s_mul_i32 s70, s{sG}, {16*1152}"); A(f"s_add_u32 s48, s70, {OP}")
    A(f"s_lshl_b32 s71, s{sW}, 8"); A("s_add_u32 s44, s48, s71")
    for a in range(1, 4): A(f"s_add_u32 s{44+a}, s44, {4608*a}")
    A(f"s_mul_i32 s{sPUB}, s{sG}, 2304"); A(f"s_lshl_b32 s70, s{sJ}, 8"); A(f"s_add_u32 s{sPUB}, s{sPUB}, s70"); A(f"s_add_u32 s{sPUB}, s{sPUB}, {AP}")
    A(f"s_cmp_ge_u32 s{sW}, 2"); A("s_cselect_b64 s[70:71], -1, 0")
    if p.hint and not p.fast: ldswait(CNT_H3, 1, 22)
    b = VB; S = VB + 16
    L3 = A.label("s3")
    A(f"s_mov_b32 s49, {p.limit}")
    A(f"{L3}:")
    poll([([f"buffer_load_dwordx4 {r4(S)}, v21, {WS}, s48 offen offset:1024 sc1"], [(S + e, f"s{sTAG+e}") for e in range(4)], lambda: None)], 22, 0, 2)
    stamp(9)
    for a in range(4): A(f"buffer_load_dwordx4 {r4(b+4*a)}, v3, {WS}, s{44+a} offen sc1")
    A(f"v_cndmask_b32 v24, v{S}, v{S+2}, s[70:71]")
    A(f"v_cndmask_b32 v25, v{S+1}, v{S+3}, s[70:71]")
    A("v_and_b32 v24, 0xffff0000, v24")
    A(f"v_max_f32_dpp v26, v24, v24 quad_perm:[1,0,3,2] {DPP}")
    A(f"v_max_f32_dpp v26, v26, v26 quad_perm:[2,3,0,1] {DPP}")
    rowsall("v_max_f32", [26], [27])
    A("v_sub_f32 v24, v24, v26")
    A(f"v_mul_f32 v24, {hex(LOG2E)}, v24")
    A("v_exp_f32 v24, v24")
    A("v_mul_f32 v25, v24, v25")
    A(f"v_add_f32_dpp v25, v25, v25 quad_perm:[1,0,3,2] {DPP}")
    A(f"v_add_f32_dpp v25, v25, v25 quad_perm:[2,3,0,1] {DPP}")
    rowsall("v_add_f32", [25], [27])
    A("v_rcp_f32 v25, v25")
    A("v_mul_f32 v24, v24, v25")
    for a in range(4):
        A(f"s_waitcnt vmcnt({3-a})")
        if a == 0: A(f"v_xor_b32 v22, v{vTC}, v{b}")
        else: A(f"v_bitop3_b32 v22, v{b+4*a}, v{vTC}, v22 bitop3:0xbe")
        for e in range(4):
            A(f"{'v_mul_f32_dpp' if a == 0 else 'v_fmac_f32_dpp'} v{28+e}, v24, v{b+4*a+e} quad_perm:[{a},{a},{a},{a}] {DPP}")
    A("v_and_b32 v22, 0xff, v22")
    A("v_cmp_ne_u32 vcc, 0, v22")
    A("s_cbranch_vccz L_s3ok")
    A("s_sub_u32 s49, s49, 1")
    A(f"s_cbranch_scc0 {L3}")
    A("L_s3ok:")
    stamp(7)
    redscat([28])
    A(f"v_mov_b32_dpp v29, v28 row_ror:8 {DPP}")
    A("v_cvt_pk_bf16_f32 v28, v28, v29")
    gemv8(lambda n: (28, n), 8, [KB, KB + 4, KB + 8], 30, [(OA, T1B)])
    A("L_comb:")
    A(f"ds_write_b128 v19, {r4(OA)} offset:{L_WB}")
    ldssignal(CNT_W, 26, rtn=True)
    A("s_cbranch_vccz L_m_end")
    for w in range(4): A(f"ds_read_b128 {r4(KB+4*w)}, v20 offset:{L_WB+1024*w}")
    A("s_waitcnt lgkmcnt(0)")
    sum4(KB, KB)
    halfadd([KB], [KB + 4])
    A(f"s_cmp_eq_u32 s{sCLS}, 0"); A("s_cbranch_scc1 L_comb_w")
    for e in range(4): bf16r(KB + e, KB + e)
    tag4(KB)
    A("s_branch L_comb_st")
    A("L_comb_w:")
    tag1(KB)
    A("L_comb_st:")
    A("s_mov_b64 exec, 0x00ff00ff")
    A(f"buffer_store_dwordx4 {r4(KB)}, v{vST}, {WS}, s{sPUB} offen sc1")
    A("L_m_end:")
    stamp(8)
    endwave()

    X2B = KB
    A("L_m_m:")
    def m_rest(lab):
        for k in t2: tail_load(k)
        A(f"s_cmp_lg_u32 s{sW}, 0"); A(f"s_cbranch_scc1 {lab}")
        A(f"s_mov_b32 s{sO1}, 1024")
        for k in range(8):
            A(f"buffer_load_dwordx4 {r4(X2B+4*k)}, v{vT}, {srd(R_T1)}, s{sO1} offen {nt}")
            A(f"s_add_u32 s{sO1}, s{sO1}, s{sST}")
    if not p.ZH: m_rest("L_mphase")
    A("L_mphase:")
    stamp(7)
    A(f"v_lshl_add_u32 v14, v{vI}, 2, v{vG}")
    A(f"s_lshl_b32 s70, s3, 6")
    A(f"v_add_u32 v15, s70, v14")
    A(f"v_lshlrev_b32 v3, 1, v15")
    A(f"global_load_short_d16_hi v24, v3, {sp(sX)}")
    A(f"v_lshlrev_b32 v3, 1, v14")
    A(f"global_load_short_d16_hi v25, v3, {sp(sX)} offset:1024")
    A(f"s_lshl_b32 s70, s{sBLK}, 7")
    A(f"v_add_u32 v3, s70, v3")
    A(f"global_load_short_d16_hi v23, v3, {sp(sB1)}")
    A(f"v_lshlrev_b32 v15, 2, v15")
    A(f"v_lshlrev_b32 v22, 2, v14")
    A(f"v_mul_u32_u24 v3, 2304, v{vG}")
    A(f"v_lshl_add_u32 v3, v{vI}, 4, v3")
    A(f"s_lshl_b32 s70, s3, 8"); A(f"s_add_u32 s44, s70, {AP}")
    for a in range(1, 4): A(f"s_add_u32 s{44+a}, s44, {9216*a}")
    A(f"s_mov_b32 s48, {MB}"); A(f"s_mov_b32 s49, {MB+4608}")
    for a in range(4): A(f"s_mov_b32 s{18+a}, {AP+2048+9216*a}")
    A(f"s_mov_b32 s50, {MB+2048}"); A(f"s_mov_b32 s51, {MB+2048+2304}"); A(f"s_mov_b32 s22, {MB+2048+4608}")
    A(f"v_lshlrev_b32 v18, 4, v{vL}")
    A(f"v_lshlrev_b32 v19, 2, v{vL}")
    A(f"s_mul_i32 s70, s3, 144")
    A(f"v_lshl_add_u32 v20, v{vI}, 3, v{vG}")
    A(f"v_add_lshl_u32 v20, v20, s70, 2")
    A(f"v_and_b32 v17, 1, v{vI}")
    A(f"v_lshl_add_u32 v17, v17, 3, v{vG}")
    A(f"s_add_u32 s70, s70, 128")
    A(f"v_add_lshl_u32 v17, v17, s70, 2")
    for k, off in enumerate((L_X2, L_AA, L_SS)):
        A(f"v_add_u32 v{72+2*k}, {off}, v20")
        A(f"v_add_u32 v{73+2*k}, {off}, v17")
    A(f"v_lshrrev_b32 v21, 1, v{vG}")
    A(f"s_lshl_b32 s70, s3, 1")
    A(f"v_add_lshl_u32 v21, v21, s70, 8")
    A(f"v_and_b32 v17, 7, v{vI}")
    A(f"v_lshl_add_u32 v21, v17, 5, v21")
    A(f"v_and_b32 v17, 1, v{vG}")
    A(f"v_lshl_add_u32 v21, v17, 4, v21")
    A(f"s_mul_i32 s{sPUB}, s{sBLK}, 2304"); A("s_lshl_b32 s70, s3, 8"); A(f"s_add_u32 s{sPUB}, s{sPUB}, s70"); A(f"s_add_u32 s{sPUB}, s{sPUB}, {FP-1024}")
    if p.XW < 63:
        A(f"s_waitcnt vmcnt({p.XW})")
        A("s_barrier")
        stamp(11)
    def blockstep(items):
        redscat([G for G, _, _ in items])
        for G, ga, xr in items:
            A(f"v_and_b32 v{ga+2}, 0xffff0000, v{ga+2}")
            A(f"v_cvt_pk_bf16_f32 v{G}, v{G}, v{G}")
            A(f"v_and_b32 v{ga}, 0xffff0000, v{ga}")
            A(f"v_lshlrev_b32 v{G}, 16, v{G}")
            A(f"v_add_f32 v{ga+2}, 1.0, v{ga+2}")
            A(f"v_mul_f32 v{G}, v{G}, v{ga}")
            A(f"v_cvt_pk_bf16_f32 v{G}, v{G}, v{ga+2}")
            A(f"v_and_b32 v{ga+2}, 0xffff0000, v{G}")
            A(f"v_lshlrev_b32 v{G}, 16, v{G}")
            A(f"v_add_f32 v{G}, v{G}, v{xr}")
            bf16r(G, G)
            A(f"v_and_b32 v{ga+1}, 0xffff0000, v{ga+1}")
    def s4set(b, two):
        loads = [f"buffer_load_dwordx4 {r4(b+4*a)}, v3, {WS}, s{44+a} offen sc1" for a in range(4)]
        loads += [f"buffer_load_dword v{b+16}, v15, {WS}, s48 offen sc1",
                  f"buffer_load_dword v{b+17}, v15, {WS}, s48 offen offset:2304 sc1",
                  f"buffer_load_dword v{b+18}, v15, {WS}, s49 offen sc1"]
        checks = [(b + 4 * a, f"v{vTC}") for a in range(4)] + [(b + 16 + e, f"v{vTG}") for e in range(3)]
        if two:
            c = b + 20
            loads += [f"buffer_load_dwordx4 {r4(c+4*a)}, v3, {WS}, s{18+a} offen sc1" for a in range(4)]
            loads += [f"buffer_load_dword v{c+16}, v22, {WS}, s50 offen sc1",
                      f"buffer_load_dword v{c+17}, v22, {WS}, s51 offen sc1",
                      f"buffer_load_dword v{c+18}, v22, {WS}, s22 offen sc1"]
            checks += [(c + 4 * a, f"v{vTC}") for a in range(4)] + [(c + 16 + e, f"v{vTG}") for e in range(3)]
        def epi():
            sum4(28, b)
            for e in range(3): A(f"v_mov_b32 v{32+e}, v{b+16+e}")
            if two:
                sum4(36, b + 20)
                for e in range(3): A(f"v_mov_b32 v{78+e}, v{b+36+e}")
        return loads, checks, epi
    A("s_cmp_eq_u32 s3, 5"); A("s_cbranch_scc1 L_mp0")
    poll([s4set(VB + 20 * i, False) for i in range(p.k4)], 26, p.g4, 2)
    stamp(8)
    blockstep([(28, 32, 24)])
    A("s_branch L_mp1")
    A("L_mp0:")
    poll([s4set(VB, True)], 26, p.g4, 2)
    stamp(8)
    blockstep([(28, 32, 24), (36, 78, 25)])
    A(f"ds_write_b32 v22, v36 offset:{L_X2+2048}")
    A(f"ds_write_b32 v22, v80 offset:{L_AA+2048}")
    A(f"ds_write_b32 v22, v79 offset:{L_SS+2048}")
    A("L_mp1:")
    A(f"ds_write_b32 v15, v28 offset:{L_X2}")
    A(f"ds_write_b32 v15, v34 offset:{L_AA}")
    A(f"ds_write_b32 v15, v33 offset:{L_SS}")
    A("s_waitcnt lgkmcnt(0)")
    A("s_barrier")
    A("s_cmp_ge_u32 s3, 4"); A("s_cbranch_scc1 L_mw2")
    XR, AR, SR_ = 40, 50, 60
    OX, OA_, OS = 84, 88, 92
    for base, off in ((XR, L_X2), (AR, L_AA), (SR_, L_SS)):
        A(f"ds_read_b128 {r4(base)}, v18 offset:{off}")
        A(f"ds_read_b128 {r4(base+4)}, v18 offset:{off+1024}")
        A(f"ds_read_b32 v{base+8}, v19 offset:{off+2048}")
        A(f"ds_read_b32 v{base+9}, v{vZ} offset:{off}")
        if base == XR: pass
    A("s_waitcnt lgkmcnt(8)")
    def lnstats(first):
        X = XR
        for k in range(4): A(f"v_pk_add_f32 {r2(X+2*k)}, {r2(X+2*k)}, {r2(X+8)} op_sel:[0,1] op_sel_hi:[1,1] neg_lo:[0,1] neg_hi:[0,1]")
        if first:
            for k, d in enumerate((OX, OA_, OS)):
                A(f"ds_read2_b32 {r2(d)}, v{72+2*k} offset0:0 offset1:4")
                A(f"ds_read2_b32 {r2(d+2)}, v{73+2*k} offset0:0 offset1:4")
        A(f"v_sub_f32 v80, v{X+8}, v{X+9}")
        A(f"v_pk_add_f32 v[96:97], {r2(X)}, {r2(X+2)}")
        A(f"v_pk_mul_f32 v[98:99], {r2(X)}, {r2(X)}")
        A(f"v_pk_add_f32 v[82:83], {r2(X+4)}, {r2(X+6)}")
        A(f"v_pk_fma_f32 v[98:99], {r2(X+2)}, {r2(X+2)}, v[98:99]")
        A(f"v_pk_add_f32 v[96:97], v[96:97], v[82:83]")
        A(f"v_pk_fma_f32 v[98:99], {r2(X+4)}, {r2(X+4)}, v[98:99]")
        A(f"v_add_f32 v96, v96, v80")
        A(f"v_pk_fma_f32 v[98:99], {r2(X+6)}, {r2(X+6)}, v[98:99]")
        A(f"v_add_f32 v96, v96, v97")
        A(f"v_fmac_f32 v98, v80, v80")
        A(f"v_add_f32 v98, v98, v99")
        wavesum_s([96, 98], [70, 71])
        A(f"v_mov_b32 v97, {INV576}")
        A(f"v_mul_f32 v96, s70, v97")
        A(f"v_mul_f32 v98, s71, v97")
        A(f"v_fma_f32 v98, -v96, v96, v98")
        A(f"v_max_f32 v98, 0, v98")
        A(f"v_add_f32 v98, {EPS}, v98")
        A(f"v_rsq_f32 v98, v98")
        A(f"v_add_f32 v97, v96, v{X+9}")
    lnstats(True)
    A("s_waitcnt lgkmcnt(0)")
    neg = "neg_lo:[0,1] neg_hi:[0,1]"
    for k in range(4): A(f"v_pk_add_f32 {r2(XR+2*k)}, {r2(XR+2*k)}, v[96:97] op_sel_hi:[1,0] {neg}")
    for b in (XR + 8, OX, OX + 2): A(f"v_pk_add_f32 {r2(b)}, {r2(b)}, v[96:97] op_sel:[0,1] op_sel_hi:[1,1] {neg}")
    for b in [AR + 2 * k for k in range(5)] + [OA_, OA_ + 2]: A(f"v_pk_mul_f32 {r2(b)}, {r2(b)}, v[98:99] op_sel_hi:[1,0]")
    for k in range(5): A(f"v_pk_fma_f32 {r2(XR+2*k)}, {r2(XR+2*k)}, {r2(AR+2*k)}, {r2(SR_+2*k)}")
    for k in range(2): A(f"v_pk_fma_f32 {r2(OX+2*k)}, {r2(OX+2*k)}, {r2(OA_+2*k)}, {r2(OS+2*k)}")
    lnstats(False)
    for b in (OX, OX + 2): A(f"v_pk_add_f32 {r2(b)}, {r2(b)}, v[96:97] op_sel:[0,1] op_sel_hi:[1,1] {neg}")
    for b in (OX, OX + 2): A(f"v_pk_mul_f32 {r2(b)}, {r2(b)}, v[98:99] op_sel_hi:[1,0]")
    A(f"v_cvt_pk_bf16_f32 v{OX}, v{OX}, v{OX+1}")
    A(f"v_cvt_pk_bf16_f32 v{OX+2}, v{OX+2}, v{OX+3}")
    stamp(9)
    gemv8(lambda n: (OX if n < 16 else OX + 2, n & 15), 18, [40, 44, 48], 52, [(OA, T1B)])
    A("s_mov_b32 exec_lo, 0x00ff00ff"); A("s_mov_b32 exec_hi, 0xff00ff00")
    A(f"ds_write_b128 v21, {r4(OA)} offset:{L_H1}")
    A("s_waitcnt lgkmcnt(0)")
    A("s_barrier")
    stamp(10)
    endwave()
    A("L_mw2:")
    if p.ZH:
        A(f"s_mul_i32 s{sT}, s{sBLK}, {64*1152}")
        A(f"s_lshl_b32 s70, s{sW}, 7")
        A(f"s_add_u32 s{sT}, s{sT}, s70")
        set_srd(R_T1, sT, sW2, 64 * 1152)
        A(f"s_add_u32 s{sT}, s{sT}, 512")
        set_srd(R_T2, sT, sW2, 64 * 1152)
        m_rest("L_mw2b")
        A("L_mw2b:")
    A(f"v_add_u32 v22, {L_H1}, v22")
    c0 = -2.0 * math.sqrt(2.0 / math.pi) * math.log2(math.e)
    A(f"v_mov_b32 v82, {f2h(c0)}")
    A("s_barrier")
    stamp(9)
    for k in range(4): A(f"ds_read2st64_b32 {r2(72+2*k)}, v22 offset0:{2*k} offset1:{2*k+1}")
    A("s_waitcnt lgkmcnt(2)")
    A("v_pk_add_f32 v[72:73], v[72:73], v[74:75]")
    A("s_waitcnt lgkmcnt(0)")
    A("v_pk_add_f32 v[76:77], v[76:77], v[78:79]")
    A("v_pk_add_f32 v[72:73], v[72:73], v[76:77]")
    A("v_add_f32 v80, v72, v73")
    bf16r(80, 80)
    A("v_add_f32 v80, v80, v23")
    bf16r(80, 80)
    A("v_mul_f32 v81, v80, v80")
    A(f"v_fmac_f32 v82, {f2h(c0*0.044715)}, v81")
    A("v_mul_f32 v81, v82, v80")
    A("v_exp_f32 v81, v81")
    A("v_add_f32 v81, 1.0, v81")
    A("v_rcp_f32 v81, v81")
    A("v_mul_f32 v80, v80, v81")
    A(f"v_mov_b32_dpp v81, v80 row_ror:8 {DPP}")
    A("v_cvt_pk_bf16_f32 v80, v80, v81")
    if p.ZH: A("s_waitcnt vmcnt(0)")
    OB, OC = 232, 236
    A(f"s_cmp_eq_u32 s{sW}, 0"); A("s_cbranch_scc1 L_w2_0")
    gemv8(lambda n: (80, n), 8, [84, 88, 92], 82, [(OA, T1B), (OB, T2B)])
    halfadd([OA, OB], [84, 88])
    A("s_branch L_w2_1")
    A("L_w2_0:")
    gemv8(lambda n: (80, n), 8, [84, 88, 92], 82, [(OC, X2B), (OA, T1B), (OB, T2B)])
    halfadd([OC, OA, OB], [92, 84, 88])
    tag1(OC)
    A("s_mov_b64 exec, 0x00ff00ff")
    A(f"buffer_store_dwordx4 {r4(OC)}, v{vST}, {WS}, s{sPUB} offen offset:2048 sc1")
    A("L_w2_1:")
    A("s_mov_b64 exec, 0x00ff00ff")
    tag1(OA); tag1(OB)
    A(f"buffer_store_dwordx4 {r4(OA)}, v{vST}, {WS}, s{sPUB} offen sc1")
    A(f"buffer_store_dwordx4 {r4(OB)}, v{vST}, {WS}, s{sPUB} offen offset:1024 sc1")
    stamp(10)
    endwave()
    A("L_exit:")
    A("s_endpgm")
    A('.section .rodata,"a"')
    A(".p2align 6")
    A(f".amdhsa_kernel {KN}")
    A(".amdhsa_next_free_vgpr 248")
    A(".amdhsa_next_free_sgpr 102")
    A(".amdhsa_accum_offset 248")
    A(".amdhsa_group_segment_fixed_size 0")
    A(".amdhsa_kernarg_size 120")
    A(".amdhsa_user_sgpr_count 2")
    A(".amdhsa_user_sgpr_kernarg_segment_ptr 1")
    A(".amdhsa_system_sgpr_workgroup_id_x 1")
    A(".amdhsa_float_denorm_mode_32 3")
    A(".end_amdhsa_kernel")
    return A.text().replace(".ASMLAUNCH @", "; @")

if __name__ == "__main__":
    kw = eval("dict(" + (sys.argv[2] if len(sys.argv) > 2 else "") + ")")
    open(sys.argv[1], "w").write(gen(**kw))
```

```python
import sys, struct, math
sys.path.insert(0, "work")
from asmlib import Asm

KN = "adaLN_cond__sliding_block_cached__mixer_channel_mlp__decode_kernel"

EPOCH = 0
MA = 0x1000
MB = 0xA000
AP = 0xD000
FP = 0x16000
QP = 0x40000
OP = 0x80000
HINT1 = 0xC8000
HINT2 = 0xD2000
HINT3 = 0xDA000
WSREC = 0x100000
DBG = 0x100000

CNT_Q, CNT_P, CNT_L, CNT_O, CNT_W = 0, 4, 8, 12, 16
CNT_H1, CNT_H2, CNT_H3, CNT_MODE, CNT_PUB = 24, 28, 32, 36, 40
L_ZERO = 48
L_MAX = 64
L_LB = 96
L_Q = 256
L_OB = 1024
L_WB = 5120
L_X2 = 9216
L_AA = 11520
L_SS = 13824
L_H1 = 16128
LDS_BYTES = 20480

DPP = "row_mask:0xf bank_mask:0xf"
LOG2E = 0x3fb8aa3b
f2h = lambda f: hex(struct.unpack("<I", struct.pack("<f", f))[0])
INV576 = f2h(1.0 / 576)
EPS = f2h(1e-5)

class P:
    D = 5
    PRE = 3
    D2 = 8
    DC = 4
    XW = 63
    stamps = 0
    preread = 0
    limit = 20000
    nt = "nt"
    prio = 1
    rot = 1
    dbg = 0
    k1 = 1; g1 = 4
    k2 = 1; g2 = 4
    k3 = 1; g3 = 4
    k4 = 1; g4 = 4
    k5 = 1; g5 = 2
    cpf = 0
    diag = 0
    hint = 1
    EM = 0
    EB = 0
    ctrig = 4
    mprio = 2
    X = 0
    D3 = 63
    DW = 0
    c0e = 0
    EB2 = 0
    ZH = 0
    probe = None
    xfix = 0
    epos = 16
    estep = 1
    E = 8
    pause1 = 0
    pause2 = 0
    inter = 0
    fast = 1
    hsleep = 0
    lsleep = 0

def gen(**kw):
    p = P()
    for k, v in kw.items():
        assert hasattr(p, k), k
        setattr(p, k, v)
    A = Asm()
    nt = p.nt
    sX, sK, sV, sWQ, sWO, sW1, sB1, sW2, sB2, sC, sWM, sOUT, sWS = 16, 18, 20, 22, 24, 28, 30, 32, 34, 36, 38, 40, 42
    sG, sJ, sCLS, sBLK = 4, 5, 6, 7
    sTAG = 8
    sSEL = 12
    R_A, R_B, R_T1, R_T2, R_WS = 44, 48, 52, 56, 60
    sST, sROT = 64, 65
    sO1, sO2 = 66, 67
    sCNT = 68
    sT = 69
    sPUB = 97
    sMODE = 27
    sW = 96
    vL, vG, vI = 0, 1, 2
    vMASK, vSEL, vTAG, vTG = 4, 8, 12, 13
    vTP, vTC, vST, vZ = 244, 245, 246, 247
    def r4(b): return f"v[{b}:{b+3}]"
    def r2(b): return f"v[{b}:{b+1}]"
    def srd(b): return f"s[{b}:{b+3}]"
    def sp(b): return f"s[{b}:{b+1}]"
    WS = srd(R_WS)
    def stamp(k):
        if p.stamps: A(f"s_memrealtime s[{72+2*k}:{73+2*k}]")
    def tprobe(k):
        if p.probe and p.probe[0] == 't' and p.probe[1] == k:
            A("s_memrealtime s[100:101]"); A("s_waitcnt lgkmcnt(0)"); A("s_sub_u32 s100, s100, s98")
    def endwave():
        if p.stamps:
            A("s_mov_b64 exec, -1")
            A("s_waitcnt lgkmcnt(0)")
            A(f"s_lshl_b32 s{sT}, s2, 3")
            A(f"s_add_u32 s{sT}, s{sT}, s3")
            A(f"s_lshl_b32 s{sT}, s{sT}, 6")
            A(f"s_add_u32 s{sT}, s{sT}, {DBG}")
            A("s_waitcnt vmcnt(0)")
            A(f"v_mov_b32 v14, s{sT}")
            A("s_mov_b64 exec, 1")
            for k in range(0, 12, 4):
                for e in range(4): A(f"v_mov_b32 v{16+e}, s{72+2*(k+e)}")
                A(f"global_store_dwordx4 v14, v[16:19], {sp(sWS)} offset:{4*k}")
            for e in range(4): A(f"v_mov_b32 v{16+e}, s{98+e}")
            A(f"global_store_dwordx4 v14, v[16:19], {sp(sWS)} offset:48")
            A("s_waitcnt vmcnt(0)")
        A("s_endpgm")
    def set_srd(r, off_s, ptr, rec):
        A(f"s_add_u32 s{r}, s{ptr}, s{off_s}")
        A(f"s_addc_u32 s{r+1}, s{ptr+1}, 0")
        A(f"s_mov_b32 s{r+2}, {rec}")
        A(f"s_mov_b32 s{r+3}, 0x20000")
    def bf16r(d, s):
        A(f"v_cvt_pk_bf16_f32 v{d}, v{s}, v{s}")
        A(f"v_lshlrev_b32 v{d}, 16, v{d}")
    def rowsall(op, vs, ts):
        for sw in ("v_permlane32_swap_b32", "v_permlane16_swap_b32"):
            for v, t in zip(vs, ts): A(f"v_mov_b32 v{t}, v{v}")
            for v, t in zip(vs, ts): A(f"{sw} v{v}, v{t}")
            for v, t in zip(vs, ts): A(f"{op} v{v}, v{v}, v{t}")
    def wavesum_s(vs, ss):
        for ctl in ("quad_perm:[1,0,3,2]", "quad_perm:[2,3,0,1]", "row_half_mirror", "row_mirror"):
            for v in vs: A(f"v_add_f32_dpp v{v}, v{v}, v{v} {ctl} {DPP}")
        for v in vs: A(f"v_add_f32_dpp v{v}, v{v}, v{v} row_bcast:15 row_mask:0xa bank_mask:0xf")
        for v in vs: A(f"v_add_f32_dpp v{v}, v{v}, v{v} row_bcast:31 row_mask:0xc bank_mask:0xf")
        for v, s in zip(vs, ss): A(f"v_readlane_b32 s{s}, v{v}, 63")
    def redscat(bs):
        for b in bs:
            A(f"v_permlane32_swap_b32 v{b}, v{b+2}")
            A(f"v_permlane32_swap_b32 v{b+1}, v{b+3}")
        for b in bs: A(f"v_pk_add_f32 {r2(b)}, {r2(b)}, {r2(b+2)}")
        for b in bs: A(f"v_permlane16_swap_b32 v{b}, v{b+1}")
        for b in bs: A(f"v_add_f32 v{b}, v{b}, v{b+1}")
    def addgran(d, a, b):
        A(f"v_pk_add_f32 {r2(d)}, {r2(a)}, {r2(b)}")
        A(f"v_pk_add_f32 {r2(d+2)}, {r2(a+2)}, {r2(b+2)}")
    def sum4(d, b):
        addgran(b, b, b + 4); addgran(b + 8, b + 8, b + 12); addgran(d, b, b + 8)
    def tag4(b):
        for e in range(4): A(f"v_perm_b32 v{b+e}, v{b+e}, v{vTAG}, s{sSEL+e}")
    def tag1(b):
        A(f"v_perm_b32 v{b}, v{b}, v{vTP}, s{sSEL}")
    def halfadd(bs, ts):
        for b, t in zip(bs, ts):
            for e in range(4): A(f"v_permlane32_swap_b32 v{t+e}, v{b+e}")
    def halfadd(bs, ts):
        for b, t in zip(bs, ts):
            for e in range(4): A(f"v_permlane32_swap_b32 v{b+e}, v{t+e}")
        for b, t in zip(bs, ts):
            for e in range(4): A(f"v_add_f32_dpp v{b+e}, v{t+e}, v{b+e} row_ror:8 {DPP}")
    def poll(sets, acc, gap=0, slot=None):
        k = len(sets); n = len(sets[0][0])
        L = A.label("poll"); Ld = A.label("pd")
        oks = [A.label("ok") for _ in sets]
        A(f"s_mov_b32 s{sCNT}, {p.limit}")
        for i, (loads, _, _) in enumerate(sets):
            if i and gap: A(f"s_sleep {gap}")
            if k == 1: A(f"{L}:")
            for l in loads: A(l)
        if k > 1: A(f"{L}:")
        for i, (loads, checks, _) in enumerate(sets):
            A(f"s_waitcnt vmcnt({(k-1)*n})")
            for c, (r, t) in enumerate(checks):
                if c == 0: A(f"v_xor_b32 v{acc}, {t}, v{r}")
                else: A(f"v_bitop3_b32 v{acc}, v{r}, {t}, v{acc} bitop3:0xbe")
            A(f"v_and_b32 v{acc}, 0xff, v{acc}")
            A(f"v_cmp_ne_u32 vcc, 0, v{acc}")
            A(f"s_cbranch_vccz {oks[i]}")
            A(f"s_sub_u32 s{sCNT}, s{sCNT}, 1")
            if k == 1:
                A(f"s_cbranch_scc0 {L}")
            else:
                A(f"s_cbranch_scc1 {oks[i]}")
                for l in loads: A(l)
        if k > 1: A(f"s_branch {L}")
        for i in reversed(range(k)):
            A(f"{oks[i]}:")
            sets[i][2]()
            if i: A(f"s_branch {Ld}")
        A(f"{Ld}:")
        if p.stamps and slot is not None: A(f"s_sub_u32 s{98+slot}, {p.limit+1}, s{sCNT}")
    def ldswait(off, target, t):
        L = A.label("lw"); Ld = A.label("lwd")
        A(f"s_mov_b32 s{sCNT}, {p.limit*40}")
        A(f"{L}:")
        A(f"ds_read_b32 v{t}, v{vZ} offset:{off}")
        A("s_waitcnt lgkmcnt(0)")
        A(f"v_cmp_le_u32 vcc, {target}, v{t}")
        A(f"s_cbranch_vccnz {Ld}")
        if p.lsleep: A(f"s_sleep {p.lsleep}")
        A(f"s_sub_u32 s{sCNT}, s{sCNT}, 1")
        A(f"s_cbranch_scc0 {L}")
        A(f"{Ld}:")
    def ldssignal(off, t, rtn=False, last=3):
        A(f"v_mov_b32 v{t}, 1")
        A("s_mov_b64 exec, 1")
        if rtn:
            A(f"ds_add_rtn_u32 v{t}, v{vZ}, v{t} offset:{off}")
            A("s_waitcnt lgkmcnt(0)")
            A(f"v_cmp_eq_u32 vcc, {last}, v{t}")
        else:
            A(f"ds_add_u32 v{vZ}, v{t} offset:{off}")
        A("s_mov_b64 exec, -1")
    def hintwait(offs, width):
        L = A.label("hw"); Lf = A.label("hf"); Ld = A.label("hd")
        A(f"s_and_b32 s70, s{sTAG}, 0xffff"); A("s_mul_i32 s70, s70, 0x10001"); A("s_mov_b32 s71, s70")
        A(f"s_mov_b32 s{sCNT}, {p.limit}")
        A(f"{L}:")
        for k, o in enumerate(offs):
            A(f"s_load_dwordx{width} s[{44+width*k}:{44+width*k+width-1}], {sp(sWS)}, s{o} glc")
        A("s_waitcnt lgkmcnt(0)")
        n = len(offs) * width // 2
        for k in range(n):
            A(f"s_cmp_eq_u64 s[{44+2*k}:{45+2*k}], s[70:71]")
            A(f"s_cbranch_scc0 {Lf}" if k < n - 1 else f"s_cbranch_scc1 {Ld}")
        A(f"{Lf}:")
        if p.hsleep: A(f"s_sleep {p.hsleep}")
        A(f"s_sub_u32 s{sCNT}, s{sCNT}, 1")
        A(f"s_cbranch_scc0 {L}")
        A(f"{Ld}:")
    def hintstore(soff, mask, stride, t):
        A(f"v_mul_u32_u24 v{t}, {stride}, v{vL}")
        A(f"s_mov_b64 exec, {hex(mask)}")
        A(f"buffer_store_short v{vTAG}, v{t}, {WS}, s{soff} offen sc1")
        A("s_mov_b64 exec, -1")
    def pubstore(data, addr, soff, extra=""):
        if not p.fast:
            A(f"buffer_store_dwordx4 {data}, {addr}, {WS}, s{soff} offen {extra} sc1"); return
        La, Lb = A.label("ps"), A.label("pe")
        A(f"s_cmp_eq_u32 s{sMODE}, 2"); A(f"s_cbranch_scc1 {La}")
        A(f"buffer_store_dwordx4 {data}, {addr}, {WS}, s{soff} offen {extra} sc1")
        A(f"s_branch {Lb}")
        A(f"{La}:")
        A(f"buffer_store_dwordx4 {data}, {addr}, {WS}, s{soff} offen {extra}")
        A(f"{Lb}:")
    def consts():
        A(f"v_and_b32 v3, 1, v{vI}")
        A(f"v_lshlrev_b32 v3, 4, v3")
        A(f"v_mov_b32 v{vSEL}, 0xffff")
        A(f"v_lshlrev_b32 v3, v3, v{vSEL}")
        A(f"v_bfe_u32 v{vSEL}, v{vI}, 1, 2")
        for d in range(4):
            A(f"v_cmp_eq_u32 vcc, {d}, v{vSEL}")
            A(f"v_cndmask_b32 v{vMASK+d}, 0, v3, vcc")
        A(f"v_lshrrev_b32 v3, 3, v{vI}")
        A(f"s_mov_b32 s{sT}, 0x02020202")
        A(f"v_mul_lo_u32 v3, v3, s{sT}")
        A(f"v_add_u32 v3, 0x01000100, v3")
        A(f"s_mov_b32 s{sT}, 0x0c0c0c0c")
        for d in range(4):
            A(f"v_bfi_b32 v{vSEL+d}, v{vMASK+d}, v3, s{sT}")
        A(f"v_lshlrev_b32 v{vST}, 5, v{vI}")
        A(f"v_lshl_add_u32 v{vST}, v{vG}, 4, v{vST}")
    def tagsetup():
        A("s_waitcnt lgkmcnt(0)")
        A(f"s_mul_i32 s{sT}, s{sTAG}, 0x9E3779B1")
        A(f"s_add_u32 s{sT}, s{sT}, 0x7F4A7C15")
        A(f"s_or_b32 s{sT}, s{sT}, 0x01010101")
        A(f"s_xor_b32 s{sTAG}, s{sTAG}, s{sT}")
        for e in range(1, 4): A(f"s_lshr_b32 s{sTAG+e}, s{sTAG}, {8*e}")
        for e in range(4): A(f"s_mov_b32 s{sSEL+e}, {hex(0x07060500 + e)}")
        A(f"v_mov_b32 v{vTAG}, s{sTAG}")
        A(f"v_lshlrev_b32 v{vTG}, 3, v{vG}")
        A(f"v_lshrrev_b32 v{vTG}, v{vTG}, v{vTAG}")
        A(f"v_and_b32 v{vTC}, 1, v{vG}")
        A(f"v_lshl_add_u32 v{vTP}, v{vI}, 1, v{vTC}")
        A(f"v_lshlrev_b32 v{vTP}, 3, v{vTP}")
        A(f"v_lshrrev_b32 v{vTP}, v{vTP}, v{vTAG}")
        A(f"v_lshlrev_b32 v{vTC}, 3, v{vI}")
        A(f"v_lshrrev_b32 v{vTC}, v{vTC}, v{vTAG}")
    def silu(regs, tmps):
        for v, t in zip(regs, tmps): A(f"v_mul_f32 v{t}, 0xbfb8aa3b, v{v}")
        for v, t in zip(regs, tmps): A(f"v_exp_f32 v{t}, v{t}")
        for v, t in zip(regs, tmps): A(f"v_add_f32 v{t}, 1.0, v{t}")
        for v, t in zip(regs, tmps): A(f"v_rcp_f32 v{t}, v{t}")
        for v, t in zip(regs, tmps): A(f"v_mul_f32 v{v}, v{v}, v{t}")
    def mfma(d, a, b, first):
        A(f"v_mfma_f32_16x16x32_bf16 {r4(d)}, {r4(a)}, {r4(b)}, {'0' if first else r4(d)}")
    def gemv8(srs, N, tmp, t0, accs, waits=None):
        def build(n):
            sr, ln = srs(n)
            d = tmp[n % len(tmp)]
            A(f"v_mov_b32_dpp v{t0+(n&1)}, v{sr} row_newbcast:{ln} {DPP}")
            for e in range(4): A(f"v_perm_b32 v{d+e}, v{t0+(n&1)}, v{t0+(n&1)}, v{vSEL+e}")
        build(0)
        for n in range(N):
            if n + 1 < N: build(n + 1)
            if waits: waits(n)
            for acc, wb in accs: mfma(acc, tmp[n % len(tmp)], wb + 4 * n, n == 0)
    vT = 16
    T1B, T2B = 168, 200
    def tail_load(k):
        if k < 8:
            A(f"buffer_load_dwordx4 {r4(T1B+4*k)}, v{vT}, {srd(R_T1)}, s{sO1} offen {nt}")
            A(f"s_add_u32 s{sO1}, s{sO1}, s{sST}")
        else:
            A(f"buffer_load_dwordx4 {r4(T1B+4*k)}, v{vT}, {srd(R_T2)}, s{sO2} offen {nt}")
            A(f"s_add_u32 s{sO2}, s{sO2}, s{sST}")

    def w1setup():
        A(f"s_mul_i32 s{sT}, s3, {144*9216}")
        A(f"s_lshl_b32 s70, s{sBLK}, 7")
        A(f"s_add_u32 s{sT}, s{sT}, s70")
        set_srd(R_T1, sT, sW1, 144 * 9216)
        A(f"v_lshrrev_b32 v3, 3, v{vI}")
        A(f"v_lshl_add_u32 v3, v3, 2, v{vG}")
        A(f"v_mul_u32_u24 v3, 9216, v3")
        A(f"v_and_b32 v{vT}, 7, v{vI}")
        A(f"v_lshl_add_u32 v{vT}, v{vT}, 4, v3")
    def w1loads(depth):
        for k in range(18):
            if k >= depth: A(f"s_waitcnt vmcnt({depth-1})")
            A(f"s_mov_b32 s{sO1}, {k*8*9216}")
            A(f"buffer_load_dwordx4 {r4(T1B+4*k)}, v{vT}, {srd(R_T1)}, s{sO1} offen {nt}")

    A(f".ASMLAUNCH @launch grid=(256,1,1) block=(512,1,1) lds={LDS_BYTES}")
    A('.amdgcn_target "amdgcn-amd-amdhsa--gfx950"')
    A(".text")
    A(f".globl {KN}")
    A(".p2align 8")
    A(f".type {KN},@function")
    A(f"{KN}:")
    stamp(0)
    if p.dbg or p.xfix: A("s_memrealtime s[98:99]")
    if p.stamps:
        for k in range(1, 12): A(f"s_mov_b32 s{72+2*k}, 0")
        for k in range(4): A(f"s_mov_b32 s{98+k}, 0")
    A("s_cmp_ge_u32 s2, 256")
    A("s_cbranch_scc1 L_exit")
    A("s_load_dwordx16 s[16:31], s[0:1], 0")
    A("s_load_dwordx8 s[32:39], s[0:1], 64")
    A(f"s_load_dwordx2 {sp(sOUT)}, s[0:1], 96")
    A(f"s_load_dwordx2 {sp(sWS)}, s[0:1], 112")
    A("v_lshrrev_b32 v1, 6, v0")
    A("v_and_b32 v0, 63, v0")
    A("v_readfirstlane_b32 s3, v1")
    A(f"v_lshrrev_b32 v{vG}, 4, v{vL}")
    A(f"v_and_b32 v{vI}, 15, v{vL}")
    A(f"v_mov_b32 v{vZ}, 0")
    A("v_mov_b32 v16, 0")
    A(f"s_and_b32 s{sG}, s2, 7")
    A(f"s_lshl_b32 s{sG}, s{sG}, 1")
    A(f"s_bfe_u32 s{sT}, s2, 0x10003")
    A(f"s_add_u32 s{sG}, s{sG}, s{sT}")
    A(f"s_lshr_b32 s{sJ}, s2, 4")
    A(f"s_mov_b32 s{R_WS+2}, {WSREC}")
    A(f"s_mov_b32 s{R_WS+3}, 0x20000")
    def classify():
        A(f"s_lshl_b32 s{sT}, s{sJ}, 4"); A(f"s_add_u32 s{sT}, s{sT}, s{sG}")
        A(f"s_sub_u32 s{sT}, s{sT}, {144+72}")
        A(f"s_cmp_ge_u32 s{sT}, 36"); A(f"s_cselect_b32 s{sCLS}, 3, 2")
        A(f"s_lshr_b32 s70, s{sG}, 1")
        A(f"s_and_b32 s71, s{sG}, 1")
        A(f"s_mul_i32 s{sBLK}, s70, 9"); A(f"s_add_u32 s{sBLK}, s{sBLK}, s71")
        A(f"s_cmp_eq_u32 s{sJ}, 13")
        A(f"s_cselect_b32 s{sT}, s70, s{sT}")
        A(f"s_cselect_b32 s{sCLS}, 2, s{sCLS}")
        A(f"s_lshl_b32 s70, s{sJ}, 1"); A(f"s_add_u32 s{sBLK}, s{sBLK}, s70"); A(f"s_sub_u32 s{sBLK}, s{sBLK}, 18")
        A(f"s_add_u32 s70, s70, s71")
        A(f"s_cmp_le_u32 s70, 26")
        A(f"s_cselect_b32 s{sBLK}, s{sBLK}, s{sT}")
        A(f"s_cselect_b32 s{sCLS}, 1, s{sCLS}")
        A(f"s_cmp_lt_u32 s{sJ}, 9")
        A(f"s_cselect_b32 s{sBLK}, s{sJ}, s{sBLK}")
        A(f"s_cselect_b32 s{sCLS}, 0, s{sCLS}")
    A("s_cmp_ge_u32 s3, 4")
    A("s_cbranch_scc1 L_main")

    WB = 40
    SB = 80
    G1 = 104
    if p.prio: A(f"s_setprio {p.prio}")
    A("s_cmp_eq_u32 s3, 0"); A("s_cbranch_scc1 L_c0_load")
    A("s_cmp_eq_u32 s3, 3"); A("s_cbranch_scc1 L_c3_load")
    A(f"v_lshlrev_b32 v17, 3, v{vL}")
    A(f"v_lshlrev_b32 v18, 3, v{vI}")
    A(f"v_min_u32 v15, 8, v{vI}")
    A(f"v_lshl_add_u32 v3, v15, 2, v{vG}")
    A(f"s_mul_i32 s{sT}, s{sJ}, 36")
    A(f"v_add_lshl_u32 v3, v3, s{sT}, 1")
    A(f"s_mul_i32 s{sT}, s{sJ}, {36*8192}")
    A(f"s_lshl_b32 s{sO1}, s{sG}, 9")
    A(f"s_add_u32 s{sT}, s{sT}, s{sO1}")
    A(f"s_lshl_b32 s{sO1}, s3, 8")
    A(f"s_add_u32 s{sT}, s{sT}, s{sO1}")
    A(f"s_sub_u32 s{sT}, s{sT}, 256")
    A(f"v_lshlrev_b32 v14, 13, v{vG}")
    A(f"v_lshl_add_u32 v14, v{vI}, 4, v14")
    A("s_waitcnt lgkmcnt(0)")
    set_srd(R_A, sT, sWQ, 36 * 8192)
    A(f"global_load_dwordx2 v[20:21], v17, {sp(sX)}")
    A(f"global_load_dwordx2 v[22:23], v17, {sp(sX)} offset:512")
    A(f"global_load_dwordx2 v[24:25], v18, {sp(sX)} offset:1024")
    A(f"global_load_short_d16_hi v26, v3, {sp(sX)}")
    for n in range(9):
        A(f"s_mov_b32 s{sO1}, {n*4*8192}")
        A(f"buffer_load_dwordx4 {r4(WB+4*n)}, v14, {srd(R_A)}, s{sO1} offen {nt}")
    A("s_branch L_c_bar")
    A("L_c3_load:")
    for e in range(4): A(f"v_mov_b32 v{20+e}, 0")
    A(f"v_lshlrev_b32 v3, 4, v{vI}")
    A(f"ds_write_b128 v3, v[20:23]")
    A("s_waitcnt lgkmcnt(0)")
    A("s_branch L_c_bar")
    A("L_c0_load:")
    A(f"s_lshr_b32 s70, s{sG}, 1")
    A(f"s_and_b32 s71, s{sG}, 1"); A(f"s_mul_i32 s71, s71, 9"); A(f"s_add_u32 s71, s71, s{sJ}")
    A(f"v_min_u32 v3, 8, v{vI}")
    A(f"v_lshl_add_u32 v3, v3, 3, v{vG}")
    A(f"s_mul_i32 s{sT}, s70, 72")
    A(f"v_add_lshl_u32 v17, v3, s{sT}, 1")
    A(f"s_mul_i32 s{sT}, s70, {72*6912}")
    A(f"s_lshl_b32 s{sO1}, s71, 7")
    A(f"s_add_u32 s{sT}, s{sT}, s{sO1}")
    A(f"s_mul_i32 s70, s70, 4608"); A(f"s_lshl_b32 s71, s71, 8"); A(f"s_add_u32 s70, s70, s71"); A(f"s_add_u32 s{sPUB}, s70, {MA}")
    A(f"v_lshrrev_b32 v3, 3, v{vI}")
    A(f"v_lshl_add_u32 v3, v3, 2, v{vG}")
    A(f"v_mul_u32_u24 v3, 6912, v3")
    A(f"v_and_b32 v14, 7, v{vI}")
    A(f"v_lshl_add_u32 v14, v14, 4, v3")
    A("s_waitcnt lgkmcnt(0)")
    A(f"s_cmp_ge_u32 s{sJ}, 9"); A("s_cbranch_scc1 L_c_bar")
    set_srd(R_A, sT, sWM, 72 * 6912)
    A(f"global_load_short_d16_hi v20, v17, {sp(sC)}")
    A(f"global_load_short_d16_hi v21, v17, {sp(sC)} offset:8")
    for n in range(9):
        A(f"s_mov_b32 s{sO1}, {n*8*6912}")
        A(f"buffer_load_dwordx4 {r4(WB+4*n)}, v14, {srd(R_A)}, s{sO1} offen {nt}")
    A("L_c_bar:")
    A("s_barrier")
    A(f"s_load_dword s{sTAG}, {sp(sWS)}, {EPOCH}")
    A(f"s_mov_b64 {sp(R_WS)}, {sp(sWS)}")
    stamp(1); tprobe(1)
    classify()
    consts()
    A("s_cmp_eq_u32 s3, 3"); A("s_cbranch_scc0 L_c_n3")
    if p.probe and p.probe[0] != 't':
        A("s_mov_b32 s100, 0")
        A("s_cmp_lg_u32 s2, 138"); A("s_cbranch_scc1 L_noprobe")
        A("s_waitcnt lgkmcnt(0)")
        A(f"s_mov_b32 s69, {p.probe[1]}")
        A(f"s_load_dword s70, s[{p.probe[0]}:{p.probe[0]+1}], s69 glc")
        A("s_waitcnt lgkmcnt(0)")
        A(f"s_mov_b32 s69, {p.probe[1] + 4096 + 8192*p.probe[2]}")
        A("s_memtime s[100:101]"); A("s_waitcnt lgkmcnt(0)")
        A(f"s_load_dword s70, s[{p.probe[0]}:{p.probe[0]+1}], s69 glc")
        A("s_waitcnt lgkmcnt(0)")
        A("s_memtime s[70:71]"); A("s_waitcnt lgkmcnt(0)")
        A("s_sub_u32 s100, s70, s100")
        A("L_noprobe:")
    if p.cpf:
        A("s_getpc_b64 s[70:71]")
        A("L_pc:")
        A(f"s_sub_u32 s70, s70, L_pc-{KN}")
        A("s_subb_u32 s71, s71, 0")
        A("s_lshr_b32 s69, s2, 3"); A("s_lshl_b32 s69, s69, 10")
        A(f"v_lshl_add_u32 v3, v{vL}, 4, s69")
        A(f"v_min_u32 v3, L_exit-{KN}-12, v3")
        A("v_and_b32 v3, -4, v3")
        A("global_load_dwordx4 v[236:239], v3, s[70:71]")
    if p.preread:
        A(f"s_lshl_b32 s70, s{sG}, 4"); A(f"s_add_u32 s70, s70, s{sJ}"); A("s_mul_i32 s70, s70, 1152"); A(f"s_add_u32 s70, s70, {OP}")
        A(f"v_lshlrev_b32 v3, 7, v{vL}")
        A("s_mov_b64 exec, 0x1ff")
        A(f"buffer_load_dword v232, v3, {WS}, s70 offen")
        A(f"s_mul_i32 s70, s{sG}, 2304"); A(f"s_lshl_b32 s71, s{sBLK}, 8"); A("s_add_u32 s70, s70, s71"); A(f"s_add_u32 s70, s70, {AP}")
        A(f"s_add_u32 s71, s71, {MB}")
        A(f"s_cmp_eq_u32 s{sCLS}, 2"); A("s_cselect_b32 s70, s71, s70")
        A(f"s_mul_i32 s71, s{sBLK}, 2304"); A(f"s_add_u32 s71, s71, {FP}")
        A(f"s_cmp_eq_u32 s{sCLS}, 1"); A("s_cselect_b32 s70, s71, s70")
        A("s_cselect_b32 exec_lo, 0x3ffff, 3")
        A(f"s_cmp_eq_u32 s{sCLS}, 3"); A(f"s_cselect_b32 s70, {AP}, s70")
        A(f"buffer_load_dword v233, v3, {WS}, s70 offen")
        if p.preread >= 2:
            A(f"s_lshl_b32 s70, s{sG}, 4"); A(f"s_add_u32 s70, s70, s{sJ}"); A("s_lshl_b32 s70, s70, 10"); A(f"s_add_u32 s70, s70, {QP}")
            A("s_mov_b64 exec, 0xff")
            A(f"buffer_load_dword v234, v3, {WS}, s70 offen")
            A("s_lshl_b32 s70, s2, 8"); A(f"s_min_u32 s70, s70, {143*256}"); A(f"s_add_u32 s70, s70, {MA}")
            A("s_mov_b64 exec, 3")
            A(f"buffer_load_dword v235, v3, {WS}, s70 offen")
        A("s_mov_b64 exec, -1")
    tagsetup()
    if p.fast:
        A("s_getreg_b32 s26, hwreg(HW_REG_XCC_ID)"); A("s_and_b32 s26, s26, 15")
        A(f"s_and_b32 s70, s{sTAG}, 0xfffffff0"); A("s_or_b32 s26, s26, s70")
        A("v_mov_b32 v21, s26")
        A(f"s_lshl_b32 s70, s{sG}, 11"); A(f"s_lshl_b32 s71, s{sJ}, 2"); A("s_add_u32 s70, s70, s71"); A(f"s_add_u32 s70, s70, {HINT2}")
        A(f"v_lshlrev_b32 v3, 7, v{vL}")
        A("s_mov_b64 exec, 0xffff")
        A(f"buffer_store_dword v21, v3, {WS}, s70 offen sc1")
        A("s_mov_b64 exec, -1")
    if p.hint:
        A(f"s_mul_i32 s64, s{sJ}, 36"); A("s_add_u32 s65, s64, 35"); A("s_lshr_b32 s64, s64, 6"); A("s_lshr_b32 s65, s65, 6")
        A(f"s_mul_i32 s69, s{sG}, 18")
        for r in (64, 65):
            A(f"s_add_u32 s{r}, s{r}, s69"); A(f"s_lshl_b32 s{r}, s{r}, 7"); A(f"s_add_u32 s{r}, s{r}, {HINT1}"); A(f"s_add_u32 s{r+2}, s{r}, {9*128}")
        hintwait([64, 65, 66, 67], 4)
    ldssignal(CNT_H1, 21)
    stamp(2); tprobe(2)
    if p.fast:
        A(f"s_lshl_b32 s64, s{sG}, 4"); A(f"s_add_u32 s64, s64, s{sJ}"); A("s_lshl_b32 s64, s64, 7"); A(f"s_add_u32 s64, s64, {HINT2}")
        L = A.label("iw"); Lf = A.label("if"); Ld = A.label("id")
        A(f"s_mov_b32 s{sCNT}, {p.limit}")
        A(f"{L}:")
        A(f"s_load_dwordx16 s[44:59], {sp(sWS)}, s64 glc")
        A(f"s_mov_b32 s{sMODE}, 2")
        A("s_waitcnt lgkmcnt(0)")
        for k in range(16):
            A(f"s_xor_b32 s65, s{44+k}, s26")
            A(f"s_cselect_b32 s{sMODE}, 1, s{sMODE}")
            A("s_cmp_ge_u32 s65, 16")
            A(f"s_cbranch_scc1 {Lf}")
        A(f"s_branch {Ld}")
        A(f"{Lf}:")
        A(f"s_mov_b32 s{sMODE}, 1")
        A("s_sleep 2")
        A(f"s_sub_u32 s{sCNT}, s{sCNT}, 1")
        A(f"s_cbranch_scc0 {L}")
        A(f"{Ld}:")
        stamp(3)
    else:
        A(f"s_mov_b32 s{sMODE}, 1")
    A(f"v_mov_b32 v21, s{sMODE}")
    A("s_mov_b64 exec, 1")
    A(f"ds_add_u32 v{vZ}, v21 offset:{CNT_MODE}")
    A("s_mov_b64 exec, -1")
    if p.hint and not p.fast:
        A(f"s_lshl_b32 s64, s{sG}, 4"); A(f"s_add_u32 s64, s64, s{sJ}"); A("s_lshl_b32 s64, s64, 7"); A(f"s_add_u32 s64, s64, {HINT2}")
        hintwait([64], 8)
        ldssignal(CNT_H2, 21)
        stamp(3)
    A("s_branch L_c_s2w")
    A("L_c_n3:")
    tagsetup()
    A("s_cmp_lg_u32 s3, 0"); A("s_cbranch_scc1 L_c_wq")
    if p.c0e:
        A(f"s_cmp_lg_u32 s{sCLS}, 1"); A("s_cbranch_scc1 L_c0_nm")
        A("s_setprio 0")
        w1setup()
        w1loads(p.c0e)
        A("s_branch L_c_s2w")
        A("L_c0_nm:")
    A(f"s_cmp_lg_u32 s{sCLS}, 0"); A("s_cbranch_scc1 L_c_s2w")
    A("s_waitcnt vmcnt(9)")
    silu([20, 21], [22, 23])
    A("v_cvt_pk_bf16_f32 v20, v20, v21")
    gemv8(lambda n: (20, n), 9, [SB, SB + 4, SB + 8], 22, [(24, WB)], waits=lambda n: A(f"s_waitcnt vmcnt({8-n})"))
    stamp(2)
    halfadd([24], [28])
    tag1(24)
    A("s_mov_b64 exec, 0x00ff00ff")
    A(f"buffer_store_dwordx4 v[24:27], v{vST}, {WS}, s{sPUB} offen sc1")
    if p.hint:
        A(f"s_and_b32 s70, s{sG}, 1"); A("s_mul_i32 s70, s70, 9"); A(f"s_add_u32 s70, s70, s{sJ}"); A("s_lshl_b32 s70, s70, 7")
        A(f"s_and_b32 s71, s{sG}, 14"); A("s_add_u32 s70, s70, s71"); A(f"s_add_u32 s70, s70, {HINT1}")
        A("s_mov_b64 exec, -1")
        hintstore(70, 0xffff, 18 * 128, 3)
    A("s_mov_b64 exec, -1")
    stamp(3)
    A("s_branch L_c_s2w")
    A("L_c_wq:")
    A("s_waitcnt vmcnt(9)")
    for k in range(6):
        A(f"v_lshlrev_b32 v{28+2*k}, 16, v{20+k}")
        A(f"v_and_b32 v{29+2*k}, 0xffff0000, v{20+k}")
    A(f"v_cmp_gt_u32 vcc, 16, v{vL}")
    for k in range(8, 12): A(f"v_cndmask_b32 v{28+k}, 0, v{28+k}, vcc")
    A("v_pk_add_f32 v[20:21], v[28:29], v[30:31]")
    for k in range(2, 6): A(f"v_pk_add_f32 v[20:21], v[20:21], {r2(28+2*k)}")
    A("v_add_f32 v20, v20, v21")
    wavesum_s([20], [70])
    A(f"v_mov_b32 v20, {INV576}")
    A(f"v_mul_f32 v20, s70, v20")
    for k in range(12): A(f"v_sub_f32 v{28+k}, v{28+k}, v20")
    for k in range(8, 12): A(f"v_cndmask_b32 v{28+k}, 0, v{28+k}, vcc")
    A("v_pk_mul_f32 v[22:23], v[28:29], v[28:29]")
    for k in range(1, 6): A(f"v_pk_fma_f32 v[22:23], {r2(28+2*k)}, {r2(28+2*k)}, v[22:23]")
    A("v_add_f32 v22, v22, v23")
    wavesum_s([22], [70])
    A(f"v_mov_b32 v22, {INV576}")
    A(f"v_mul_f32 v22, s70, v22")
    bf16r(20, 20); bf16r(22, 22)
    A(f"v_add_f32 v22, {EPS}, v22")
    bf16r(22, 22)
    A("v_sqrt_f32 v22, v22")
    bf16r(22, 22)
    A("v_sub_f32 v26, v26, v20")
    bf16r(26, 26)
    A("v_rcp_f32 v23, v22")
    A("v_mul_f32 v21, v26, v23")
    A("v_fma_f32 v24, -v21, v22, v26")
    A("v_fma_f32 v21, v24, v23, v21")
    bf16r(26, 21)
    A(f"v_mul_u32_u24 v3, 4608, v{vG}")
    A(f"v_lshl_add_u32 v3, v15, 4, v3")
    A(f"v_add_lshl_u32 v15, v15, s{sJ}, 3")
    A(f"v_lshrrev_b32 v15, v15, v{vTAG}")
    A(f"s_mul_i32 s70, s{sJ}, 144"); A(f"s_add_u32 s70, s70, {MA}"); A(f"s_add_u32 s71, s70, 18432")
    A(f"s_lshl_b32 s44, s{sG}, 4"); A(f"s_add_u32 s44, s44, s{sJ}"); A(f"s_lshl_b32 s44, s44, 10")
    A(f"s_lshl_b32 s45, s3, 9"); A("s_add_u32 s44, s44, s45"); A(f"s_add_u32 s{sPUB}, s44, {QP-512}")
    A("s_waitcnt vmcnt(0)")
    stamp(2)
    if p.diag: ldswait(20, 4, 20)
    ldswait(CNT_H1, 1, 20)
    def s1set(b):
        def epi():
            addgran(28, b, b + 4); addgran(32, b + 8, b + 12)
        return ([f"buffer_load_dwordx4 {r4(b+4*a)}, v3, {WS}, s{70+(a&1)} offen offset:{2304*(a>>1)} sc1" for a in range(4)],
                [(b + 4 * a, "v15") for a in range(4)], epi)
    poll([s1set(G1 + 16 * i) for i in range(p.k1)], 20, p.g1, 0)
    stamp(3)
    redscat([28, 32])
    A("v_cvt_pk_bf16_f32 v28, v28, v32")
    A("v_and_b32 v32, 0xffff0000, v28")
    A("v_lshlrev_b32 v28, 16, v28")
    A(f"v_add_f32 v32, 1.0, v32")
    bf16r(32, 32)
    A(f"v_mul_f32 v26, v26, v32")
    bf16r(26, 26)
    A(f"v_add_f32 v26, v26, v28")
    A("v_cvt_pk_bf16_f32 v26, v26, v26")
    def bld(n):
        for d in range(4): A(f"v_and_b32_dpp v{SB+4*(n%3)+d}, v26, v{vMASK+d} row_newbcast:{n} {DPP}")
    bld(0)
    for n in range(9):
        if n < 8: bld(n + 1)
        mfma(28, SB + 4 * (n % 3), WB + 4 * n, n == 0)
    ldswait(CNT_MODE, 1, 20)
    A(f"v_readfirstlane_b32 s{sMODE}, v20")
    tag1(28)
    A("s_mov_b32 exec_hi, 0")
    pubstore("v[28:31]", f"v{vST}", sPUB)
    A("s_mov_b64 exec, -1")
    if p.hint and not p.fast:
        ldssignal(CNT_P, 21, rtn=True, last=1)
        A("s_cbranch_vccz L_c_s2w")
        A(f"s_lshl_b32 s70, s{sG}, 11"); A(f"s_lshl_b32 s71, s{sJ}, 1"); A("s_add_u32 s70, s70, s71"); A(f"s_add_u32 s70, s70, {HINT2}")
        hintstore(70, 0xffff, 128, 3)
    else:
        ldssignal(CNT_P, 21)
    stamp(4)
    A("L_c_s2w:")
    A(f"v_lshlrev_b32 v3, 10, v{vG}")
    A(f"v_lshl_add_u32 v3, v{vI}, 4, v3")
    A(f"s_lshl_b32 s70, s{sG}, 14"); A("s_lshl_b32 s71, s3, 8"); A("s_add_u32 s70, s70, s71"); A(f"s_add_u32 s44, s70, {QP}")
    for a in range(1, 4): A(f"s_add_u32 s{44+a}, s44, {4096*a}")
    A(f"v_lshl_add_u32 v14, v{vI}, 2, v{vG}")
    A(f"s_lshl_b32 s70, s3, 6")
    A(f"v_add_lshl_u32 v14, v14, s70, 1")
    if p.hint and not p.fast: ldswait(CNT_H2, 1, 20)
    else: ldswait(CNT_P, 2, 20)
    G2 = 40
    def s2set(b):
        return ([f"buffer_load_dwordx4 {r4(b+4*a)}, v3, {WS}, s{44+a} offen sc1" for a in range(4)],
                [(b + 4 * a, f"v{vTC}") for a in range(4)], lambda: sum4(28, b))
    poll([s2set(G2 + 16 * i) for i in range(p.k2)], 20, p.g2, 1)
    stamp(5)
    redscat([28])
    A(f"v_cvt_pk_bf16_f32 v20, v28, v28")
    A(f"ds_write_b16 v14, v20 offset:{L_Q}")
    ldssignal(CNT_Q, 21)
    stamp(6); tprobe(6)
    A(f"s_cmp_eq_u32 s{sCLS}, 1"); A("s_cbranch_scc1 L_c_m")
    A("s_cmp_lg_u32 s3, 3"); A("s_cbranch_scc1 L_c_end")
    if p.hint and not p.fast:
        A(f"s_cmp_lg_u32 s{sCLS}, 0"); A("s_cbranch_scc1 L_c_end")
        A(f"s_add_u32 s64, s64, {HINT3-HINT2}")
        hintwait([64], 8)
        ldssignal(CNT_H3, 21)
        stamp(4)
    A(f"s_mov_b32 s{sBLK}, s{sG}")
    A(f"s_cmp_eq_u32 s{sJ}, 8"); A("s_cbranch_scc1 L_red")
    A(f"s_add_u32 s{sBLK}, s{sG}, 16")
    A(f"s_cmp_lg_u32 s{sJ}, 7"); A("s_cbranch_scc1 L_c_end")
    A(f"s_cmp_lt_u32 s{sG}, 2"); A("s_cbranch_scc1 L_red")
    A("L_c_end:")
    endwave()

    A("L_red:")
    A(f"v_and_b32 v14, 7, v{vI}")
    A(f"v_lshl_add_u32 v15, v14, 2, v{vG}")
    A(f"s_lshl_b32 s70, s{sBLK}, 5")
    A(f"v_add_u32 v15, s70, v15")
    A(f"v_lshlrev_b32 v18, 1, v15")
    A(f"global_load_short_d16_hi v24, v18, {sp(sX)}")
    A(f"global_load_short_d16_hi v25, v18, {sp(sB2)}")
    A(f"v_lshlrev_b32 v15, 2, v15")
    A(f"v_lshrrev_b32 v3, 3, v{vL}")
    A(f"v_mul_u32_u24 v3, 2304, v3")
    A(f"v_lshl_add_u32 v3, v14, 4, v3")
    A(f"s_lshl_b32 s70, s{sBLK}, 7")
    A(f"v_add_u32 v3, s70, v3")
    A(f"s_mov_b32 s44, {AP}"); A(f"s_mov_b32 s45, {AP+18432}"); A(f"s_mov_b32 s46, {MB}"); A(f"s_mov_b32 s47, {MB+1728*4}")
    if p.probe and p.probe[:2] == ('t', 5):
        ldswait(CNT_O, 4, 20); tprobe(5)
    ldswait(CNT_W, 4, 20)
    stamp(7); tprobe(7)
    poll([([f"buffer_load_dwordx4 {r4(40+4*a)}, v3, {WS}, s{44+a} offen sc1" for a in range(2)] +
           [f"buffer_load_dword v26, v15, {WS}, s46 offen sc1", f"buffer_load_dword v27, v15, {WS}, s47 offen sc1"],
           [(40, f"v{vTC}"), (44, f"v{vTC}"), (26, f"v{vTG}"), (27, f"v{vTG}")], lambda: None)], 20, 0, 2)
    stamp(8); tprobe(8)
    addgran(40, 40, 44)
    redscat([40])
    A(f"v_add_f32_dpp v40, v40, v40 row_ror:8 {DPP}")
    A("v_and_b32 v26, 0xffff0000, v26")
    A("v_and_b32 v27, 0xffff0000, v27")
    bf16r(40, 40)
    A("v_mul_f32 v40, v40, v26")
    bf16r(40, 40)
    A("v_add_f32 v24, v24, v40")
    bf16r(24, 24)
    for a in range(9): A(f"s_mov_b32 s{44+a}, {FP+18432*a}")
    def s5set(b):
        def epi():
            addgran(b, b, b + 32); sum4(28, b); sum4(32, b + 16); addgran(28, 28, 32)
        return ([f"buffer_load_dwordx4 {r4(b+4*a)}, v3, {WS}, s{44+a} offen sc1" for a in range(9)],
                [(b + 4 * a, f"v{vTC}") for a in range(9)], epi)
    poll([s5set(40 + 36 * i) for i in range(p.k5)], 20, p.g5, 3)
    stamp(9); tprobe(9)
    redscat([28])
    A(f"v_add_f32_dpp v28, v28, v28 row_ror:8 {DPP}")
    bf16r(28, 28)
    A("v_add_f32 v28, v28, v25")
    bf16r(28, 28)
    A("v_mul_f32 v28, v28, v27")
    bf16r(28, 28)
    A("v_add_f32 v28, v28, v24")
    A("v_cvt_pk_bf16_f32 v28, v28, v28")
    if p.xfix:
        A(f"s_mov_b32 s101, {p.xfix}")
        if p.probe:
            A(f"s_cmp_eq_u32 s{sBLK}, 5"); A("s_cselect_b32 s100, s100, 0"); A("s_add_u32 s101, s101, s100")
        A("L_xf:"); A("s_memrealtime s[96:97]"); A("s_waitcnt lgkmcnt(0)"); A("s_sub_u32 s96, s96, s98"); A(f"s_cmp_lt_u32 s96, s101"); A("s_cbranch_scc1 L_xf")
    A("s_mov_b32 exec_lo, 0x00ff00ff"); A("s_mov_b32 exec_hi, 0x00ff00ff")
    A(f"global_store_short v18, v28, {sp(sOUT)}")
    A(f"s_cmp_lg_u32 s{sBLK}, 0"); A("s_cbranch_scc1 L_red_end")
    A("s_mov_b64 exec, 1")
    A(f"global_store_dword v{vZ}, v{vTAG}, {sp(sWS)} offset:{EPOCH} sc1")
    A("L_red_end:")
    if p.dbg:
        A("s_memrealtime s[96:97]")
        A("s_load_dwordx2 s[70:71], s[0:1], 104")
        A("s_waitcnt lgkmcnt(0)")
        A("s_sub_u32 s96, s96, s98")
        A("s_mov_b64 exec, 1")
        A(f"s_lshl_b32 s97, s{sBLK}, 2")
        A("v_mov_b32 v3, s97")
        A("v_mov_b32 v4, s96")
        A("global_store_dword v3, v4, s[70:71]")
    stamp(10)
    endwave()

    A("L_c_m:")
    if p.c0e:
        A("s_cmp_eq_u32 s3, 0"); A("s_cbranch_scc1 L_mphase")
    w1setup()
    if p.k2 > 1: A("s_waitcnt vmcnt(0)")
    if p.ctrig:
        A("s_setprio 0")
        ldswait(CNT_PUB, 1, 20)
    w1loads(p.DC)
    A("s_branch L_mphase")

    KB, VB, OA = 40, 104, 240
    vK, vV, QA, QB = 14, 15, 20, 24
    A("L_main:")
    A(f"s_sub_u32 s{sW}, s3, 4")
    A(f"s_lshl_b32 s{sT}, s{sG}, 23")
    KVSH = 16 if p.inter else 12
    A(f"s_lshl_b32 s70, s{sJ}, {28-KVSH}")
    A(f"s_add_u32 s{sT}, s{sT}, s70")
    A(f"s_add_u32 s{sT}, s{sT}, 7340032")
    A(f"s_lshl_b32 s70, s{sW}, 10")
    A(f"v_lshlrev_b32 v{vK}, 6, v{vI}")
    A(f"v_lshl_add_u32 v{vK}, v{vG}, 4, v{vK}")
    A(f"v_add_u32 v{vK}, s70, v{vK}")
    A(f"v_lshl_add_u32 v{vV}, v{vL}, 4, s70")
    if p.rot:
        A(f"s_mul_i32 s{sROT}, s2, {p.rot}"); A("s_lshr_b32 s70, s2, 4"); A(f"s_add_u32 s{sROT}, s{sROT}, s70")
        A(f"s_lshl_b32 s{sROT}, s{sROT}, {KVSH}"); A(f"s_and_b32 s{sROT}, s{sROT}, {hex((16<<KVSH)-1)}")
    else:
        A(f"s_mov_b32 s{sROT}, 0")
    A("s_waitcnt lgkmcnt(0)")
    set_srd(R_A, sT, sK, (15 << KVSH) + 4096)
    set_srd(R_B, sT, sV, (15 << KVSH) + 4096)
    A("s_barrier")
    stamp(1)
    def tail_setup():
        LM, LB_, LE = A.label("tM"), A.label("tB"), A.label("tE")
        sSA, sHA = 70, 71
        A(f"s_cmp_eq_u32 s{sCLS}, 2"); A(f"s_cbranch_scc1 {LB_}")
        A(f"s_mov_b32 s{sST}, 4608")
        A(f"s_mov_b32 s{sSA}, 1152"); A(f"s_mov_b32 s{sHA}, {32*1152}")
        A(f"s_cmp_eq_u32 s{sCLS}, 1"); A(f"s_cbranch_scc1 {LM}")
        A(f"s_lshl_b32 s{sT}, s{sG}, 2")
        A(f"s_add_u32 s{sT}, s{sT}, s{sW}")
        A(f"s_mul_i32 s{sT}, s{sT}, {64*1152}")
        A(f"s_lshl_b32 s{sO1}, s{sJ}, 7")
        A(f"s_add_u32 s{sT}, s{sT}, s{sO1}")
        set_srd(R_T1, sT, sWO, 64 * 1152)
        set_srd(R_T2, sT, sWO, 0)
        A(f"s_cmp_eq_u32 s{sCLS}, 0")
        A(f"s_cselect_b32 s{R_T1+2}, s{R_T1+2}, 0")
        A(f"s_branch {LE}")
        A(f"{LM}:")
        A(f"s_mul_i32 s{sT}, s{sBLK}, {64*1152}")
        A(f"s_lshl_b32 s{sO1}, s{sW}, 7")
        A(f"s_add_u32 s{sT}, s{sT}, s{sO1}")
        set_srd(R_T1, sT, sW2, 64 * 1152)
        A(f"s_add_u32 s{sT}, s{sT}, 512")
        set_srd(R_T2, sT, sW2, 64 * 1152)
        A(f"s_branch {LE}")
        A(f"{LB_}:")
        A(f"s_mul_i32 s{sT}, s{sW}, {144*6912}")
        A(f"s_lshl_b32 s{sO1}, s{sBLK}, 7")
        A(f"s_add_u32 s{sT}, s{sT}, s{sO1}")
        A(f"s_add_u32 s{sT}, s{sT}, 2304")
        set_srd(R_T1, sT, sWM, 64 * 6912)
        A(f"s_add_u32 s{sT}, s{sT}, {64*6912}")
        set_srd(R_T2, sT, sWM, 80 * 6912)
        A(f"s_mov_b32 s{sST}, {8*6912}")
        A(f"s_mov_b32 s{sSA}, 6912"); A(f"s_mov_b32 s{sHA}, {4*6912}")
        A(f"{LE}:")
        A(f"v_and_b32 v3, 7, v{vI}")
        A(f"v_lshlrev_b32 v3, 4, v3")
        A(f"v_lshrrev_b32 v18, 3, v{vI}")
        A(f"v_mad_u32_u24 v{vT}, v{vG}, s{sSA}, v3")
        A(f"v_mad_u32_u24 v{vT}, v18, s{sHA}, v{vT}")
        A(f"s_mov_b32 s{sO1}, 0"); A(f"s_mov_b32 s{sO2}, 0")
    seq = []
    ne = 0
    for n in range(32):
        seq.append(("kv", n))
        if p.EB2 and n >= 8 and (n - 8) % 3 == 0 and (n - 8) // 3 < 8: seq.append(("b", (n - 8) // 3))
        if n + 1 >= p.epos and (n + 1 - p.epos) % p.estep == 0 and ne < p.E:
            seq.append(("e", ne)); ne += 1
    while ne < p.E:
        seq.append(("e", ne)); ne += 1
    lastk = max(i for i, x in enumerate(seq) if x == ("kv", 15))
    vpos = [seq.index(("kv", 16 + n)) for n in range(16)]
    for idx, (kind, n) in enumerate(seq):
        if idx >= p.D and idx < len(seq) - p.X:
            if p.DW and idx > p.D + 4:
                Lk = A.label("dw")
                A(f"s_waitcnt vmcnt({p.DW-1})")
                A(f"s_cbranch_vccnz {Lk}")
                A(f"s_waitcnt vmcnt({p.D-1})")
                A(f"{Lk}:")
            else:
                A(f"s_waitcnt vmcnt({p.D-1})")
        if p.pause1 and idx == p.pause1: ldswait(CNT_H1, 1, 30)
        if p.pause2 and idx == p.pause2: ldswait(CNT_H2, 1, 30)
        if kind == "b":
            if n == 0:
                A(f"s_mov_b32 s26, s{R_T2+2}")
                A(f"s_cmp_eq_u32 s{sCLS}, 2"); A(f"s_cselect_b32 s{R_T2+2}, s{R_T2+2}, 0")
            tail_load(8 + n)
            if n == 7:
                A(f"s_mov_b32 s{R_T2+2}, s26")
                A(f"s_cmp_eq_u32 s{sCLS}, 2"); A(f"s_cselect_b32 s{sO2}, s{sO2}, 0")
            continue
        if kind == "e":
            if n == 0 and not p.EB and p.EM:
                A(f"s_mov_b32 s19, s{R_T1+2}")
                A(f"s_cmp_eq_u32 s{sCLS}, 2"); A(f"s_cselect_b32 s{R_T1+2}, 0, s{R_T1+2}")
            if n == p.EM:
                A(f"s_mov_b32 s26, s{R_T1+2}"); A(f"s_mov_b32 s27, s{sO1}")
                A(f"s_cmp_eq_u32 s{sCLS}, 0"); A(f"s_cselect_b32 s{R_T1+2}, s{R_T1+2}, 0")
            tail_load(n)
            if n == p.E - 1 and p.EM < p.E:
                A(f"s_mov_b32 s{R_T1+2}, s26"); A(f"s_mov_b32 s{sO1}, s27")
            continue
        if n < 16: A(f"buffer_load_dwordx4 {r4(KB+4*n)}, v{vK}, {srd(R_A)}, s{sROT} offen {nt}")
        else: A(f"buffer_load_dwordx4 {r4(VB+4*(n-16))}, v{vV}, {srd(R_B)}, s{sROT} offen {nt}")
        A(f"s_add_u32 s{sROT}, s{sROT}, {1<<KVSH}"); A(f"s_and_b32 s{sROT}, s{sROT}, {hex((16<<KVSH)-1)}")
        if n == p.D - 1:
            A(f"s_load_dword s{sTAG}, {sp(sWS)}, {EPOCH}")
            A(f"s_mov_b64 {sp(R_WS)}, {sp(sWS)}")
            classify()
            consts()
            tail_setup()
        if n == p.D + 3:
            tagsetup()
            A(f"v_and_b32 v3, 3, v{vI}")
            A(f"v_lshl_add_u32 v3, v3, 2, v{vG}")
            A(f"v_lshlrev_b32 v3, 4, v3")
            A(f"v_lshrrev_b32 v18, 3, v{vI}")
            A(f"v_lshl_add_u32 v3, v18, 8, v3")
            A(f"v_add_u32 v3, {L_Q}, v3")
            A(f"v_and_b32 v19, 4, v{vI}")
            A(f"v_cmp_eq_u32 vcc, 0, v19")
            A(f"v_mov_b32 v19, {L_ZERO}")
            A(f"v_cndmask_b32 v28, v19, v3, vcc")
            A(f"v_cndmask_b32 v29, v3, v19, vcc")
            A(f"s_lshl_b32 s70, s{sW}, 2")
            A(f"v_lshl_add_u32 v19, v18, 4, s70")
            A(f"v_lshrrev_b32 v17, 1, v{vG}")
            A(f"v_lshlrev_b32 v17, 4, v17")
            A(f"s_lshl_b32 s70, s{sG}, 4"); A(f"s_add_u32 s70, s70, s{sJ}"); A("s_mul_i32 s70, s70, 1152"); A(f"s_add_u32 s{sPUB}, s70, {OP}")
            A(f"v_and_b32 v3, 1, v{vG}")
            A(f"v_lshlrev_b32 v18, 5, v17")
            A(f"v_lshl_add_u32 v18, v3, 4, v18")
            A(f"v_lshl_add_u32 v18, v{vI}, 5, v18")
            if p.DW:
                A(f"s_cmp_le_u32 s{sCLS}, {1 if p.EM else 0}"); A("s_cselect_b64 vcc, -1, 0")
    stamp(2)
    if p.diag:
        A("s_waitcnt vmcnt(0)")
        stamp(11)
        ldssignal(20, 30)
    later = list(range(8, 16)) + list(range(min(p.EM, p.E), 8))
    if p.E == 0: later = list(range(16))
    for k in range(p.PRE): tail_load(later[k])
    for k, m in ((44, 0x22222222), (46, 0x44444444), (48, 0x88888888)):
        A(f"s_mov_b32 s{k}, {hex(m)}"); A(f"s_mov_b32 s{k+1}, {hex(m)}")
    A(f"s_mov_b32 s70, 0x3db504f3")
    A(f"s_mov_b32 s71, {hex(LOG2E)}")
    ldswait(CNT_Q, 4, 30)
    stamp(3)
    A(f"ds_read_b128 {r4(QA)}, v28")
    A(f"ds_read_b128 {r4(QB)}, v29")
    A(f"s_waitcnt vmcnt({len(seq)-1-lastk+p.PRE}) lgkmcnt(1)")
    T = [KB + 4 * (8 * r + u) for r in range(2) for u in range(4)]
    for t in T: A(f"v_mfma_f32_16x16x32_bf16 {r4(t)}, {r4(t)}, {r4(QA)}, 0")
    A("s_waitcnt lgkmcnt(0)")
    for t in T: A(f"v_mfma_f32_16x16x32_bf16 {r4(t)}, {r4(t+16)}, {r4(QB)}, {r4(t)}")
    for r in range(2):
        for t in T[4*r:4*r+4]: A(f"v_mov_b32_dpp v{t}, v{t} quad_perm:[0,0,0,0] {DPP}")
        for e in range(1, 4):
            for t in T[4*r:4*r+4]: A(f"v_add_f32_dpp v{t}, v{t+e}, v{t} quad_perm:[{e},{e},{e},{e}] {DPP}")
    PR = 30
    for r in range(2): A(f"v_cndmask_b32 v{PR+r}, v{T[4*r]}, v{T[4*r+1]}, s[44:45]")
    for r in range(2): A(f"v_cndmask_b32 v{PR+r}, v{PR+r}, v{T[4*r+2]}, s[46:47]")
    for r in range(2): A(f"v_cndmask_b32 v{PR+r}, v{PR+r}, v{T[4*r+3]}, s[48:49]")
    A("v_cvt_pk_bf16_f32 v32, v30, v31")
    A("v_lshlrev_b32 v30, 16, v32"); A("v_and_b32 v31, 0xffff0000, v32")
    A("v_pk_mul_f32 v[30:31], v[30:31], s[70:71] op_sel_hi:[1,0]")
    A("v_cvt_pk_bf16_f32 v32, v30, v31")
    A("v_lshlrev_b32 v30, 16, v32"); A("v_and_b32 v31, 0xffff0000, v32")
    A("v_max_f32 v32, v30, v31")
    for ctl in ("quad_perm:[1,0,3,2]", "quad_perm:[2,3,0,1]", "row_half_mirror"):
        A(f"v_max_f32_dpp v32, v32, v32 {ctl} {DPP}")
    rowsall("v_max_f32", [32], [33])
    A("v_pk_add_f32 v[30:31], v[30:31], v[32:33] op_sel_hi:[1,0] neg_lo:[0,1] neg_hi:[0,1]")
    A(f"ds_write_b32 v19, v32 offset:{L_MAX}")
    A("v_pk_mul_f32 v[30:31], v[30:31], s[70:71] op_sel:[0,1] op_sel_hi:[1,1]")
    A("v_exp_f32 v30, v30"); A("v_exp_f32 v31, v31")
    A("v_add_f32 v33, v30, v31")
    A("v_cvt_pk_bf16_f32 v30, v30, v30"); A("v_cvt_pk_bf16_f32 v31, v31, v31")
    A(f"v_add_f32_dpp v33, v33, v33 quad_perm:[1,0,3,2] {DPP}")
    A(f"v_mov_b32_dpp v34, v30 row_half_mirror {DPP}")
    A(f"v_mov_b32_dpp v35, v31 row_half_mirror {DPP}")
    A(f"v_add_f32_dpp v33, v33, v33 quad_perm:[2,3,0,1] {DPP}")
    def pbuild(n):
        r, k = n >> 3, n & 7
        for d in range(4):
            if (k >> 2) == (d >> 1): src, q = 30 + r, k & 3
            else: src, q = 34 + r, (7 - k) & 3
            A(f"v_and_b32_dpp v{KB+4*n+d}, v{src}, v{vMASK+d} quad_perm:[{q},{q},{q},{q}] {DPP}")
    pbuild(0)
    A(f"v_add_f32_dpp v33, v33, v33 row_half_mirror {DPP}")
    pbuild(1)
    rowsall("v_add_f32", [33], [36])
    A(f"ds_write_b32 v19, v33 offset:{L_LB}")
    ldssignal(CNT_L, 36)
    for n in range(2, 16): pbuild(n)
    stamp(4)
    A(f"s_lshl_b32 s70, s{sW}, 2")
    A(f"v_add_u32 v3, s70, v17")
    ldswait(CNT_L, 4, 36)
    A(f"ds_read_b128 v[20:23], v17 offset:{L_MAX}")
    A(f"ds_read_b128 v[24:27], v17 offset:{L_LB}")
    A(f"ds_read_b32 v36, v3 offset:{L_MAX}")
    A(f"ds_read_b32 v37, v{vZ} offset:{CNT_MODE}")
    A("s_waitcnt lgkmcnt(0)")
    A(f"v_readfirstlane_b32 s{sMODE}, v37")
    A("v_max3_f32 v32, v20, v21, v22"); A("v_max_f32 v32, v32, v23")
    for v in (20, 21, 22, 23, 36): A(f"v_sub_f32 v{v}, v{v}, v32")
    for v in (20, 21, 22, 23, 36): A(f"v_mul_f32 v{v}, s71, v{v}")
    for v in (20, 21, 22, 23, 36): A(f"v_exp_f32 v{v}, v{v}")
    A("v_mul_f32 v33, v20, v24")
    for e in range(1, 4): A(f"v_fmac_f32 v33, v{20+e}, v{24+e}")
    A("v_permlane32_swap_b32 v32, v34")
    A("v_permlane32_swap_b32 v33, v35")
    tag4(32)
    A(f"s_lshl_b32 s70, s{sW}, 10")
    A(f"v_lshlrev_b32 v20, 4, v{vL}")
    A(f"v_add_u32 v19, s70, v20")
    issued = p.PRE
    if p.mprio: A(f"s_setprio {p.mprio}")
    for n in range(16):
        A(f"s_waitcnt vmcnt({len(seq)-1-vpos[n]+issued})")
        mfma(OA, KB + 4 * n, VB + 4 * n, n == 0)
        want = min(8, max(p.PRE, p.D2 - 15 + n)) if p.D2 else 0
        while issued < want:
            tail_load(later[issued]); issued += 1
    stamp(5)
    A(f"v_pk_mul_f32 {r2(OA)}, {r2(OA)}, v[36:37] op_sel_hi:[1,0]")
    A(f"v_pk_mul_f32 {r2(OA+2)}, {r2(OA+2)}, v[36:37] op_sel_hi:[1,0]")
    A(f"ds_write_b128 v19, {r4(OA)} offset:{L_OB}")
    ldssignal(CNT_O, 26, rtn=True)
    A("s_cbranch_vccz L_m_pub_done")
    for w in range(4): A(f"ds_read_b128 {r4(KB+4*w)}, v20 offset:{L_OB+1024*w}")
    A("s_waitcnt lgkmcnt(0)")
    sum4(KB, KB)
    tag1(KB)
    pubstore(r4(KB), "v18", sPUB)
    A("s_mov_b64 exec, 1")
    pubstore("v[32:35]", f"v{vZ}", sPUB, "offset:1024")
    A("s_mov_b64 exec, -1")
    if p.hint and not p.fast:
        A(f"s_lshl_b32 s70, s{sG}, 11"); A(f"s_lshl_b32 s71, s{sJ}, 1"); A("s_add_u32 s70, s70, s71"); A(f"s_add_u32 s70, s70, {HINT3}")
        hintstore(70, 0x1ff, 128, 3)
    ldssignal(CNT_PUB, 26)
    A("L_m_pub_done:")
    if p.mprio: A("s_setprio 0")
    stamp(6)
    A(f"s_cmp_eq_u32 s{sCLS}, 0"); A("s_cbranch_scc1 L_wphase")
    A(f"s_cmp_eq_u32 s{sCLS}, 3"); A("s_cbranch_scc1 L_m_end")
    if p.ctrig: ldswait(CNT_PUB, 1, 26)
    rest = later[issued:]
    common = [k for k in rest if k < 8]
    t2 = [k for k in rest if k >= 8]
    if p.EB2 or p.ZH: assert len(t2) == 8
    for k in common:
        if p.D3 < 63: A(f"s_waitcnt vmcnt({p.D3-1})")
        tail_load(k)
    A(f"s_cmp_eq_u32 s{sCLS}, 1"); A("s_cbranch_scc1 L_m_m")
    if not p.EB2:
        for k in t2: tail_load(k)

    if not p.EB and p.EM:
        A(f"s_mov_b32 s{R_T1+2}, s19"); A(f"s_mov_b32 s{sO1}, 0")
        for k in range(p.EM):
            if p.D3 < 63: A(f"s_waitcnt vmcnt({p.D3-1})")
            tail_load(k)
    for k in (16, 17):
        if p.D3 < 63: A(f"s_waitcnt vmcnt({p.D3-1})")
        tail_load(k)
    A(f"s_mul_i32 s70, s{sW}, 144")
    A(f"v_lshl_add_u32 v3, v{vI}, 3, v{vG}")
    A(f"v_add_lshl_u32 v3, v3, s70, 1")
    A(f"global_load_short_d16_hi v24, v3, {sp(sC)}")
    A(f"global_load_short_d16_hi v25, v3, {sp(sC)} offset:8")
    A(f"v_and_b32 v3, 1, v{vI}")
    A(f"v_lshl_add_u32 v3, v3, 3, v{vG}")
    A(f"v_add_lshl_u32 v3, v3, s70, 1")
    A(f"global_load_short_d16_hi v26, v3, {sp(sC)} offset:256")
    A(f"global_load_short_d16_hi v27, v3, {sp(sC)} offset:264")
    A(f"s_lshl_b32 s{sPUB}, s{sBLK}, 8"); A(f"s_add_u32 s{sPUB}, s{sPUB}, {MB}")
    A("s_waitcnt vmcnt(0)")
    silu([24, 25, 26, 27], [28, 29, 30, 31])
    A("v_cvt_pk_bf16_f32 v24, v24, v25")
    A("v_cvt_pk_bf16_f32 v26, v26, v27")
    gemv8(lambda n: (24 if n < 16 else 26, n & 15), 18, [KB, KB + 4, KB + 8], 28, [(OA, T1B)])
    A("s_nop 7")
    A("s_branch L_comb")

    A("L_wphase:")
    if p.E == 0:
        for k in range(issued, 8): tail_load(k)
    A(f"v_mul_u32_u24 v3, 1152, v{vG}")
    A(f"v_and_b32 v21, 3, v{vI}")
    A(f"v_mul_u32_u24 v21, 4608, v21")
    A(f"v_add_u32 v21, v21, v3")
    A(f"v_lshl_add_u32 v3, v{vI}, 4, v3")
    A(f"s_mul_i32 s70, s{sG}, {16*1152}"); A(f"s_add_u32 s48, s70, {OP}")
    A(f"s_lshl_b32 s71, s{sW}, 8"); A("s_add_u32 s44, s48, s71")
    for a in range(1, 4): A(f"s_add_u32 s{44+a}, s44, {4608*a}")
    A(f"s_mul_i32 s{sPUB}, s{sG}, 2304"); A(f"s_lshl_b32 s70, s{sJ}, 8"); A(f"s_add_u32 s{sPUB}, s{sPUB}, s70"); A(f"s_add_u32 s{sPUB}, s{sPUB}, {AP}")
    A(f"s_cmp_ge_u32 s{sW}, 2"); A("s_cselect_b64 s[70:71], -1, 0")
    if p.hint and not p.fast: ldswait(CNT_H3, 1, 22)
    b = VB; S = VB + 16
    L3 = A.label("s3")
    A(f"s_mov_b32 s49, {p.limit}")
    A(f"{L3}:")
    poll([([f"buffer_load_dwordx4 {r4(S)}, v21, {WS}, s48 offen offset:1024 sc1"], [(S + e, f"s{sTAG+e}") for e in range(4)], lambda: None)], 22, 0, 2)
    stamp(9)
    for a in range(4): A(f"buffer_load_dwordx4 {r4(b+4*a)}, v3, {WS}, s{44+a} offen sc1")
    A(f"v_cndmask_b32 v24, v{S}, v{S+2}, s[70:71]")
    A(f"v_cndmask_b32 v25, v{S+1}, v{S+3}, s[70:71]")
    A("v_and_b32 v24, 0xffff0000, v24")
    A(f"v_max_f32_dpp v26, v24, v24 quad_perm:[1,0,3,2] {DPP}")
    A(f"v_max_f32_dpp v26, v26, v26 quad_perm:[2,3,0,1] {DPP}")
    rowsall("v_max_f32", [26], [27])
    A("v_sub_f32 v24, v24, v26")
    A(f"v_mul_f32 v24, {hex(LOG2E)}, v24")
    A("v_exp_f32 v24, v24")
    A("v_mul_f32 v25, v24, v25")
    A(f"v_add_f32_dpp v25, v25, v25 quad_perm:[1,0,3,2] {DPP}")
    A(f"v_add_f32_dpp v25, v25, v25 quad_perm:[2,3,0,1] {DPP}")
    rowsall("v_add_f32", [25], [27])
    A("v_rcp_f32 v25, v25")
    A("v_mul_f32 v24, v24, v25")
    for a in range(4):
        A(f"s_waitcnt vmcnt({3-a})")
        if a == 0: A(f"v_xor_b32 v22, v{vTC}, v{b}")
        else: A(f"v_bitop3_b32 v22, v{b+4*a}, v{vTC}, v22 bitop3:0xbe")
        for e in range(4):
            A(f"{'v_mul_f32_dpp' if a == 0 else 'v_fmac_f32_dpp'} v{28+e}, v24, v{b+4*a+e} quad_perm:[{a},{a},{a},{a}] {DPP}")
    A("v_and_b32 v22, 0xff, v22")
    A("v_cmp_ne_u32 vcc, 0, v22")
    A("s_cbranch_vccz L_s3ok")
    A("s_sub_u32 s49, s49, 1")
    A(f"s_cbranch_scc0 {L3}")
    A("L_s3ok:")
    stamp(7)
    redscat([28])
    A(f"v_mov_b32_dpp v29, v28 row_ror:8 {DPP}")
    A("v_cvt_pk_bf16_f32 v28, v28, v29")
    gemv8(lambda n: (28, n), 8, [KB, KB + 4, KB + 8], 30, [(OA, T1B)])
    A("L_comb:")
    A(f"ds_write_b128 v19, {r4(OA)} offset:{L_WB}")
    ldssignal(CNT_W, 26, rtn=True)
    A("s_cbranch_vccz L_m_end")
    for w in range(4): A(f"ds_read_b128 {r4(KB+4*w)}, v20 offset:{L_WB+1024*w}")
    A("s_waitcnt lgkmcnt(0)")
    sum4(KB, KB)
    halfadd([KB], [KB + 4])
    A(f"s_cmp_eq_u32 s{sCLS}, 0"); A("s_cbranch_scc1 L_comb_w")
    for e in range(4): bf16r(KB + e, KB + e)
    tag4(KB)
    A("s_branch L_comb_st")
    A("L_comb_w:")
    tag1(KB)
    A("L_comb_st:")
    A("s_mov_b64 exec, 0x00ff00ff")
    A(f"buffer_store_dwordx4 {r4(KB)}, v{vST}, {WS}, s{sPUB} offen sc1")
    A("L_m_end:")
    stamp(8)
    endwave()

    X2B = KB
    A("L_m_m:")
    def m_rest(lab):
        for k in t2: tail_load(k)
        A(f"s_cmp_lg_u32 s{sW}, 0"); A(f"s_cbranch_scc1 {lab}")
        A(f"s_mov_b32 s{sO1}, 1024")
        for k in range(8):
            A(f"buffer_load_dwordx4 {r4(X2B+4*k)}, v{vT}, {srd(R_T1)}, s{sO1} offen {nt}")
            A(f"s_add_u32 s{sO1}, s{sO1}, s{sST}")
    if not p.ZH: m_rest("L_mphase")
    A("L_mphase:")
    stamp(7)
    A(f"v_lshl_add_u32 v14, v{vI}, 2, v{vG}")
    A(f"s_lshl_b32 s70, s3, 6")
    A(f"v_add_u32 v15, s70, v14")
    A(f"v_lshlrev_b32 v3, 1, v15")
    A(f"global_load_short_d16_hi v24, v3, {sp(sX)}")
    A(f"v_lshlrev_b32 v3, 1, v14")
    A(f"global_load_short_d16_hi v25, v3, {sp(sX)} offset:1024")
    A(f"s_lshl_b32 s70, s{sBLK}, 7")
    A(f"v_add_u32 v3, s70, v3")
    A(f"global_load_short_d16_hi v23, v3, {sp(sB1)}")
    A(f"v_lshlrev_b32 v15, 2, v15")
    A(f"v_lshlrev_b32 v22, 2, v14")
    A(f"v_mul_u32_u24 v3, 2304, v{vG}")
    A(f"v_lshl_add_u32 v3, v{vI}, 4, v3")
    A(f"s_lshl_b32 s70, s3, 8"); A(f"s_add_u32 s44, s70, {AP}")
    for a in range(1, 4): A(f"s_add_u32 s{44+a}, s44, {9216*a}")
    A(f"s_mov_b32 s48, {MB}"); A(f"s_mov_b32 s49, {MB+4608}")
    for a in range(4): A(f"s_mov_b32 s{18+a}, {AP+2048+9216*a}")
    A(f"s_mov_b32 s50, {MB+2048}"); A(f"s_mov_b32 s51, {MB+2048+2304}"); A(f"s_mov_b32 s22, {MB+2048+4608}")
    A(f"v_lshlrev_b32 v18, 4, v{vL}")
    A(f"v_lshlrev_b32 v19, 2, v{vL}")
    A(f"s_mul_i32 s70, s3, 144")
    A(f"v_lshl_add_u32 v20, v{vI}, 3, v{vG}")
    A(f"v_add_lshl_u32 v20, v20, s70, 2")
    A(f"v_and_b32 v17, 1, v{vI}")
    A(f"v_lshl_add_u32 v17, v17, 3, v{vG}")
    A(f"s_add_u32 s70, s70, 128")
    A(f"v_add_lshl_u32 v17, v17, s70, 2")
    for k, off in enumerate((L_X2, L_AA, L_SS)):
        A(f"v_add_u32 v{72+2*k}, {off}, v20")
        A(f"v_add_u32 v{73+2*k}, {off}, v17")
    A(f"v_lshrrev_b32 v21, 1, v{vG}")
    A(f"s_lshl_b32 s70, s3, 1")
    A(f"v_add_lshl_u32 v21, v21, s70, 8")
    A(f"v_and_b32 v17, 7, v{vI}")
    A(f"v_lshl_add_u32 v21, v17, 5, v21")
    A(f"v_and_b32 v17, 1, v{vG}")
    A(f"v_lshl_add_u32 v21, v17, 4, v21")
    A(f"s_mul_i32 s{sPUB}, s{sBLK}, 2304"); A("s_lshl_b32 s70, s3, 8"); A(f"s_add_u32 s{sPUB}, s{sPUB}, s70"); A(f"s_add_u32 s{sPUB}, s{sPUB}, {FP-1024}")
    if p.XW < 63:
        A(f"s_waitcnt vmcnt({p.XW})")
        A("s_barrier")
        stamp(11)
    def blockstep(items):
        redscat([G for G, _, _ in items])
        for G, ga, xr in items:
            A(f"v_and_b32 v{ga+2}, 0xffff0000, v{ga+2}")
            A(f"v_cvt_pk_bf16_f32 v{G}, v{G}, v{G}")
            A(f"v_and_b32 v{ga}, 0xffff0000, v{ga}")
            A(f"v_lshlrev_b32 v{G}, 16, v{G}")
            A(f"v_add_f32 v{ga+2}, 1.0, v{ga+2}")
            A(f"v_mul_f32 v{G}, v{G}, v{ga}")
            A(f"v_cvt_pk_bf16_f32 v{G}, v{G}, v{ga+2}")
            A(f"v_and_b32 v{ga+2}, 0xffff0000, v{G}")
            A(f"v_lshlrev_b32 v{G}, 16, v{G}")
            A(f"v_add_f32 v{G}, v{G}, v{xr}")
            bf16r(G, G)
            A(f"v_and_b32 v{ga+1}, 0xffff0000, v{ga+1}")
    def s4set(b, two):
        loads = [f"buffer_load_dwordx4 {r4(b+4*a)}, v3, {WS}, s{44+a} offen sc1" for a in range(4)]
        loads += [f"buffer_load_dword v{b+16}, v15, {WS}, s48 offen sc1",
                  f"buffer_load_dword v{b+17}, v15, {WS}, s48 offen offset:2304 sc1",
                  f"buffer_load_dword v{b+18}, v15, {WS}, s49 offen sc1"]
        checks = [(b + 4 * a, f"v{vTC}") for a in range(4)] + [(b + 16 + e, f"v{vTG}") for e in range(3)]
        if two:
            c = b + 20
            loads += [f"buffer_load_dwordx4 {r4(c+4*a)}, v3, {WS}, s{18+a} offen sc1" for a in range(4)]
            loads += [f"buffer_load_dword v{c+16}, v22, {WS}, s50 offen sc1",
                      f"buffer_load_dword v{c+17}, v22, {WS}, s51 offen sc1",
                      f"buffer_load_dword v{c+18}, v22, {WS}, s22 offen sc1"]
            checks += [(c + 4 * a, f"v{vTC}") for a in range(4)] + [(c + 16 + e, f"v{vTG}") for e in range(3)]
        def epi():
            sum4(28, b)
            for e in range(3): A(f"v_mov_b32 v{32+e}, v{b+16+e}")
            if two:
                sum4(36, b + 20)
                for e in range(3): A(f"v_mov_b32 v{78+e}, v{b+36+e}")
        return loads, checks, epi
    A("s_cmp_eq_u32 s3, 5"); A("s_cbranch_scc1 L_mp0")
    poll([s4set(VB + 20 * i, False) for i in range(p.k4)], 26, p.g4, 2)
    stamp(8)
    blockstep([(28, 32, 24)])
    A("s_branch L_mp1")
    A("L_mp0:")
    poll([s4set(VB, True)], 26, p.g4, 2)
    stamp(8)
    blockstep([(28, 32, 24), (36, 78, 25)])
    A(f"ds_write_b32 v22, v36 offset:{L_X2+2048}")
    A(f"ds_write_b32 v22, v80 offset:{L_AA+2048}")
    A(f"ds_write_b32 v22, v79 offset:{L_SS+2048}")
    A("L_mp1:")
    A(f"ds_write_b32 v15, v28 offset:{L_X2}")
    A(f"ds_write_b32 v15, v34 offset:{L_AA}")
    A(f"ds_write_b32 v15, v33 offset:{L_SS}")
    A("s_waitcnt lgkmcnt(0)")
    A("s_barrier")
    A("s_cmp_ge_u32 s3, 4"); A("s_cbranch_scc1 L_mw2")
    XR, AR, SR_ = 40, 50, 60
    OX, OA_, OS = 84, 88, 92
    for base, off in ((XR, L_X2), (AR, L_AA), (SR_, L_SS)):
        A(f"ds_read_b128 {r4(base)}, v18 offset:{off}")
        A(f"ds_read_b128 {r4(base+4)}, v18 offset:{off+1024}")
        A(f"ds_read_b32 v{base+8}, v19 offset:{off+2048}")
        A(f"ds_read_b32 v{base+9}, v{vZ} offset:{off}")
        if base == XR: pass
    A("s_waitcnt lgkmcnt(8)")
    def lnstats(first):
        X = XR
        for k in range(4): A(f"v_pk_add_f32 {r2(X+2*k)}, {r2(X+2*k)}, {r2(X+8)} op_sel:[0,1] op_sel_hi:[1,1] neg_lo:[0,1] neg_hi:[0,1]")
        if first:
            for k, d in enumerate((OX, OA_, OS)):
                A(f"ds_read2_b32 {r2(d)}, v{72+2*k} offset0:0 offset1:4")
                A(f"ds_read2_b32 {r2(d+2)}, v{73+2*k} offset0:0 offset1:4")
        A(f"v_sub_f32 v80, v{X+8}, v{X+9}")
        A(f"v_pk_add_f32 v[96:97], {r2(X)}, {r2(X+2)}")
        A(f"v_pk_mul_f32 v[98:99], {r2(X)}, {r2(X)}")
        A(f"v_pk_add_f32 v[82:83], {r2(X+4)}, {r2(X+6)}")
        A(f"v_pk_fma_f32 v[98:99], {r2(X+2)}, {r2(X+2)}, v[98:99]")
        A(f"v_pk_add_f32 v[96:97], v[96:97], v[82:83]")
        A(f"v_pk_fma_f32 v[98:99], {r2(X+4)}, {r2(X+4)}, v[98:99]")
        A(f"v_add_f32 v96, v96, v80")
        A(f"v_pk_fma_f32 v[98:99], {r2(X+6)}, {r2(X+6)}, v[98:99]")
        A(f"v_add_f32 v96, v96, v97")
        A(f"v_fmac_f32 v98, v80, v80")
        A(f"v_add_f32 v98, v98, v99")
        wavesum_s([96, 98], [70, 71])
        A(f"v_mov_b32 v97, {INV576}")
        A(f"v_mul_f32 v96, s70, v97")
        A(f"v_mul_f32 v98, s71, v97")
        A(f"v_fma_f32 v98, -v96, v96, v98")
        A(f"v_max_f32 v98, 0, v98")
        A(f"v_add_f32 v98, {EPS}, v98")
        A(f"v_rsq_f32 v98, v98")
        A(f"v_add_f32 v97, v96, v{X+9}")
    lnstats(True)
    A("s_waitcnt lgkmcnt(0)")
    neg = "neg_lo:[0,1] neg_hi:[0,1]"
    for k in range(4): A(f"v_pk_add_f32 {r2(XR+2*k)}, {r2(XR+2*k)}, v[96:97] op_sel_hi:[1,0] {neg}")
    for b in (XR + 8, OX, OX + 2): A(f"v_pk_add_f32 {r2(b)}, {r2(b)}, v[96:97] op_sel:[0,1] op_sel_hi:[1,1] {neg}")
    for b in [AR + 2 * k for k in range(5)] + [OA_, OA_ + 2]: A(f"v_pk_mul_f32 {r2(b)}, {r2(b)}, v[98:99] op_sel_hi:[1,0]")
    for k in range(5): A(f"v_pk_fma_f32 {r2(XR+2*k)}, {r2(XR+2*k)}, {r2(AR+2*k)}, {r2(SR_+2*k)}")
    for k in range(2): A(f"v_pk_fma_f32 {r2(OX+2*k)}, {r2(OX+2*k)}, {r2(OA_+2*k)}, {r2(OS+2*k)}")
    lnstats(False)
    for b in (OX, OX + 2): A(f"v_pk_add_f32 {r2(b)}, {r2(b)}, v[96:97] op_sel:[0,1] op_sel_hi:[1,1] {neg}")
    for b in (OX, OX + 2): A(f"v_pk_mul_f32 {r2(b)}, {r2(b)}, v[98:99] op_sel_hi:[1,0]")
    A(f"v_cvt_pk_bf16_f32 v{OX}, v{OX}, v{OX+1}")
    A(f"v_cvt_pk_bf16_f32 v{OX+2}, v{OX+2}, v{OX+3}")
    stamp(9)
    gemv8(lambda n: (OX if n < 16 else OX + 2, n & 15), 18, [40, 44, 48], 52, [(OA, T1B)])
    A("s_mov_b32 exec_lo, 0x00ff00ff"); A("s_mov_b32 exec_hi, 0xff00ff00")
    A(f"ds_write_b128 v21, {r4(OA)} offset:{L_H1}")
    A("s_waitcnt lgkmcnt(0)")
    A("s_barrier")
    stamp(10)
    endwave()
    A("L_mw2:")
    if p.ZH:
        A(f"s_mul_i32 s{sT}, s{sBLK}, {64*1152}")
        A(f"s_lshl_b32 s70, s{sW}, 7")
        A(f"s_add_u32 s{sT}, s{sT}, s70")
        set_srd(R_T1, sT, sW2, 64 * 1152)
        A(f"s_add_u32 s{sT}, s{sT}, 512")
        set_srd(R_T2, sT, sW2, 64 * 1152)
        m_rest("L_mw2b")
        A("L_mw2b:")
    A(f"v_add_u32 v22, {L_H1}, v22")
    c0 = -2.0 * math.sqrt(2.0 / math.pi) * math.log2(math.e)
    A(f"v_mov_b32 v82, {f2h(c0)}")
    A("s_barrier")
    stamp(9)
    for k in range(4): A(f"ds_read2st64_b32 {r2(72+2*k)}, v22 offset0:{2*k} offset1:{2*k+1}")
    A("s_waitcnt lgkmcnt(2)")
    A("v_pk_add_f32 v[72:73], v[72:73], v[74:75]")
    A("s_waitcnt lgkmcnt(0)")
    A("v_pk_add_f32 v[76:77], v[76:77], v[78:79]")
    A("v_pk_add_f32 v[72:73], v[72:73], v[76:77]")
    A("v_add_f32 v80, v72, v73")
    bf16r(80, 80)
    A("v_add_f32 v80, v80, v23")
    bf16r(80, 80)
    A("v_mul_f32 v81, v80, v80")
    A(f"v_fmac_f32 v82, {f2h(c0*0.044715)}, v81")
    A("v_mul_f32 v81, v82, v80")
    A("v_exp_f32 v81, v81")
    A("v_add_f32 v81, 1.0, v81")
    A("v_rcp_f32 v81, v81")
    A("v_mul_f32 v80, v80, v81")
    A(f"v_mov_b32_dpp v81, v80 row_ror:8 {DPP}")
    A("v_cvt_pk_bf16_f32 v80, v80, v81")
    if p.ZH: A("s_waitcnt vmcnt(0)")
    OB, OC = 232, 236
    A(f"s_cmp_eq_u32 s{sW}, 0"); A("s_cbranch_scc1 L_w2_0")
    gemv8(lambda n: (80, n), 8, [84, 88, 92], 82, [(OA, T1B), (OB, T2B)])
    halfadd([OA, OB], [84, 88])
    A("s_branch L_w2_1")
    A("L_w2_0:")
    gemv8(lambda n: (80, n), 8, [84, 88, 92], 82, [(OC, X2B), (OA, T1B), (OB, T2B)])
    halfadd([OC, OA, OB], [92, 84, 88])
    tag1(OC)
    A("s_mov_b64 exec, 0x00ff00ff")
    A(f"buffer_store_dwordx4 {r4(OC)}, v{vST}, {WS}, s{sPUB} offen offset:2048 sc1")
    A("L_w2_1:")
    A("s_mov_b64 exec, 0x00ff00ff")
    tag1(OA); tag1(OB)
    A(f"buffer_store_dwordx4 {r4(OA)}, v{vST}, {WS}, s{sPUB} offen sc1")
    A(f"buffer_store_dwordx4 {r4(OB)}, v{vST}, {WS}, s{sPUB} offen offset:1024 sc1")
    stamp(10)
    endwave()
    A("L_exit:")
    A("s_endpgm")
    A('.section .rodata,"a"')
    A(".p2align 6")
    A(f".amdhsa_kernel {KN}")
    A(".amdhsa_next_free_vgpr 248")
    A(".amdhsa_next_free_sgpr 102")
    A(".amdhsa_accum_offset 248")
    A(".amdhsa_group_segment_fixed_size 0")
    A(".amdhsa_kernarg_size 120")
    A(".amdhsa_user_sgpr_count 2")
    A(".amdhsa_user_sgpr_kernarg_segment_ptr 1")
    A(".amdhsa_system_sgpr_workgroup_id_x 1")
    A(".amdhsa_float_denorm_mode_32 3")
    A(".end_amdhsa_kernel")
    return A.text().replace(".ASMLAUNCH @", "; @")

if __name__ == "__main__":
    kw = eval("dict(" + (sys.argv[2] if len(sys.argv) > 2 else "") + ")")
    open(sys.argv[1], "w").write(gen(**kw))
```

```python
import sys, struct, math
sys.path.insert(0, "work")
from asmlib import Asm

KN = "adaLN_cond__sliding_block_cached__mixer_channel_mlp__decode_kernel"

EPOCH = 0
MA = 0x1000
MB = 0xA000
AP = 0xD000
FP = 0x16000
QP = 0x40000
OP = 0x80000
HINT1 = 0xC8000
IDS = 0xD2000
WSREC = 0x100000
DBG = 0x100000

CNT_Q, CNT_P, CNT_L, CNT_O, CNT_W, CNT_G, CNT_H1, CNT_MODE, CNT_PUB, CNT_A, CNT_GD = 0, 4, 8, 12, 16, 20, 24, 28, 32, 36, 40
L_ZERO = 48
L_MAX = 64
L_LB = 96
L_Q = 256
L_OB = 1024
L_WB = 5120
L_X2 = 1024
L_AA = 3328
L_SS = 5632
L_H1 = 7936
LDS_BYTES = 10240

DPP = "row_mask:0xf bank_mask:0xf"
LOG2E = 0x3fb8aa3b
f2h = lambda f: hex(struct.unpack("<I", struct.pack("<f", f))[0])
INV576 = f2h(1.0 / 576)
EPS = f2h(1e-5)

class P:
    DW = 12
    DO = 6
    P1 = 0
    P2 = 4
    DL = 5
    SL = 14
    GD = 2
    N1C = 6; N1M = 3; N1B = 8
    b3 = 1
    k4 = 1; g4 = 8
    WL = 8
    BE = 0
    PRE = 3
    MID = 3
    XW_ = 4
    XO = 0
    DC = 3
    D3 = 2
    D3B = 4
    XW = 2
    ZH = 1
    stamps = 0
    preread = 2
    limit = 20000
    nt = "nt"
    prio = 1
    rot = 1
    h1 = 1
    k2 = 2; g2 = 12
    k5 = 2; g5 = 3
    psleep = 0
    hsleep = 1
    lsleep = 1
    cpf = 2
    fast = 1
    xfix = 0
    probe = None

def gen(**kw):
    p = P()
    for k, v in kw.items():
        assert hasattr(p, k), k
        setattr(p, k, v)
    A = Asm()
    nt = p.nt
    sX, sK, sV, sWQ, sWO, sW1, sB1, sW2, sB2, sC, sWM, sOUT, sWS = 16, 18, 20, 22, 24, 28, 30, 32, 34, 36, 38, 40, 42
    sG, sJ, sCLS, sBLK = 4, 5, 6, 7
    sTAG = 8
    sSEL = 12
    sID, sMODE = 26, 27
    R_A, R_B, R_T1, R_T2, R_WS = 44, 48, 52, 56, 60
    sST, sROT = 64, 65
    sO1, sO2 = 66, 67
    sCNT = 68
    sT = 69
    sW, sPUB = 96, 97
    vL, vG, vI = 0, 1, 2
    vMASK, vSEL, vTAG, vTG = 4, 8, 12, 13
    vTP, vTC, vST, vZ = 244, 245, 246, 247
    vT = 16
    T1B, T2B = 168, 200
    def r4(b): return f"v[{b}:{b+3}]"
    def r2(b): return f"v[{b}:{b+1}]"
    def srd(b): return f"s[{b}:{b+3}]"
    def sp(b): return f"s[{b}:{b+1}]"
    WS = srd(R_WS)
    def stamp(k):
        if p.stamps: A(f"s_memrealtime s[{72+2*k}:{73+2*k}]")
        if p.probe == k:
            A("s_memrealtime s[100:101]"); A("s_waitcnt lgkmcnt(0)"); A("s_sub_u32 s100, s100, s98")
    def endwave():
        if p.stamps:
            A("s_mov_b64 exec, -1")
            A("s_waitcnt lgkmcnt(0)")
            A(f"s_lshl_b32 s{sT}, s2, 3")
            A(f"s_add_u32 s{sT}, s{sT}, s3")
            A(f"s_lshl_b32 s{sT}, s{sT}, 6")
            A(f"s_add_u32 s{sT}, s{sT}, {DBG}")
            A("s_waitcnt vmcnt(0)")
            A(f"v_mov_b32 v14, s{sT}")
            A("s_mov_b64 exec, 1")
            for k in range(0, 12, 4):
                for e in range(4): A(f"v_mov_b32 v{16+e}, s{72+2*(k+e)}")
                A(f"global_store_dwordx4 v14, v[16:19], {sp(sWS)} offset:{4*k}")
            for e in range(4): A(f"v_mov_b32 v{16+e}, s{98+e}")
            A(f"global_store_dwordx4 v14, v[16:19], {sp(sWS)} offset:48")
            A("s_waitcnt vmcnt(0)")
        A("s_endpgm")
    def set_srd(r, off_s, ptr, rec):
        A(f"s_add_u32 s{r}, s{ptr}, s{off_s}")
        A(f"s_addc_u32 s{r+1}, s{ptr+1}, 0")
        A(f"s_mov_b32 s{r+2}, {rec}")
        A(f"s_mov_b32 s{r+3}, 0x20000")
    def bf16r(d, s):
        A(f"v_cvt_pk_bf16_f32 v{d}, v{s}, v{s}")
        A(f"v_lshlrev_b32 v{d}, 16, v{d}")
    def rowsall(op, vs, ts):
        for sw in ("v_permlane32_swap_b32", "v_permlane16_swap_b32"):
            for v, t in zip(vs, ts): A(f"v_mov_b32 v{t}, v{v}")
            for v, t in zip(vs, ts): A(f"{sw} v{v}, v{t}")
            for v, t in zip(vs, ts): A(f"{op} v{v}, v{v}, v{t}")
    def wavesum_s(vs, ss):
        for ctl in ("quad_perm:[1,0,3,2]", "quad_perm:[2,3,0,1]", "row_half_mirror", "row_mirror"):
            for v in vs: A(f"v_add_f32_dpp v{v}, v{v}, v{v} {ctl} {DPP}")
        for v in vs: A(f"v_add_f32_dpp v{v}, v{v}, v{v} row_bcast:15 row_mask:0xa bank_mask:0xf")
        for v in vs: A(f"v_add_f32_dpp v{v}, v{v}, v{v} row_bcast:31 row_mask:0xc bank_mask:0xf")
        for v, s in zip(vs, ss): A(f"v_readlane_b32 s{s}, v{v}, 63")
    def redscat(bs):
        for b in bs:
            A(f"v_permlane32_swap_b32 v{b}, v{b+2}")
            A(f"v_permlane32_swap_b32 v{b+1}, v{b+3}")
        for b in bs: A(f"v_pk_add_f32 {r2(b)}, {r2(b)}, {r2(b+2)}")
        for b in bs: A(f"v_permlane16_swap_b32 v{b}, v{b+1}")
        for b in bs: A(f"v_add_f32 v{b}, v{b}, v{b+1}")
    def addgran(d, a, b):
        A(f"v_pk_add_f32 {r2(d)}, {r2(a)}, {r2(b)}")
        A(f"v_pk_add_f32 {r2(d+2)}, {r2(a+2)}, {r2(b+2)}")
    def sum4(d, b):
        addgran(b, b, b + 4); addgran(b + 8, b + 8, b + 12); addgran(d, b, b + 8)
    def tag4(b):
        for e in range(4): A(f"v_perm_b32 v{b+e}, v{b+e}, v{vTAG}, s{sSEL+e}")
    def tag1(b):
        A(f"v_perm_b32 v{b}, v{b}, v{vTP}, s{sSEL}")
    def halfadd(bs, ts):
        for b, t in zip(bs, ts):
            for e in range(4): A(f"v_permlane32_swap_b32 v{b+e}, v{t+e}")
        for b, t in zip(bs, ts):
            for e in range(4): A(f"v_add_f32_dpp v{b+e}, v{t+e}, v{b+e} row_ror:8 {DPP}")
    def poll(sets, acc, gap=0, slot=None, issued=None, sleep=0):
        k = len(sets); n = sum(1 for l in sets[0][0] if l.startswith("buffer"))
        L = A.label("poll"); Ld = A.label("pd")
        oks = [A.label("ok") for _ in sets]
        A(f"s_mov_b32 s{sCNT}, {p.limit}")
        for i, (loads, _, _) in enumerate(sets):
            if i and gap: A(f"s_sleep {gap}")
            for l in loads: A(l)
        if issued: issued()
        A(f"{L}:")
        for i, (loads, checks, _) in enumerate(sets):
            A(f"s_waitcnt vmcnt({(k-1)*n})")
            for c, (r, t) in enumerate(checks):
                if c == 0: A(f"v_xor_b32 v{acc}, {t}, v{r}")
                else: A(f"v_bitop3_b32 v{acc}, v{r}, {t}, v{acc} bitop3:0xbe")
            A(f"v_and_b32 v{acc}, 0xff, v{acc}")
            A(f"v_cmp_ne_u32 vcc, 0, v{acc}")
            A(f"s_cbranch_vccz {oks[i]}")
            A(f"s_sub_u32 s{sCNT}, s{sCNT}, 1")
            A(f"s_cbranch_scc1 {oks[i]}")
            if sleep: A(f"s_sleep {sleep}")
            for l in loads: A(l)
        A(f"s_branch {L}")
        for i in reversed(range(k)):
            A(f"{oks[i]}:")
            sets[i][2]()
            if i: A(f"s_branch {Ld}")
        A(f"{Ld}:")
        if p.stamps and slot is not None: A(f"s_sub_u32 s{98+slot}, {p.limit+1}, s{sCNT}")
    def ldswait(off, target, t):
        L = A.label("lw"); Ld = A.label("lwd")
        A(f"s_mov_b32 s{sCNT}, {p.limit*40}")
        A(f"{L}:")
        A(f"ds_read_b32 v{t}, v{vZ} offset:{off}")
        A("s_waitcnt lgkmcnt(0)")
        A(f"v_cmp_le_u32 vcc, {target}, v{t}")
        A(f"s_cbranch_vccnz {Ld}")
        if p.lsleep: A(f"s_sleep {p.lsleep}")
        A(f"s_sub_u32 s{sCNT}, s{sCNT}, 1")
        A(f"s_cbranch_scc0 {L}")
        A(f"{Ld}:")
    def ldssignal(off, t, rtn=False, last=3, val="1"):
        A(f"v_mov_b32 v{t}, {val}")
        A("s_mov_b64 exec, 1")
        if rtn:
            A(f"ds_add_rtn_u32 v{t}, v{vZ}, v{t} offset:{off}")
            A("s_waitcnt lgkmcnt(0)")
            A(f"v_cmp_eq_u32 vcc, {last}, v{t}")
        else:
            A(f"ds_add_u32 v{vZ}, v{t} offset:{off}")
        A("s_mov_b64 exec, -1")
    def pubstore(data, addr, soff, extra=""):
        La, Lb = A.label("ps"), A.label("pe")
        A(f"s_cmp_eq_u32 s{sMODE}, 2"); A(f"s_cbranch_scc0 {La}")
        A(f"buffer_store_dwordx4 {data}, {addr}, {WS}, s{soff} offen {extra}")
        A(f"{Lb}:")
        return lambda: (A(f"{La}:"), A(f"buffer_store_dwordx4 {data}, {addr}, {WS}, s{soff} offen {extra} sc1"), A(f"s_branch {Lb}"))
    cold = []
    def consts():
        A(f"v_and_b32 v3, 1, v{vI}")
        A(f"v_lshlrev_b32 v3, 4, v3")
        A(f"v_mov_b32 v{vSEL}, 0xffff")
        A(f"v_lshlrev_b32 v3, v3, v{vSEL}")
        A(f"v_bfe_u32 v{vSEL}, v{vI}, 1, 2")
        for d in range(4):
            A(f"v_cmp_eq_u32 vcc, {d}, v{vSEL}")
            A(f"v_cndmask_b32 v{vMASK+d}, 0, v3, vcc")
        A(f"v_lshrrev_b32 v3, 3, v{vI}")
        A(f"s_mov_b32 s{sT}, 0x02020202")
        A(f"v_mul_lo_u32 v3, v3, s{sT}")
        A(f"v_add_u32 v3, 0x01000100, v3")
        A(f"s_mov_b32 s{sT}, 0x0c0c0c0c")
        for d in range(4):
            A(f"v_bfi_b32 v{vSEL+d}, v{vMASK+d}, v3, s{sT}")
        A(f"v_lshlrev_b32 v{vST}, 5, v{vI}")
        A(f"v_lshl_add_u32 v{vST}, v{vG}, 4, v{vST}")
    def tagsetup():
        A("s_waitcnt lgkmcnt(0)")
        A(f"s_mul_i32 s{sT}, s{sTAG}, 0x9E3779B1")
        A(f"s_add_u32 s{sT}, s{sT}, 0x7F4A7C15")
        A(f"s_or_b32 s{sT}, s{sT}, 0x01010101")
        A(f"s_xor_b32 s{sTAG}, s{sTAG}, s{sT}")
        for e in range(1, 4): A(f"s_lshr_b32 s{sTAG+e}, s{sTAG}, {8*e}")
        for e in range(4): A(f"s_mov_b32 s{sSEL+e}, {hex(0x07060500 + e)}")
        A(f"v_mov_b32 v{vTAG}, s{sTAG}")
        A(f"v_lshlrev_b32 v{vTG}, 3, v{vG}")
        A(f"v_lshrrev_b32 v{vTG}, v{vTG}, v{vTAG}")
        A(f"v_and_b32 v{vTC}, 1, v{vG}")
        A(f"v_lshl_add_u32 v{vTP}, v{vI}, 1, v{vTC}")
        A(f"v_lshlrev_b32 v{vTP}, 3, v{vTP}")
        A(f"v_lshrrev_b32 v{vTP}, v{vTP}, v{vTAG}")
        A(f"v_lshlrev_b32 v{vTC}, 3, v{vI}")
        A(f"v_lshrrev_b32 v{vTC}, v{vTC}, v{vTAG}")
    def classify():
        A(f"s_lshl_b32 s{sT}, s{sJ}, 4"); A(f"s_add_u32 s{sT}, s{sT}, s{sG}")
        A(f"s_sub_u32 s{sT}, s{sT}, {144+72}")
        A(f"s_cmp_ge_u32 s{sT}, 36"); A(f"s_cselect_b32 s{sCLS}, 3, 2")
        A(f"s_lshr_b32 s70, s{sG}, 1")
        A(f"s_and_b32 s71, s{sG}, 1")
        A(f"s_mul_i32 s{sBLK}, s70, 9"); A(f"s_add_u32 s{sBLK}, s{sBLK}, s71")
        A(f"s_cmp_eq_u32 s{sJ}, 13")
        A(f"s_cselect_b32 s{sT}, s70, s{sT}")
        A(f"s_cselect_b32 s{sCLS}, 2, s{sCLS}")
        A(f"s_lshl_b32 s70, s{sJ}, 1"); A(f"s_add_u32 s{sBLK}, s{sBLK}, s70"); A(f"s_sub_u32 s{sBLK}, s{sBLK}, 18")
        A(f"s_add_u32 s70, s70, s71")
        A(f"s_cmp_le_u32 s70, 26")
        A(f"s_cselect_b32 s{sBLK}, s{sBLK}, s{sT}")
        A(f"s_cselect_b32 s{sCLS}, 1, s{sCLS}")
        A(f"s_cmp_lt_u32 s{sJ}, 9")
        A(f"s_cselect_b32 s{sBLK}, s{sJ}, s{sBLK}")
        A(f"s_cselect_b32 s{sCLS}, 0, s{sCLS}")
    def silu(regs, tmps):
        for v, t in zip(regs, tmps): A(f"v_mul_f32 v{t}, 0xbfb8aa3b, v{v}")
        for v, t in zip(regs, tmps): A(f"v_exp_f32 v{t}, v{t}")
        for v, t in zip(regs, tmps): A(f"v_add_f32 v{t}, 1.0, v{t}")
        for v, t in zip(regs, tmps): A(f"v_rcp_f32 v{t}, v{t}")
        for v, t in zip(regs, tmps): A(f"v_mul_f32 v{v}, v{v}, v{t}")
    def mfma(d, a, b, first):
        A(f"v_mfma_f32_16x16x32_bf16 {r4(d)}, {r4(a)}, {r4(b)}, {'0' if first else r4(d)}")
    def gemv8(srs, N, tmp, t0, accs, waits=None):
        def build(n):
            sr, ln = srs(n)
            d = tmp[n % len(tmp)]
            A(f"v_mov_b32_dpp v{t0+(n&1)}, v{sr} row_newbcast:{ln} {DPP}")
            for e in range(4): A(f"v_perm_b32 v{d+e}, v{t0+(n&1)}, v{t0+(n&1)}, v{vSEL+e}")
        build(0)
        for n in range(N):
            if n + 1 < N: build(n + 1)
            if waits: waits(n)
            for acc, wb in accs: mfma(acc, tmp[n % len(tmp)], wb + 4 * n, n == 0)
    def tail_load(k):
        r, so = (R_T1, sO1) if k < 8 else (R_T2, sO2)
        A(f"buffer_load_dwordx4 {r4(T1B+4*k)}, v{vT}, {srd(r)}, s{so} offen {nt}")
        A(f"s_add_u32 s{so}, s{so}, s{sST}")
    def after_args():
        A(f"s_load_dword s{sTAG}, {sp(sWS)}, {EPOCH}")
        A(f"s_mov_b64 {sp(R_WS)}, {sp(sWS)}")

    def gdpoll():
        A(f"v_mul_u32_u24 v21, 1152, v{vI}")
        A(f"s_mul_i32 s70, s{sG}, {16*1152}"); A(f"s_add_u32 s70, s70, {OP}")
        poll([([f"buffer_load_dwordx4 v[28:31], v21, {WS}, s70 offen offset:1024 sc1"], [(28 + e, f"s{sTAG+e}") for e in range(4)], lambda: None)], 22, 0, None, sleep=3)
        ldssignal(CNT_GD, 21)

    A(f".ASMLAUNCH @launch grid=(256,1,1) block=(512,1,1) lds={LDS_BYTES}")
    A('.amdgcn_target "amdgcn-amd-amdhsa--gfx950"')
    A(".text")
    A(f".globl {KN}")
    A(".p2align 8")
    A(f".type {KN},@function")
    A(f"{KN}:")
    if p.stamps: A("s_memrealtime s[72:73]")
    if p.xfix: A("s_memrealtime s[98:99]")
    if p.stamps:
        for k in range(1, 12): A(f"s_mov_b32 s{72+2*k}, 0")
        for k in range(4): A(f"s_mov_b32 s{98+k}, 0")
    A("s_cmp_ge_u32 s2, 256")
    A("s_cbranch_scc1 L_exit")
    A("s_load_dwordx16 s[16:31], s[0:1], 0")
    A("s_load_dwordx8 s[32:39], s[0:1], 64")
    A(f"s_load_dwordx2 {sp(sOUT)}, s[0:1], 96")
    A(f"s_load_dwordx2 {sp(sWS)}, s[0:1], 112")
    A("v_lshrrev_b32 v1, 6, v0")
    A("v_and_b32 v0, 63, v0")
    A("v_readfirstlane_b32 s3, v1")
    A(f"v_lshrrev_b32 v{vG}, 4, v{vL}")
    A(f"v_and_b32 v{vI}, 15, v{vL}")
    A(f"v_mov_b32 v{vZ}, 0")
    A(f"v_mov_b32 v{vT}, 0")
    A(f"s_and_b32 s{sG}, s2, 7")
    A(f"s_lshl_b32 s{sG}, s{sG}, 1")
    A(f"s_bfe_u32 s{sT}, s2, 0x10003")
    A(f"s_add_u32 s{sG}, s{sG}, s{sT}")
    A(f"s_lshr_b32 s{sJ}, s2, 4")
    A(f"s_mov_b32 s{R_WS+2}, {WSREC}")
    A(f"s_mov_b32 s{R_WS+3}, 0x20000")
    WB = 40
    SB = 104
    G1 = 120
    A("s_cmp_lg_u32 s3, 0"); A("s_cbranch_scc1 L_s1")
    if p.prio: A(f"s_setprio {p.prio}")
    A(f"s_lshr_b32 s70, s{sG}, 1")
    A(f"s_and_b32 s71, s{sG}, 1"); A(f"s_mul_i32 s71, s71, 9"); A(f"s_add_u32 s71, s71, s{sJ}")
    A(f"v_min_u32 v3, 8, v{vI}")
    A(f"v_lshl_add_u32 v3, v3, 3, v{vG}")
    A(f"s_mul_i32 s{sT}, s70, 72")
    A(f"v_add_lshl_u32 v17, v3, s{sT}, 1")
    A(f"s_mul_i32 s{sT}, s70, {72*6912}")
    A(f"s_lshl_b32 s{sO1}, s71, 7")
    A(f"s_add_u32 s{sT}, s{sT}, s{sO1}")
    A(f"v_lshrrev_b32 v3, 3, v{vI}")
    A(f"v_lshl_add_u32 v3, v3, 2, v{vG}")
    A(f"v_mul_u32_u24 v3, 6912, v3")
    A(f"v_and_b32 v14, 7, v{vI}")
    A(f"v_lshl_add_u32 v14, v14, 4, v3")
    A(f"s_mov_b32 s{sO2}, 0")
    A(f"s_cmp_ge_u32 s{sJ}, 9")
    A("s_waitcnt lgkmcnt(0)")
    A("s_cbranch_scc1 L_c_bar0")
    set_srd(R_A, sT, sWM, 72 * 6912)
    A(f"global_load_short_d16_hi v20, v17, {sp(sC)}")
    A(f"global_load_short_d16_hi v21, v17, {sp(sC)} offset:8")
    for n in range(9):
        A(f"buffer_load_dwordx4 {r4(WB+4*n)}, v14, {srd(R_A)}, s{sO2} offen {nt}")
        if n < 8: A(f"s_add_u32 s{sO2}, s{sO2}, {8*6912}")
    A("L_c_bar0:")
    after_args()
    A("s_barrier")
    A("s_branch L_c_post")
    A("L_s1:")
    A("s_cmp_ge_u32 s3, 3"); A("s_cbranch_scc1 L_s3")
    if p.prio: A(f"s_setprio {p.prio}")
    A(f"v_lshlrev_b32 v17, 3, v{vL}")
    A(f"v_lshlrev_b32 v18, 3, v{vI}")
    A(f"v_lshl_add_u32 v3, v{vI}, 2, v{vG}")
    A(f"s_lshl_b32 s{sT}, s{sJ}, 6")
    A(f"v_add_lshl_u32 v3, v3, s{sT}, 1")
    A(f"s_lshl_b32 s{sT}, s{sJ}, 19")
    A(f"s_lshl_b32 s{sO1}, s{sG}, 9")
    A(f"s_add_u32 s{sT}, s{sT}, s{sO1}")
    A(f"s_lshl_b32 s{sO1}, s3, 8")
    A(f"s_add_u32 s{sT}, s{sT}, s{sO1}")
    A(f"s_sub_u32 s{sT}, s{sT}, 256")
    A(f"v_lshlrev_b32 v14, 13, v{vG}")
    A(f"v_lshl_add_u32 v14, v{vI}, 4, v14")
    A(f"s_mov_b32 s{sO2}, 0")
    A(f"s_cmp_ge_u32 s{sJ}, 9")
    A("s_waitcnt lgkmcnt(0)")
    A("s_cbranch_scc1 L_c_bar1")
    set_srd(R_A, sT, sWQ, 64 * 8192)
    A(f"global_load_dwordx2 v[20:21], v17, {sp(sX)}")
    A(f"global_load_dwordx2 v[22:23], v17, {sp(sX)} offset:512")
    A(f"global_load_dwordx2 v[24:25], v18, {sp(sX)} offset:1024")
    A(f"global_load_short_d16_hi v26, v3, {sp(sX)}")
    for n in range(16):
        A(f"buffer_load_dwordx4 {r4(WB+4*n)}, v14, {srd(R_A)}, s{sO2} offen {nt}")
        if n < 15: A(f"s_add_u32 s{sO2}, s{sO2}, {4*8192}")
    A("L_c_bar1:")
    after_args()
    A("s_barrier")
    A("s_branch L_c_post")
    A("L_s3:")
    A("s_cmp_lg_u32 s3, 3"); A("s_cbranch_scc1 L_main")
    for e in range(4): A(f"v_mov_b32 v{20+e}, 0")
    A(f"v_lshlrev_b32 v3, 4, v{vI}")
    A(f"ds_write_b128 v3, v[20:23]")
    if p.cpf:
        A("s_getpc_b64 s[70:71]")
        A("L_pc:")
        A("s_bfe_u32 s69, s2, 0x20003"); A("s_min_u32 s69, s69, 2"); A("s_lshl_b32 s69, s69, 13")
        A(f"v_lshl_add_u32 v3, v{vL}, 7, s69")
        A(f"v_min_u32 v3, L_exit-L_pc, v3")
        A("global_load_dword v239, v3, s[70:71]")
    A("s_waitcnt lgkmcnt(0)")
    after_args()
    A("s_barrier")
    A("s_branch L_c_post")

    KB, VB, OA = 40, 104, 240
    vK, vV, QA, QB = 14, 15, 20, 24
    A("L_main:")
    A(f"s_sub_u32 s{sW}, s3, 4")
    A(f"s_lshl_b32 s{sT}, s{sG}, 23")
    A(f"s_lshl_b32 s70, s{sJ}, 16")
    A(f"s_add_u32 s{sT}, s{sT}, s70")
    A(f"s_add_u32 s{sT}, s{sT}, 7340032")
    A(f"s_lshl_b32 s70, s{sW}, 10")
    A(f"v_lshlrev_b32 v{vK}, 6, v{vI}")
    A(f"v_lshl_add_u32 v{vK}, v{vG}, 4, v{vK}")
    A(f"v_add_u32 v{vK}, s70, v{vK}")
    A(f"v_lshl_add_u32 v{vV}, v{vL}, 4, s70")
    A(f"s_mul_i32 s{sROT}, s2, {p.rot}"); A(f"s_add_u32 s{sROT}, s{sROT}, s{sJ}")
    A(f"s_lshl_b32 s{sROT}, s{sROT}, 12"); A(f"s_and_b32 s{sROT}, s{sROT}, 0xffff")
    A("s_waitcnt lgkmcnt(0)")
    set_srd(R_A, sT, sK, 65536)
    set_srd(R_B, sT, sV, 65536)
    def kvload(n):
        if n < 16: A(f"buffer_load_dwordx4 {r4(KB+4*n)}, v{vK}, {srd(R_A)}, s{sROT} offen {nt}")
        else: A(f"buffer_load_dwordx4 {r4(VB+4*(n-16))}, v{vV}, {srd(R_B)}, s{sROT} offen {nt}")
        A(f"s_add_u32 s{sROT}, s{sROT}, 4096"); A(f"s_and_b32 s{sROT}, s{sROT}, 0xffff")
    def tail_addr(stride, half):
        A(f"v_and_b32 v3, 7, v{vI}")
        A(f"v_lshlrev_b32 v3, 4, v3")
        A(f"v_lshrrev_b32 v18, 3, v{vI}")
        A(f"v_mad_u32_u24 v{vT}, v{vG}, {stride}, v3")
        A(f"v_mad_u32_u24 v{vT}, v18, {half}, v{vT}")
        A(f"s_mov_b32 s{sO1}, 0"); A(f"s_mov_b32 s{sO2}, 0")
    def main_setup():
        consts()
        tagsetup()
        A(f"v_and_b32 v3, 3, v{vI}")
        A(f"v_lshl_add_u32 v3, v3, 2, v{vG}")
        A(f"v_lshlrev_b32 v3, 4, v3")
        A(f"v_lshrrev_b32 v18, 3, v{vI}")
        A(f"v_lshl_add_u32 v3, v18, 8, v3")
        A(f"v_add_u32 v3, {L_Q}, v3")
        A(f"v_and_b32 v19, 4, v{vI}")
        A(f"v_cmp_eq_u32 vcc, 0, v19")
        A(f"v_mov_b32 v19, {L_ZERO}")
        A(f"v_cndmask_b32 v28, v19, v3, vcc")
        A(f"v_cndmask_b32 v29, v3, v19, vcc")
        A(f"s_lshl_b32 s70, s{sW}, 2")
        A(f"v_lshl_add_u32 v19, v18, 4, s70")
        A(f"v_lshrrev_b32 v17, 1, v{vG}")
        A(f"v_lshlrev_b32 v17, 4, v17")
        A(f"s_lshl_b32 s70, s{sG}, 4"); A(f"s_add_u32 s70, s70, s{sJ}"); A("s_mul_i32 s70, s70, 1152"); A(f"s_add_u32 s{sPUB}, s70, {OP}")
        A(f"v_and_b32 v3, 1, v{vG}")
        A(f"v_lshlrev_b32 v18, 5, v17")
        A(f"v_lshl_add_u32 v18, v3, 4, v18")
        A(f"v_lshl_add_u32 v18, v{vI}, 5, v18")
    A(f"s_cmp_lt_u32 s{sJ}, 9"); A("s_cbranch_scc1 L_main_w")
    for n in range(32):
        if n >= p.DO and n < 32 - p.XO: A(f"s_waitcnt vmcnt({p.DO-1})")
        kvload(n)
        if n == p.DO - 1:
            after_args()
            A("s_barrier")
            stamp(1)
            classify()
            main_setup()
        if n == 15: ldssignal(CNT_P, 30)
    A(f"s_mov_b64 {sp(R_T1)}, {sp(sWO)}"); A(f"s_mov_b32 s{R_T1+2}, 0"); A(f"s_mov_b32 s{R_T1+3}, 0x20000")
    A(f"s_mov_b32 s{sO1}, 0"); A(f"s_mov_b32 s{sST}, 0")
    A("s_branch L_main_j")
    A("L_main_w:")
    after_args()
    A("s_barrier")
    stamp(1)
    for n in range(p.P1): kvload(n)
    A(f"s_mov_b32 s{sCLS}, 0")
    A(f"s_lshl_b32 s{sT}, s{sG}, 2")
    A(f"s_add_u32 s{sT}, s{sT}, s{sW}")
    A(f"s_mul_i32 s{sT}, s{sT}, {64*1152}")
    A(f"s_lshl_b32 s70, s{sJ}, 7")
    A(f"s_add_u32 s{sT}, s{sT}, s70")
    set_srd(R_T1, sT, sWO, 64 * 1152)
    A(f"s_mov_b32 s{sST}, 4608"); A("s_mov_b32 s70, 1152"); A(f"s_mov_b32 s71, {32*1152}")
    tail_addr("s70", "s71")
    main_setup()
    if p.SL: ldswait(CNT_A, 1, 30)
    else: ldswait(CNT_G, 2, 30)
    stamp(10)
    seq = [("kv", n) for n in range(p.P1, 16)] + [("t", k) for k in range(8 - p.WL)] + [("kv", n) for n in range(16, 32)]
    for idx, (kind, n) in enumerate(seq):
        if idx == (p.SL or p.P2): ldswait(CNT_P, 2, 30)
        dd = p.DL if idx < p.SL else p.DW
        if idx + p.P1 >= dd and idx < len(seq) - p.XW_: A(f"s_waitcnt vmcnt({dd-1})")
        if kind == "kv": kvload(n)
        else: tail_load(n)
    A("L_main_j:")
    stamp(2)
    tl = list(range(8 - p.WL, 8))
    nt_ = [0]
    def tissue(k):
        for _ in range(k):
            if nt_[0] < len(tl): tail_load(tl[nt_[0]]); nt_[0] += 1
    tissue(p.PRE)
    for k, m in ((44, 0x22222222), (46, 0x44444444), (48, 0x88888888)):
        A(f"s_mov_b32 s{k}, {hex(m)}"); A(f"s_mov_b32 s{k+1}, {hex(m)}")
    A(f"s_mov_b32 s70, 0x3db504f3")
    A(f"s_mov_b32 s71, {hex(LOG2E)}")
    ldswait(CNT_Q, 4, 30)
    stamp(3)
    A(f"ds_read_b128 {r4(QA)}, v28")
    A(f"ds_read_b128 {r4(QB)}, v29")
    A(f"s_waitcnt vmcnt({16+nt_[0]}) lgkmcnt(1)")
    T = [KB + 4 * (8 * r + u) for r in range(2) for u in range(4)]
    for t in T: A(f"v_mfma_f32_16x16x32_bf16 {r4(t)}, {r4(t)}, {r4(QA)}, 0")
    A("s_waitcnt lgkmcnt(0)")
    for t in T: A(f"v_mfma_f32_16x16x32_bf16 {r4(t)}, {r4(t+16)}, {r4(QB)}, {r4(t)}")
    for r in range(2):
        for t in T[4*r:4*r+4]: A(f"v_mov_b32_dpp v{t}, v{t} quad_perm:[0,0,0,0] {DPP}")
        for e in range(1, 4):
            for t in T[4*r:4*r+4]: A(f"v_add_f32_dpp v{t}, v{t+e}, v{t} quad_perm:[{e},{e},{e},{e}] {DPP}")
    PR = 30
    for r in range(2): A(f"v_cndmask_b32 v{PR+r}, v{T[4*r]}, v{T[4*r+1]}, s[44:45]")
    for r in range(2): A(f"v_cndmask_b32 v{PR+r}, v{PR+r}, v{T[4*r+2]}, s[46:47]")
    for r in range(2): A(f"v_cndmask_b32 v{PR+r}, v{PR+r}, v{T[4*r+3]}, s[48:49]")
    A("v_cvt_pk_bf16_f32 v32, v30, v31")
    A("v_lshlrev_b32 v30, 16, v32"); A("v_and_b32 v31, 0xffff0000, v32")
    A("v_pk_mul_f32 v[30:31], v[30:31], s[70:71] op_sel_hi:[1,0]")
    A("v_cvt_pk_bf16_f32 v32, v30, v31")
    A("v_lshlrev_b32 v30, 16, v32"); A("v_and_b32 v31, 0xffff0000, v32")
    A("v_max_f32 v32, v30, v31")
    for ctl in ("quad_perm:[1,0,3,2]", "quad_perm:[2,3,0,1]", "row_half_mirror"):
        A(f"v_max_f32_dpp v32, v32, v32 {ctl} {DPP}")
    rowsall("v_max_f32", [32], [33])
    A("v_pk_add_f32 v[30:31], v[30:31], v[32:33] op_sel_hi:[1,0] neg_lo:[0,1] neg_hi:[0,1]")
    A(f"ds_write_b32 v19, v32 offset:{L_MAX}")
    A("v_pk_mul_f32 v[30:31], v[30:31], s[70:71] op_sel:[0,1] op_sel_hi:[1,1]")
    A("v_exp_f32 v30, v30"); A("v_exp_f32 v31, v31")
    A("v_add_f32 v33, v30, v31")
    A("v_cvt_pk_bf16_f32 v30, v30, v30"); A("v_cvt_pk_bf16_f32 v31, v31, v31")
    A(f"v_add_f32_dpp v33, v33, v33 quad_perm:[1,0,3,2] {DPP}")
    A(f"v_mov_b32_dpp v34, v30 row_half_mirror {DPP}")
    A(f"v_mov_b32_dpp v35, v31 row_half_mirror {DPP}")
    A(f"v_add_f32_dpp v33, v33, v33 quad_perm:[2,3,0,1] {DPP}")
    def pbuild(n):
        r, k = n >> 3, n & 7
        for d in range(4):
            if (k >> 2) == (d >> 1): src, q = 30 + r, k & 3
            else: src, q = 34 + r, (7 - k) & 3
            A(f"v_and_b32_dpp v{KB+4*n+d}, v{src}, v{vMASK+d} quad_perm:[{q},{q},{q},{q}] {DPP}")
    pbuild(0)
    A(f"v_add_f32_dpp v33, v33, v33 row_half_mirror {DPP}")
    pbuild(1)
    rowsall("v_add_f32", [33], [36])
    A(f"ds_write_b32 v19, v33 offset:{L_LB}")
    ldssignal(CNT_L, 36)
    A(f"s_setprio 2")
    tissue(p.MID)
    for n in range(8):
        pbuild(n + 2)
        A(f"s_waitcnt vmcnt({15-n+nt_[0]})")
        mfma(OA, KB + 4 * n, VB + 4 * n, n == 0)
    tissue(8)
    for n in range(10, 16): pbuild(n)
    stamp(4)
    A(f"s_lshl_b32 s70, s{sW}, 2")
    A(f"v_add_u32 v3, s70, v17")
    ldswait(CNT_L, 4, 36)
    A(f"ds_read_b128 v[20:23], v17 offset:{L_MAX}")
    A(f"ds_read_b128 v[24:27], v17 offset:{L_LB}")
    A(f"ds_read_b32 v36, v3 offset:{L_MAX}")
    A(f"ds_read_b32 v37, v{vZ} offset:{CNT_MODE}")
    A(f"s_lshl_b32 s70, s{sW}, 10")
    A("s_waitcnt lgkmcnt(0)")
    A(f"v_readfirstlane_b32 s{sMODE}, v37")
    A("v_max3_f32 v32, v20, v21, v22"); A("v_max_f32 v32, v32, v23")
    for v in (20, 21, 22, 23, 36): A(f"v_sub_f32 v{v}, v{v}, v32")
    for v in (20, 21, 22, 23, 36): A(f"v_mul_f32 v{v}, s71, v{v}")
    for v in (20, 21, 22, 23, 36): A(f"v_exp_f32 v{v}, v{v}")
    A("v_mul_f32 v33, v20, v24")
    for e in range(1, 4): A(f"v_fmac_f32 v33, v{20+e}, v{24+e}")
    A("v_permlane32_swap_b32 v32, v34")
    A("v_permlane32_swap_b32 v33, v35")
    tag4(32)
    A(f"v_lshlrev_b32 v20, 4, v{vL}")
    A(f"v_add_u32 v19, s70, v20")
    for n in range(8, 16):
        A(f"s_waitcnt vmcnt({15-n+nt_[0]})")
        mfma(OA, KB + 4 * n, VB + 4 * n, False)
    stamp(5)
    A(f"v_pk_mul_f32 {r2(OA)}, {r2(OA)}, v[36:37] op_sel_hi:[1,0]")
    A(f"v_pk_mul_f32 {r2(OA+2)}, {r2(OA+2)}, v[36:37] op_sel_hi:[1,0]")
    A(f"ds_write_b128 v19, {r4(OA)} offset:{L_OB}")
    ldssignal(CNT_O, 26, rtn=True)
    A("s_cbranch_vccz L_m_pub_done")
    for w in range(4): A(f"ds_read_b128 {r4(KB+4*w)}, v20 offset:{L_OB+1024*w}")
    A("s_waitcnt lgkmcnt(0)")
    sum4(KB, KB)
    tag1(KB)
    cold.append(pubstore(r4(KB), "v18", sPUB))
    A("s_mov_b64 exec, 1")
    cold.append(pubstore("v[32:35]", f"v{vZ}", sPUB, "offset:1024"))
    A("s_mov_b64 exec, -1")
    ldssignal(CNT_PUB, 26)
    A("L_m_pub_done:")
    stamp(6)
    A(f"s_cmp_lg_u32 s{sCLS}, 0"); A("s_cbranch_scc1 L_m_other")

    A(f"v_mul_u32_u24 v3, 1152, v{vG}")
    A(f"v_and_b32 v21, 3, v{vI}")
    A(f"v_mul_u32_u24 v21, 4608, v21")
    A(f"v_add_u32 v21, v21, v3")
    A(f"s_mul_i32 s70, s{sG}, {16*1152}"); A(f"s_add_u32 s48, s70, {OP}")
    A(f"v_lshl_add_u32 v3, v{vI}, 4, v3")
    A(f"s_lshl_b32 s71, s{sW}, 8"); A("s_add_u32 s44, s48, s71")
    for a in range(1, 4): A(f"s_add_u32 s{44+a}, s44, {4608*a}")
    A(f"s_mul_i32 s{sPUB}, s{sG}, 2304"); A(f"s_lshl_b32 s70, s{sJ}, 8"); A(f"s_add_u32 s{sPUB}, s{sPUB}, s70"); A(f"s_add_u32 s{sPUB}, s{sPUB}, {AP}")
    A(f"s_cmp_ge_u32 s{sW}, 2"); A("s_cselect_b64 s[70:71], -1, 0")
    b = VB; S = VB + 16
    A(f"s_mov_b32 s49, {p.limit}")
    A("L_s3:".replace("s3", "s3poll"))
    poll([([f"buffer_load_dwordx4 {r4(S)}, v21, {WS}, s48 offen offset:1024 sc1"], [(S + e, f"s{sTAG+e}") for e in range(4)], lambda: None)], 22, 0, 2)
    stamp(9)
    for a in range(4): A(f"buffer_load_dwordx4 {r4(b+4*a)}, v3, {WS}, s{44+a} offen sc1")
    A(f"v_cndmask_b32 v24, v{S}, v{S+2}, s[70:71]")
    A(f"v_cndmask_b32 v25, v{S+1}, v{S+3}, s[70:71]")
    A("v_and_b32 v24, 0xffff0000, v24")
    A(f"v_max_f32_dpp v26, v24, v24 quad_perm:[1,0,3,2] {DPP}")
    A(f"v_max_f32_dpp v26, v26, v26 quad_perm:[2,3,0,1] {DPP}")
    rowsall("v_max_f32", [26], [27])
    A("v_sub_f32 v24, v24, v26")
    A(f"v_mul_f32 v24, {hex(LOG2E)}, v24")
    A("v_exp_f32 v24, v24")
    A("v_mul_f32 v25, v24, v25")
    A(f"v_add_f32_dpp v25, v25, v25 quad_perm:[1,0,3,2] {DPP}")
    A(f"v_add_f32_dpp v25, v25, v25 quad_perm:[2,3,0,1] {DPP}")
    rowsall("v_add_f32", [25], [27])
    A("v_rcp_f32 v25, v25")
    A("v_mul_f32 v24, v24, v25")
    for a in range(4):
        A(f"s_waitcnt vmcnt({3-a})")
        if a == 0: A(f"v_xor_b32 v22, v{vTC}, v{b}")
        else: A(f"v_bitop3_b32 v22, v{b+4*a}, v{vTC}, v22 bitop3:0xbe")
        for e in range(4):
            A(f"{'v_mul_f32_dpp' if a == 0 else 'v_fmac_f32_dpp'} v{28+e}, v24, v{b+4*a+e} quad_perm:[{a},{a},{a},{a}] {DPP}")
    A("v_and_b32 v22, 0xff, v22")
    A("v_cmp_ne_u32 vcc, 0, v22")
    A("s_cbranch_vccnz L_s3retry")
    A("L_s3ok:")
    cold.append(lambda: (A("L_s3retry:"), A("s_sub_u32 s49, s49, 1"), A("s_cbranch_scc0 L_s3poll"), A("s_branch L_s3ok")))
    stamp(7)
    redscat([28])
    A(f"v_mov_b32_dpp v29, v28 row_ror:8 {DPP}")
    A("v_cvt_pk_bf16_f32 v28, v28, v29")
    gemv8(lambda n: (28, n), 8, [KB, KB + 4, KB + 8], 30, [(OA, T1B)])
    A("L_comb:")
    A(f"ds_write_b128 v19, {r4(OA)} offset:{L_WB}")
    ldssignal(CNT_W, 26, rtn=True)
    A("s_cbranch_vccz L_m_end")
    for w in range(4): A(f"ds_read_b128 {r4(KB+4*w)}, v20 offset:{L_WB+1024*w}")
    A("s_waitcnt lgkmcnt(0)")
    sum4(KB, KB)
    halfadd([KB], [KB + 4])
    A(f"s_cmp_lg_u32 s{sCLS}, 0"); A("s_cbranch_scc1 L_comb_b")
    tag1(KB)
    A("L_comb_st:")
    A("s_mov_b64 exec, 0x00ff00ff")
    A(f"buffer_store_dwordx4 {r4(KB)}, v{vST}, {WS}, s{sPUB} offen sc1")
    A("L_m_end:")
    stamp(8)
    endwave()
    A("L_comb_b:")
    for e in range(4): bf16r(KB + e, KB + e)
    tag4(KB)
    A("s_branch L_comb_st")

    A("L_m_other:")
    A("s_setprio 0")
    A(f"s_cmp_eq_u32 s{sCLS}, 1"); A("s_cbranch_scc1 L_m_m")
    A(f"s_cmp_eq_u32 s{sCLS}, 3"); A("s_cbranch_scc1 L_m_end")
    A(f"s_mul_i32 s{sT}, s{sW}, {144*6912}")
    A(f"s_lshl_b32 s70, s{sBLK}, 7")
    A(f"s_add_u32 s{sT}, s{sT}, s70")
    A(f"s_add_u32 s{sT}, s{sT}, 2304")
    set_srd(R_T1, sT, sWM, 144 * 6912)
    A("s_mov_b32 s70, 6912"); A(f"s_mov_b32 s71, {4*6912}")
    tail_addr("s70", "s71")
    A(f"s_mul_i32 s70, s{sW}, 144")
    A(f"v_lshl_add_u32 v3, v{vI}, 3, v{vG}")
    A(f"v_add_lshl_u32 v3, v3, s70, 1")
    ldswait(CNT_PUB, 1, 26)
    A(f"global_load_short_d16_hi v24, v3, {sp(sC)}")
    A(f"global_load_short_d16_hi v25, v3, {sp(sC)} offset:8")
    A(f"v_and_b32 v3, 1, v{vI}")
    A(f"v_lshl_add_u32 v3, v3, 3, v{vG}")
    A(f"v_add_lshl_u32 v3, v3, s70, 1")
    A(f"global_load_short_d16_hi v26, v3, {sp(sC)} offset:256")
    A(f"global_load_short_d16_hi v27, v3, {sp(sC)} offset:264")
    for k in range(18):
        if p.GD == 1 and k == p.N1B: ldswait(CNT_GD, 1, 28)
        if k >= p.D3B and not (p.GD and k >= p.N1B): A(f"s_waitcnt vmcnt({p.D3B-1})")
        A(f"buffer_load_dwordx4 {r4(T1B+4*k)}, v{vT}, {srd(R_T1)}, s{sO1} offen {nt}")
        A(f"s_add_u32 s{sO1}, s{sO1}, {8*6912}")
    A(f"s_lshl_b32 s{sPUB}, s{sBLK}, 8"); A(f"s_add_u32 s{sPUB}, s{sPUB}, {MB}")
    A("s_waitcnt vmcnt(18)")
    silu([24, 25, 26, 27], [28, 29, 30, 31])
    A("v_cvt_pk_bf16_f32 v24, v24, v25")
    A("v_cvt_pk_bf16_f32 v26, v26, v27")
    gemv8(lambda n: (24 if n < 16 else 26, n & 15), 18, [KB, KB + 4, KB + 8], 28, [(OA, T1B)], waits=lambda n: A(f"s_waitcnt vmcnt({17-n})"))
    A("s_nop 7")
    A("s_branch L_comb")

    A("L_c_post:")
    stamp(1)
    classify()
    consts()
    A("s_cmp_eq_u32 s3, 3"); A("s_cbranch_scc0 L_c_n3")
    if p.preread:
        A(f"s_lshl_b32 s69, s{sG}, 4"); A(f"s_add_u32 s69, s69, s{sJ}")
        A("s_lshl_b32 s70, s69, 10"); A(f"s_add_u32 s70, s70, {QP}")
        A(f"v_lshlrev_b32 v3, 7, v{vL}")
        A(f"s_cmp_eq_u32 s{sCLS}, 0"); A("s_cselect_b32 exec_lo, 0xff, 1"); A("s_mov_b32 exec_hi, 0")
        A(f"buffer_load_dword v234, v3, {WS}, s70 offen")
        A("s_lshl_b32 s70, s2, 8"); A(f"s_min_u32 s70, s70, {143*256}"); A(f"s_add_u32 s70, s70, {MA}")
        A("s_mov_b64 exec, 3")
        A(f"buffer_load_dword v235, v3, {WS}, s70 offen")
        A("s_mul_i32 s70, s69, 1152"); A(f"s_add_u32 s70, s70, {OP}")
        A("s_mov_b64 exec, 0x1ff")
        A(f"buffer_load_dword v232, v3, {WS}, s70 offen")
        A(f"s_mul_i32 s70, s{sG}, 2304"); A(f"s_lshl_b32 s71, s{sBLK}, 8"); A("s_add_u32 s70, s70, s71"); A(f"s_add_u32 s70, s70, {AP}")
        A(f"s_add_u32 s71, s71, {MB}")
        A(f"s_cmp_eq_u32 s{sCLS}, 2"); A("s_cselect_b32 s70, s71, s70")
        A(f"s_mul_i32 s71, s{sBLK}, 2304"); A(f"s_add_u32 s71, s71, {FP}")
        A(f"s_cmp_eq_u32 s{sCLS}, 1"); A("s_cselect_b32 s70, s71, s70")
        A("s_cselect_b32 exec_lo, 0x3ffff, 3")
        A(f"s_cmp_eq_u32 s{sCLS}, 3"); A(f"s_cselect_b32 s70, {AP}, s70")
        A(f"buffer_load_dword v233, v3, {WS}, s70 offen")
        A("s_mov_b64 exec, -1")
    tagsetup()
    A(f"s_getreg_b32 s{sID}, hwreg(HW_REG_XCC_ID)"); A(f"s_and_b32 s{sID}, s{sID}, 15")
    A(f"s_and_b32 s70, s{sTAG}, 0xfffffff0"); A(f"s_or_b32 s{sID}, s{sID}, s70")
    A(f"v_mov_b32 v21, s{sID}")
    A(f"s_lshl_b32 s70, s{sG}, 11"); A(f"s_lshl_b32 s71, s{sJ}, 2"); A("s_add_u32 s70, s70, s71"); A(f"s_add_u32 s70, s70, {IDS}")
    A(f"v_lshlrev_b32 v3, 7, v{vL}")
    A("s_mov_b64 exec, 0xffff")
    A(f"buffer_store_dword v21, v3, {WS}, s70 offen sc1")
    A("s_mov_b64 exec, -1")
    if p.h1:
        A(f"s_cmp_lg_u32 s{sCLS}, 0"); A("s_cbranch_scc1 L_c3_id")
        A(f"s_mul_i32 s64, s{sG}, 18"); A(f"s_add_u32 s64, s64, s{sJ}"); A("s_lshl_b32 s64, s64, 7"); A(f"s_add_u32 s64, s64, {HINT1}"); A(f"s_add_u32 s65, s64, {9*128}")
        A(f"s_and_b32 s70, s{sTAG}, 0xffff"); A("s_mul_i32 s70, s70, 0x10001"); A("s_mov_b32 s71, s70")
        A(f"s_mov_b32 s{sCNT}, {p.limit}")
        A("L_hw:")
        A(f"s_load_dwordx4 s[44:47], {sp(sWS)}, s64 glc")
        A(f"s_load_dwordx4 s[48:51], {sp(sWS)}, s65 glc")
        A("s_waitcnt lgkmcnt(0)")
        for k in range(4):
            A(f"s_cmp_eq_u64 s[{44+2*k}:{45+2*k}], s[70:71]")
            A("s_cbranch_scc0 L_hf" if k < 3 else "s_cbranch_scc1 L_hd")
        A("L_hf:")
        if p.hsleep: A(f"s_sleep {p.hsleep}")
        A(f"s_sub_u32 s{sCNT}, s{sCNT}, 1")
        A("s_cbranch_scc0 L_hw")
        A("L_hd:")
        ldssignal(CNT_H1, 21)
        stamp(2)
        A("L_c3_id:")
    A(f"s_lshl_b32 s64, s{sG}, 4"); A(f"s_add_u32 s64, s64, s{sJ}"); A("s_lshl_b32 s64, s64, 7"); A(f"s_add_u32 s64, s64, {IDS}")
    A(f"s_mov_b32 s{sCNT}, {p.limit}")
    A("L_iw:")
    A(f"s_load_dwordx16 s[44:59], {sp(sWS)}, s64 glc")
    A(f"s_mov_b32 s{sMODE}, {2 if p.fast else 1}")
    A("s_waitcnt lgkmcnt(0)")
    for k in range(16):
        A(f"s_xor_b32 s65, s{44+k}, s{sID}")
        A(f"s_cselect_b32 s{sMODE}, 1, s{sMODE}")
        A("s_cmp_ge_u32 s65, 16")
        A("s_cbranch_scc1 L_if")
    A("L_id:")
    cold.append(lambda: (A("L_if:"), A(f"s_mov_b32 s{sMODE}, 1"), A("s_sleep 4"), A(f"s_sub_u32 s{sCNT}, s{sCNT}, 1"), A("s_cbranch_scc0 L_iw"), A("s_branch L_id")))
    ldssignal(CNT_MODE, 21, val=f"s{sMODE}")
    stamp(3)
    A("s_branch L_c_s2w")
    A("L_c_n3:")
    A(f"s_cmp_lg_u32 s{sCLS}, 0"); A("s_cbranch_scc1 L_c_nw")
    A("s_cmp_lg_u32 s3, 0"); A("s_cbranch_scc1 L_c_wq")
    A(f"s_lshr_b32 s70, s{sG}, 1"); A(f"s_and_b32 s71, s{sG}, 1"); A(f"s_mul_i32 s71, s71, 9"); A(f"s_add_u32 s71, s71, s{sJ}")
    A("s_lshl_b32 s64, s71, 7"); A(f"s_and_b32 s65, s{sG}, 14"); A("s_add_u32 s64, s64, s65"); A(f"s_add_u32 s64, s64, {HINT1}")
    A(f"s_mul_i32 s70, s70, 4608"); A(f"s_lshl_b32 s71, s71, 8"); A(f"s_add_u32 s70, s70, s71"); A(f"s_add_u32 s{sPUB}, s70, {MA}")
    A(f"v_mul_u32_u24 v15, {18*128}, v{vL}")
    A("s_waitcnt vmcnt(9)")
    silu([20, 21], [22, 23])
    A("v_cvt_pk_bf16_f32 v20, v20, v21")
    for n in range(9):
        A(f"v_mov_b32_dpp v{22+(n&1)}, v20 row_newbcast:{n} {DPP}")
        for e in range(4): A(f"v_perm_b32 v{SB+4*n+e}, v{22+(n&1)}, v{22+(n&1)}, v{vSEL+e}")
    tagsetup()
    for n in range(9):
        A(f"s_waitcnt vmcnt({8-n})")
        mfma(24, SB + 4 * n, WB + 4 * n, n == 0)
    stamp(2)
    halfadd([24], [28])
    tag1(24)
    A("s_mov_b64 exec, 0x00ff00ff")
    A(f"buffer_store_dwordx4 v[24:27], v{vST}, {WS}, s{sPUB} offen sc1")
    if p.h1:
        A("s_mov_b64 exec, 0xffff")
        A(f"buffer_store_short v{vTAG}, v15, {WS}, s64 offen sc1")
    A("s_mov_b64 exec, -1")
    if p.SL: ldssignal(CNT_A, 21)
    stamp(3)
    A("s_branch L_c_s2w")
    A("L_c_nw:")
    tagsetup()
    A("s_branch L_c_s2w")
    A("L_c_wq:")
    A("s_waitcnt vmcnt(16)")
    for k in range(6):
        A(f"v_lshlrev_b32 v{28+2*k}, 16, v{20+k}")
        A(f"v_and_b32 v{29+2*k}, 0xffff0000, v{20+k}")
    A(f"v_cmp_gt_u32 vcc, 16, v{vL}")
    for k in range(8, 12): A(f"v_cndmask_b32 v{28+k}, 0, v{28+k}, vcc")
    A("v_pk_add_f32 v[20:21], v[28:29], v[30:31]")
    for k in range(2, 6): A(f"v_pk_add_f32 v[20:21], v[20:21], {r2(28+2*k)}")
    A("v_add_f32 v20, v20, v21")
    wavesum_s([20], [70])
    A(f"v_mov_b32 v20, {INV576}")
    A(f"v_mul_f32 v20, s70, v20")
    for k in range(12): A(f"v_sub_f32 v{28+k}, v{28+k}, v20")
    for k in range(8, 12): A(f"v_cndmask_b32 v{28+k}, 0, v{28+k}, vcc")
    A("v_pk_mul_f32 v[22:23], v[28:29], v[28:29]")
    for k in range(1, 6): A(f"v_pk_fma_f32 v[22:23], {r2(28+2*k)}, {r2(28+2*k)}, v[22:23]")
    A("v_add_f32 v22, v22, v23")
    wavesum_s([22], [70])
    A(f"v_mov_b32 v22, {INV576}")
    A(f"v_mul_f32 v22, s70, v22")
    bf16r(20, 20); bf16r(22, 22)
    A(f"v_add_f32 v22, {EPS}, v22")
    bf16r(22, 22)
    A("v_sqrt_f32 v22, v22")
    bf16r(22, 22)
    A("v_sub_f32 v26, v26, v20")
    bf16r(26, 26)
    A("v_rcp_f32 v23, v22")
    A("v_mul_f32 v21, v26, v23")
    A("v_fma_f32 v24, -v21, v22, v26")
    A("v_fma_f32 v21, v24, v23, v21")
    bf16r(26, 21)
    tagsetup()
    A(f"v_mul_u32_u24 v3, 4608, v{vG}")
    A(f"v_lshl_add_u32 v3, v{vI}, 4, v3")
    A(f"s_lshl_b32 s70, s{sJ}, 8"); A(f"s_add_u32 s70, s70, {MA}"); A(f"s_add_u32 s71, s70, 18432")
    A(f"s_lshl_b32 s44, s{sG}, 4"); A(f"s_add_u32 s44, s44, s{sJ}"); A(f"s_lshl_b32 s44, s44, 10")
    A(f"s_lshl_b32 s45, s3, 9"); A("s_add_u32 s44, s44, s45"); A(f"s_add_u32 s{sPUB}, s44, {QP-512}")
    if p.h1: ldswait(CNT_H1, 1, 20)
    else: A("s_waitcnt vmcnt(0)")
    stamp(2)
    poll([([f"buffer_load_dwordx4 {r4(G1+4*a)}, v3, {WS}, s{70+(a&1)} offen offset:{2304*(a>>1)} sc1" for a in range(4)],
           [(G1 + 4 * a, f"v{vTC}") for a in range(4)], lambda: (addgran(28, G1, G1 + 4), addgran(32, G1 + 8, G1 + 12)))],
         20, 0, 0, issued=(lambda: ldssignal(CNT_G, 21)) if p.h1 else None)
    if not p.h1: ldssignal(CNT_G, 21)
    stamp(3)
    redscat([28, 32])
    A("v_cvt_pk_bf16_f32 v28, v28, v32")
    A("v_and_b32 v32, 0xffff0000, v28")
    A("v_lshlrev_b32 v28, 16, v28")
    A(f"v_add_f32 v32, 1.0, v32")
    bf16r(32, 32)
    A(f"v_mul_f32 v26, v26, v32")
    bf16r(26, 26)
    A(f"v_add_f32 v26, v26, v28")
    A("v_cvt_pk_bf16_f32 v26, v26, v26")
    def bld(n):
        for d in range(4): A(f"v_and_b32_dpp v{SB+4*(n%3)+d}, v26, v{vMASK+d} row_newbcast:{n} {DPP}")
    bld(0)
    for n in range(16):
        if n < 15: bld(n + 1)
        if n == 13: A(f"ds_read_b32 v21, v{vZ} offset:{CNT_MODE}")
        mfma(28, SB + 4 * (n % 3), WB + 4 * n, n == 0)
    A("s_waitcnt lgkmcnt(0)")
    A(f"v_readfirstlane_b32 s{sMODE}, v21")
    tag1(28)
    A("s_mov_b32 exec_hi, 0")
    cold.append(pubstore("v[28:31]", f"v{vST}", sPUB))
    A("s_mov_b64 exec, -1")
    ldssignal(CNT_P, 21)
    stamp(4)
    A("L_c_s2w:")
    A(f"v_lshlrev_b32 v3, 10, v{vG}")
    A(f"v_lshl_add_u32 v3, v{vI}, 4, v3")
    A(f"s_lshl_b32 s70, s{sG}, 14"); A("s_lshl_b32 s71, s3, 8"); A("s_add_u32 s70, s70, s71"); A(f"s_add_u32 s44, s70, {QP}")
    for a in range(1, 3): A(f"s_add_u32 s{44+a}, s44, {4096*a}")
    A(f"v_lshl_add_u32 v14, v{vI}, 2, v{vG}")
    A(f"s_lshl_b32 s70, s3, 6")
    A(f"v_add_lshl_u32 v14, v14, s70, 1")
    G2 = 136
    for i in range(p.k2):
        A(f"v_and_b32 v{G2+12*i+8}, 0xff, v{vTC}")
        for e in range(1, 4): A(f"v_mov_b32 v{G2+12*i+8+e}, 0")
    ldswait(CNT_P, 2, 20)
    def s2set(b):
        return ([f"buffer_load_dwordx4 {r4(b+4*a)}, v3, {WS}, s{44+a} offen sc1" for a in range(2)] +
                ["s_mov_b64 exec, 0xffff", f"buffer_load_dwordx4 {r4(b+8)}, v3, {WS}, s46 offen sc1", "s_mov_b64 exec, -1"],
                [(b + 4 * a, f"v{vTC}") for a in range(3)], lambda: (addgran(28, b, b + 4), addgran(28, 28, b + 8)))
    poll([s2set(G2 + 12 * i) for i in range(p.k2)], 20, p.g2, 1, sleep=p.psleep)
    stamp(5)
    redscat([28])
    A(f"v_cvt_pk_bf16_f32 v20, v28, v28")
    A(f"ds_write_b16 v14, v20 offset:{L_Q}")
    ldssignal(CNT_Q, 21)
    stamp(6)
    A(f"s_cmp_eq_u32 s{sCLS}, 1"); A("s_cbranch_scc1 L_c_m")
    A("s_cmp_lg_u32 s3, 3"); A("s_cbranch_scc1 L_c_end")
    if p.GD == 1:
        A(f"s_cmp_lg_u32 s{sCLS}, 2"); A("s_cbranch_scc1 L_c_nb")
        ldswait(CNT_PUB, 1, 20)
        gdpoll()
        A("s_branch L_c_end")
        A("L_c_nb:")
    A(f"s_mov_b32 s{sBLK}, s{sG}")
    A(f"s_cmp_eq_u32 s{sJ}, 8"); A("s_cbranch_scc1 L_red")
    A(f"s_add_u32 s{sBLK}, s{sG}, 16")
    A(f"s_cmp_lg_u32 s{sJ}, 7"); A("s_cbranch_scc1 L_c_end")
    A(f"s_cmp_lt_u32 s{sG}, 2"); A("s_cbranch_scc1 L_red")
    A("L_c_end:")
    endwave()

    A("L_red:")
    A(f"v_and_b32 v14, 7, v{vI}")
    A(f"v_lshl_add_u32 v15, v14, 2, v{vG}")
    A(f"s_lshl_b32 s70, s{sBLK}, 5")
    A(f"v_add_u32 v15, s70, v15")
    A(f"v_lshlrev_b32 v18, 1, v15")
    A(f"v_lshlrev_b32 v15, 2, v15")
    A(f"v_lshrrev_b32 v3, 3, v{vL}")
    A(f"v_mul_u32_u24 v3, 2304, v3")
    A(f"v_lshl_add_u32 v3, v14, 4, v3")
    A(f"s_lshl_b32 s70, s{sBLK}, 7")
    A(f"v_add_u32 v3, s70, v3")
    A(f"s_mov_b32 s44, {AP}"); A(f"s_mov_b32 s45, {AP+18432}"); A(f"s_mov_b32 s46, {MB}"); A(f"s_mov_b32 s47, {MB+1728*4}")
    ldswait(CNT_W, 4, 20)
    stamp(7)
    A(f"global_load_short_d16_hi v24, v18, {sp(sX)}")
    A(f"global_load_short_d16_hi v25, v18, {sp(sB2)}")
    poll([([f"buffer_load_dwordx4 {r4(40+4*a)}, v3, {WS}, s{44+a} offen sc1" for a in range(2)] +
           [f"buffer_load_dword v26, v15, {WS}, s46 offen sc1", f"buffer_load_dword v27, v15, {WS}, s47 offen sc1"],
           [(40, f"v{vTC}"), (44, f"v{vTC}"), (26, f"v{vTG}"), (27, f"v{vTG}")], lambda: None)], 20, 0, 2, sleep=4)
    stamp(8)
    addgran(40, 40, 44)
    redscat([40])
    A(f"v_add_f32_dpp v40, v40, v40 row_ror:8 {DPP}")
    A("v_and_b32 v26, 0xffff0000, v26")
    A("v_and_b32 v27, 0xffff0000, v27")
    bf16r(40, 40)
    A("v_mul_f32 v40, v40, v26")
    bf16r(40, 40)
    A("v_add_f32 v24, v24, v40")
    bf16r(24, 24)
    for a in range(9): A(f"s_mov_b32 s{44+a}, {FP+18432*a}")
    def s5set(b):
        def epi():
            addgran(b, b, b + 32); sum4(28, b); sum4(32, b + 16); addgran(28, 28, 32)
        return ([f"buffer_load_dwordx4 {r4(b+4*a)}, v3, {WS}, s{44+a} offen sc1" for a in range(9)],
                [(b + 4 * a, f"v{vTC}") for a in range(9)], epi)
    poll([s5set(40 + 36 * i) for i in range(p.k5)], 20, p.g5, 3)
    stamp(9)
    redscat([28])
    A(f"v_add_f32_dpp v28, v28, v28 row_ror:8 {DPP}")
    bf16r(28, 28)
    A("v_add_f32 v28, v28, v25")
    bf16r(28, 28)
    A("v_mul_f32 v28, v28, v27")
    bf16r(28, 28)
    A("v_add_f32 v28, v28, v24")
    A("v_cvt_pk_bf16_f32 v28, v28, v28")
    if p.xfix:
        A(f"s_mov_b32 s101, {p.xfix}")
        if p.probe:
            A(f"s_cmp_eq_u32 s{sBLK}, 5"); A("s_cselect_b32 s100, s100, 0"); A("s_add_u32 s101, s101, s100")
        A("L_xf:"); A("s_memrealtime s[96:97]"); A("s_waitcnt lgkmcnt(0)"); A("s_sub_u32 s96, s96, s98"); A(f"s_cmp_lt_u32 s96, s101"); A("s_cbranch_scc1 L_xf")
    A("s_mov_b32 exec_lo, 0x00ff00ff"); A("s_mov_b32 exec_hi, 0x00ff00ff")
    A(f"global_store_short v18, v28, {sp(sOUT)}")
    A(f"s_cmp_lg_u32 s{sBLK}, 0"); A("s_cbranch_scc1 L_red_end")
    A("s_mov_b64 exec, 1")
    A(f"global_store_dword v{vZ}, v{vTAG}, {sp(sWS)} offset:{EPOCH} sc1")
    A("L_red_end:")
    stamp(10)
    endwave()

    A("L_c_m:")
    A("s_setprio 0")
    A(f"s_mul_i32 s{sT}, s3, {144*9216}")
    A(f"s_lshl_b32 s70, s{sBLK}, 7")
    A(f"s_add_u32 s{sT}, s{sT}, s70")
    set_srd(R_T1, sT, sW1, 144 * 9216)
    A("s_mov_b32 s70, 9216"); A(f"s_mov_b32 s71, {4*9216}")
    tail_addr("s70", "s71")
    if p.b3:
        A(f"s_and_b32 s70, s{sBLK}, 7"); A("s_cmp_lg_u32 s70, 3"); A("s_cbranch_scc1 L_c_m0")
        for k in range(18):
            if k == 5: ldswait(CNT_PUB, 1, 20)
            A(f"buffer_load_dwordx4 {r4(T1B+4*k)}, v{vT}, {srd(R_T1)}, s{sO1} offen {nt}")
            A(f"s_add_u32 s{sO1}, s{sO1}, {8*9216}")
        A("s_branch L_mphase")
        A("L_c_m0:")
    ldswait(CNT_PUB, 1, 20)
    for k in range(18):
        if p.GD == 1 and k == p.N1C:
            A("s_cmp_lg_u32 s3, 3"); A("s_cbranch_scc1 L_c_m1")
            gdpoll()
            A("L_c_m1:")
            ldswait(CNT_GD, 1, 20)
        if k >= p.DC and not (p.GD and k >= p.N1C): A(f"s_waitcnt vmcnt({p.DC-1})")
        A(f"buffer_load_dwordx4 {r4(T1B+4*k)}, v{vT}, {srd(R_T1)}, s{sO1} offen {nt}")
        A(f"s_add_u32 s{sO1}, s{sO1}, {8*9216}")
    A("s_branch L_mphase")
    X2B = KB
    A("L_m_m:")
    def w2srd():
        A(f"s_mul_i32 s{sT}, s{sBLK}, {64*1152}")
        A(f"s_lshl_b32 s70, s{sW}, 7")
        A(f"s_add_u32 s{sT}, s{sT}, s70")
        set_srd(R_T1, sT, sW2, 64 * 1152)
        A(f"s_add_u32 s{sT}, s{sT}, 512")
        set_srd(R_T2, sT, sW2, 64 * 1152)
    w2srd()
    A(f"s_mov_b32 s{sST}, 4608"); A("s_mov_b32 s70, 1152"); A(f"s_mov_b32 s71, {32*1152}")
    tail_addr("s70", "s71")
    ldswait(CNT_PUB, 1, 26)
    for k in range(8):
        if p.GD == 1 and k == p.N1M: ldswait(CNT_GD, 1, 26)
        if k >= p.D3 and not (p.GD and k >= p.N1M): A(f"s_waitcnt vmcnt({p.D3-1})")
        tail_load(k)
    def m_rest(lab, paced):
        for k in range(8, 16):
            if paced: A(f"s_waitcnt vmcnt({p.D3-1})")
            tail_load(k)
        A(f"s_cmp_lg_u32 s{sW}, 0"); A(f"s_cbranch_scc1 {lab}")
        A(f"s_mov_b32 s{sO1}, 1024")
        for k in range(8):
            if paced: A(f"s_waitcnt vmcnt({p.D3-1})")
            A(f"buffer_load_dwordx4 {r4(X2B+4*k)}, v{vT}, {srd(R_T1)}, s{sO1} offen {nt}")
            A(f"s_add_u32 s{sO1}, s{sO1}, s{sST}")
    if not p.ZH: m_rest("L_mphase", True)
    A("L_mphase:")
    stamp(7)
    A(f"v_lshl_add_u32 v14, v{vI}, 2, v{vG}")
    A(f"s_lshl_b32 s70, s3, 6")
    A(f"v_add_u32 v15, s70, v14")
    A(f"v_lshlrev_b32 v3, 1, v15")
    A(f"global_load_short_d16_hi v24, v3, {sp(sX)}")
    A(f"v_lshlrev_b32 v3, 1, v14")
    A(f"global_load_short_d16_hi v25, v3, {sp(sX)} offset:1024")
    A(f"s_lshl_b32 s70, s{sBLK}, 7")
    A(f"v_add_u32 v3, s70, v3")
    A(f"global_load_short_d16_hi v23, v3, {sp(sB1)}")
    A(f"v_lshlrev_b32 v15, 2, v15")
    A(f"v_lshlrev_b32 v22, 2, v14")
    A(f"v_mul_u32_u24 v3, 2304, v{vG}")
    A(f"v_lshl_add_u32 v3, v{vI}, 4, v3")
    A(f"s_lshl_b32 s70, s3, 8"); A(f"s_add_u32 s44, s70, {AP}")
    for a in range(1, 4): A(f"s_add_u32 s{44+a}, s44, {9216*a}")
    A(f"s_mov_b32 s48, {MB}"); A(f"s_mov_b32 s49, {MB+4608}")
    for a in range(4): A(f"s_mov_b32 s{18+a}, {AP+2048+9216*a}")
    A(f"s_mov_b32 s50, {MB+2048}"); A(f"s_mov_b32 s51, {MB+2048+2304}"); A(f"s_mov_b32 s22, {MB+2048+4608}")
    A(f"v_lshlrev_b32 v18, 4, v{vL}")
    A(f"v_lshlrev_b32 v19, 2, v{vL}")
    A(f"s_mul_i32 s70, s3, 144")
    A(f"v_lshl_add_u32 v20, v{vI}, 3, v{vG}")
    A(f"v_add_lshl_u32 v20, v20, s70, 2")
    A(f"v_and_b32 v17, 1, v{vI}")
    A(f"v_lshl_add_u32 v17, v17, 3, v{vG}")
    A(f"s_add_u32 s70, s70, 128")
    A(f"v_add_lshl_u32 v17, v17, s70, 2")
    for k, off in enumerate((L_X2, L_AA, L_SS)):
        A(f"v_add_u32 v{72+2*k}, {off}, v20")
        A(f"v_add_u32 v{73+2*k}, {off}, v17")
    A(f"v_lshrrev_b32 v21, 1, v{vG}")
    A(f"s_lshl_b32 s70, s3, 1")
    A(f"v_add_lshl_u32 v21, v21, s70, 8")
    A(f"v_and_b32 v17, 7, v{vI}")
    A(f"v_lshl_add_u32 v21, v17, 5, v21")
    A(f"v_and_b32 v17, 1, v{vG}")
    A(f"v_lshl_add_u32 v21, v17, 4, v21")
    A(f"s_mul_i32 s{sPUB}, s{sBLK}, 2304"); A("s_lshl_b32 s70, s3, 8"); A(f"s_add_u32 s{sPUB}, s{sPUB}, s70"); A(f"s_add_u32 s{sPUB}, s{sPUB}, {FP-1024}")
    A(f"s_waitcnt vmcnt({p.XW})")
    A("s_barrier")
    stamp(11)
    def blockstep(items):
        if len(items) > 1:
            for G, ga, xr in items: sum4(G, G)
        redscat([G for G, _, _ in items])
        for G, ga, xr in items:
            A(f"v_and_b32 v{ga+2}, 0xffff0000, v{ga+2}")
            A(f"v_cvt_pk_bf16_f32 v{G}, v{G}, v{G}")
            A(f"v_and_b32 v{ga}, 0xffff0000, v{ga}")
            A(f"v_lshlrev_b32 v{G}, 16, v{G}")
            A(f"v_add_f32 v{ga+2}, 1.0, v{ga+2}")
            A(f"v_mul_f32 v{G}, v{G}, v{ga}")
            A(f"v_cvt_pk_bf16_f32 v{G}, v{G}, v{ga+2}")
            A(f"v_and_b32 v{ga+2}, 0xffff0000, v{G}")
            A(f"v_lshlrev_b32 v{G}, 16, v{G}")
            A(f"v_add_f32 v{G}, v{G}, v{xr}")
            bf16r(G, G)
            A(f"v_and_b32 v{ga+1}, 0xffff0000, v{ga+1}")
    def s4set2(b, c): return s4set(b, c)
    def s4set(b, two, dst=None):
        loads = [f"buffer_load_dwordx4 {r4(b+4*a)}, v3, {WS}, s{44+a} offen sc1" for a in range(4)]
        loads += [f"buffer_load_dword v{b+16}, v15, {WS}, s48 offen sc1",
                  f"buffer_load_dword v{b+17}, v15, {WS}, s48 offen offset:2304 sc1",
                  f"buffer_load_dword v{b+18}, v15, {WS}, s49 offen sc1"]
        checks = [(b + 4 * a, f"v{vTC}") for a in range(4)] + [(b + 16 + e, f"v{vTG}") for e in range(3)]
        if two:
            c = two
            loads += [f"buffer_load_dwordx4 {r4(c+4*a)}, v3, {WS}, s{18+a} offen sc1" for a in range(4)]
            loads += [f"buffer_load_dword v{c+16}, v22, {WS}, s50 offen sc1",
                      f"buffer_load_dword v{c+17}, v22, {WS}, s51 offen sc1",
                      f"buffer_load_dword v{c+18}, v22, {WS}, s22 offen sc1"]
            checks += [(c + 4 * a, f"v{vTC}") for a in range(4)] + [(c + 16 + e, f"v{vTG}") for e in range(3)]
        def epi():
            if dst is not None and dst != b:
                sum4(dst, b)
                for e in range(3): A(f"v_mov_b32 v{dst+16+e}, v{b+16+e}")
            elif dst is not None: sum4(b, b)
        return loads, checks, epi
    GB = VB
    GD_ = GB + 40 if p.k4 > 1 else GB
    def zh(lab):
        if p.ZH:
            for k in range(8, 16): tail_load(k)
    A("s_cmp_ge_u32 s3, 4"); A("s_cbranch_scc1 L_mpm")
    poll([s4set(GB + 20 * i, False, GD_) for i in range(p.k4)], 26, p.g4, 2)
    stamp(8)
    A("L_mpb:")
    blockstep([(GD_, GD_ + 16, 24)])
    A("L_mp1:")
    def mp0():
        A("L_mpm:")
        if p.ZH: w2srd()
        A("s_cmp_eq_u32 s3, 5"); A("s_cbranch_scc1 L_mp0")
        poll([s4set(GB + 20 * i, False, GD_) for i in range(p.k4)], 26, p.g4, 2)
        stamp(8)
        zh("L_zh1")
        A("s_branch L_mpb")
        A("L_mp0:")
        G5 = GD_ if p.k4 == 1 else 72 + 12
        poll([s4set2(GD_, GB if p.k4 > 1 else GB + 20)], 26, 0, 2)
        stamp(8)
        c = GB if p.k4 > 1 else GB + 20
        blockstep([(GD_, GD_ + 16, 24), (c, c + 16, 25)])
        A(f"ds_write_b32 v22, v{c} offset:{L_X2+2048}")
        A(f"ds_write_b32 v22, v{c+18} offset:{L_AA+2048}")
        A(f"ds_write_b32 v22, v{c+17} offset:{L_SS+2048}")
        A("s_branch L_mp1")
    A(f"ds_write_b32 v15, v{GD_} offset:{L_X2}")
    A(f"ds_write_b32 v15, v{GD_+18} offset:{L_AA}")
    A(f"ds_write_b32 v15, v{GD_+17} offset:{L_SS}")
    A("s_cmp_ge_u32 s3, 4")
    A("s_waitcnt lgkmcnt(0)")
    A("s_barrier")
    A("s_cbranch_scc1 L_mw2")
    XR, AR, SR_ = 40, 50, 60
    OX, OA_, OS = 84, 88, 92
    for base, off in ((XR, L_X2), (AR, L_AA), (SR_, L_SS)):
        A(f"ds_read_b128 {r4(base)}, v18 offset:{off}")
        A(f"ds_read_b128 {r4(base+4)}, v18 offset:{off+1024}")
        A(f"ds_read_b32 v{base+8}, v19 offset:{off+2048}")
        A(f"ds_read_b32 v{base+9}, v{vZ} offset:{off}")
    A(f"v_mov_b32 v81, {INV576}")
    A("s_waitcnt lgkmcnt(8)")
    def lnstats(first):
        X = XR
        for k in range(4): A(f"v_pk_add_f32 {r2(X+2*k)}, {r2(X+2*k)}, {r2(X+8)} op_sel:[0,1] op_sel_hi:[1,1] neg_lo:[0,1] neg_hi:[0,1]")
        if first:
            for k, d in enumerate((OX, OA_, OS)):
                A(f"ds_read2_b32 {r2(d)}, v{72+2*k} offset0:0 offset1:4")
                A(f"ds_read2_b32 {r2(d+2)}, v{73+2*k} offset0:0 offset1:4")
        A(f"v_sub_f32 v80, v{X+8}, v{X+9}")
        A(f"v_pk_add_f32 v[96:97], {r2(X)}, {r2(X+2)}")
        A(f"v_pk_mul_f32 v[98:99], {r2(X)}, {r2(X)}")
        A(f"v_pk_add_f32 v[82:83], {r2(X+4)}, {r2(X+6)}")
        A(f"v_pk_fma_f32 v[98:99], {r2(X+2)}, {r2(X+2)}, v[98:99]")
        A(f"v_pk_add_f32 v[96:97], v[96:97], v[82:83]")
        A(f"v_pk_fma_f32 v[98:99], {r2(X+4)}, {r2(X+4)}, v[98:99]")
        A(f"v_add_f32 v96, v96, v80")
        A(f"v_pk_fma_f32 v[98:99], {r2(X+6)}, {r2(X+6)}, v[98:99]")
        A(f"v_add_f32 v96, v96, v97")
        A(f"v_fmac_f32 v98, v80, v80")
        A(f"v_add_f32 v98, v98, v99")
        wavesum_s([96, 98], [70, 71])
        A(f"v_mul_f32 v96, s70, v81")
        A(f"v_mul_f32 v98, s71, v81")
        A(f"v_fma_f32 v98, -v96, v96, v98")
        A(f"v_max_f32 v98, 0, v98")
        A(f"v_add_f32 v98, {EPS}, v98")
        A(f"v_rsq_f32 v98, v98")
        A(f"v_add_f32 v97, v96, v{X+9}")
    lnstats(True)
    A("s_waitcnt lgkmcnt(0)")
    neg = "neg_lo:[0,1] neg_hi:[0,1]"
    for k in range(4): A(f"v_pk_add_f32 {r2(XR+2*k)}, {r2(XR+2*k)}, v[96:97] op_sel_hi:[1,0] {neg}")
    for b in (XR + 8, OX, OX + 2): A(f"v_pk_add_f32 {r2(b)}, {r2(b)}, v[96:97] op_sel:[0,1] op_sel_hi:[1,1] {neg}")
    for b in [AR + 2 * k for k in range(5)] + [OA_, OA_ + 2]: A(f"v_pk_mul_f32 {r2(b)}, {r2(b)}, v[98:99] op_sel_hi:[1,0]")
    for k in range(5): A(f"v_pk_fma_f32 {r2(XR+2*k)}, {r2(XR+2*k)}, {r2(AR+2*k)}, {r2(SR_+2*k)}")
    for k in range(2): A(f"v_pk_fma_f32 {r2(OX+2*k)}, {r2(OX+2*k)}, {r2(OA_+2*k)}, {r2(OS+2*k)}")
    lnstats(False)
    for b in (OX, OX + 2): A(f"v_pk_add_f32 {r2(b)}, {r2(b)}, v[96:97] op_sel:[0,1] op_sel_hi:[1,1] {neg}")
    for b in (OX, OX + 2): A(f"v_pk_mul_f32 {r2(b)}, {r2(b)}, v[98:99] op_sel_hi:[1,0]")
    A(f"v_cvt_pk_bf16_f32 v{OX}, v{OX}, v{OX+1}")
    A(f"v_cvt_pk_bf16_f32 v{OX+2}, v{OX+2}, v{OX+3}")
    stamp(9)
    gemv8(lambda n: (OX if n < 16 else OX + 2, n & 15), 18, [40, 44, 48], 52, [(OA, T1B)])
    A("s_mov_b32 exec_lo, 0x00ff00ff"); A("s_mov_b32 exec_hi, 0xff00ff00")
    A(f"ds_write_b128 v21, {r4(OA)} offset:{L_H1}")
    A("s_waitcnt lgkmcnt(0)")
    A("s_barrier")
    stamp(10)
    endwave()
    mp0()
    A("L_mw2:")
    if p.ZH:
        w2srd()
        A("s_cmp_lg_u32 s3, 5"); A("s_cbranch_scc1 L_mw2a")
        for k in range(8, 16): tail_load(k)
        A("L_mw2a:")
        A(f"s_cmp_lg_u32 s{sW}, 0"); A("s_cbranch_scc1 L_mw2b")
        A(f"s_mov_b32 s{sO1}, 1024")
        for k in range(8):
            A(f"buffer_load_dwordx4 {r4(X2B+4*k)}, v{vT}, {srd(R_T1)}, s{sO1} offen {nt}")
            A(f"s_add_u32 s{sO1}, s{sO1}, s{sST}")
        A("L_mw2b:")
    A(f"v_add_u32 v22, {L_H1}, v22")
    c0 = -2.0 * math.sqrt(2.0 / math.pi) * math.log2(math.e)
    A(f"v_mov_b32 v82, {f2h(c0)}")
    A(f"s_cmp_eq_u32 s{sW}, 0")
    A("s_barrier")
    stamp(9)
    for k in range(4): A(f"ds_read2st64_b32 {r2(72+2*k)}, v22 offset0:{2*k} offset1:{2*k+1}")
    A("s_waitcnt lgkmcnt(2)")
    A("v_pk_add_f32 v[72:73], v[72:73], v[74:75]")
    A("s_waitcnt lgkmcnt(0)")
    A("v_pk_add_f32 v[76:77], v[76:77], v[78:79]")
    A("v_pk_add_f32 v[72:73], v[72:73], v[76:77]")
    A("v_add_f32 v80, v72, v73")
    bf16r(80, 80)
    A("v_add_f32 v80, v80, v23")
    bf16r(80, 80)
    A("v_mul_f32 v81, v80, v80")
    A(f"v_fmac_f32 v82, {f2h(c0*0.044715)}, v81")
    A("v_mul_f32 v81, v82, v80")
    A("v_exp_f32 v81, v81")
    A("v_add_f32 v81, 1.0, v81")
    A("v_rcp_f32 v81, v81")
    A("v_mul_f32 v80, v80, v81")
    A(f"v_mov_b32_dpp v81, v80 row_ror:8 {DPP}")
    A("v_cvt_pk_bf16_f32 v80, v80, v81")
    if p.ZH: A("s_waitcnt vmcnt(0)")
    OB, OC = 232, 236
    A("s_cbranch_scc1 L_w2_0")
    gemv8(lambda n: (80, n), 8, [84, 88, 92], 82, [(OA, T1B), (OB, T2B)])
    halfadd([OA, OB], [84, 88])
    A("L_w2_1:")
    A("s_mov_b64 exec, 0x00ff00ff")
    tag1(OA); tag1(OB)
    A(f"buffer_store_dwordx4 {r4(OA)}, v{vST}, {WS}, s{sPUB} offen sc1")
    A(f"buffer_store_dwordx4 {r4(OB)}, v{vST}, {WS}, s{sPUB} offen offset:1024 sc1")
    stamp(10)
    endwave()
    A("L_w2_0:")
    gemv8(lambda n: (80, n), 8, [84, 88, 92], 82, [(OC, X2B), (OA, T1B), (OB, T2B)])
    halfadd([OC, OA, OB], [92, 84, 88])
    tag1(OC)
    A("s_mov_b64 exec, 0x00ff00ff")
    A(f"buffer_store_dwordx4 {r4(OC)}, v{vST}, {WS}, s{sPUB} offen offset:2048 sc1")
    A("s_branch L_w2_1")
    for c in cold: c()
    A("L_exit:")
    A("s_endpgm")
    A('.section .rodata,"a"')
    A(".p2align 6")
    A(f".amdhsa_kernel {KN}")
    A(".amdhsa_next_free_vgpr 248")
    A(".amdhsa_next_free_sgpr 102")
    A(".amdhsa_accum_offset 248")
    A(".amdhsa_group_segment_fixed_size 0")
    A(".amdhsa_kernarg_size 120")
    A(".amdhsa_user_sgpr_count 2")
    A(".amdhsa_user_sgpr_kernarg_segment_ptr 1")
    A(".amdhsa_system_sgpr_workgroup_id_x 1")
    A(".amdhsa_float_denorm_mode_32 3")
    A(".end_amdhsa_kernel")
    return A.text().replace(".ASMLAUNCH @", "; @")

if __name__ == "__main__":
    kw = eval("dict(" + (sys.argv[2] if len(sys.argv) > 2 else "") + ")")
    open(sys.argv[1], "w").write(gen(**kw))
```

```python
import sys, struct, math
sys.path.insert(0, "work")
from asmlib import Asm

KN = "adaLN_cond__sliding_block_cached__mixer_channel_mlp__decode_kernel"

EPOCH = 0
MA = 0x1000
MB = 0xA000
AP = 0xD000
FP = 0x16000
QP = 0x40000
OP = 0x80000
HINT1 = 0xC8000
IDS = 0xD2000
WSREC = 0x100000
DBG = 0x100000

CNT_Q, CNT_P, CNT_L, CNT_O, CNT_W, CNT_G, CNT_H1, CNT_MODE, CNT_PUB, CNT_A, CNT_GD = 0, 4, 8, 12, 16, 20, 24, 28, 32, 36, 40
L_ZERO = 48
L_MAX = 64
L_LB = 96
L_Q = 256
L_OB = 1024
L_WB = 5120
L_X2 = 1024
L_AA = 3328
L_SS = 5632
L_H1 = 7936
LDS_BYTES = 10240

DPP = "row_mask:0xf bank_mask:0xf"
LOG2E = 0x3fb8aa3b
f2h = lambda f: hex(struct.unpack("<I", struct.pack("<f", f))[0])
INV576 = f2h(1.0 / 576)
EPS = f2h(1e-5)

class P:
    DW = 10
    DO = 6
    P1 = 0
    P2 = 4
    DL = 5
    SL = 14
    GD = 2
    N1C = 5; N1M = 4; N1B = 8
    b3 = 1
    k4 = 1; g4 = 8
    WL = 8
    BE = 0
    PRE = 3
    MID = 3
    XW_ = 2
    XO = 0
    DC = 5
    D3 = 4
    D3B = 8
    XW = 2
    ZH = 1
    stamps = 0
    preread = 0
    limit = 20000
    nt = "nt"
    prio = 1
    rot = 1
    h1 = 1
    k2 = 2; g2 = 12
    k5 = 2; g5 = 3
    psleep = 0
    hsleep = 1
    lsleep = 1
    cpf = 2
    fast = 1
    xfix = 0
    probe = None

def gen(**kw):
    p = P()
    for k, v in kw.items():
        assert hasattr(p, k), k
        setattr(p, k, v)
    A = Asm()
    nt = p.nt
    sX, sK, sV, sWQ, sWO, sW1, sB1, sW2, sB2, sC, sWM, sOUT, sWS = 16, 18, 20, 22, 24, 28, 30, 32, 34, 36, 38, 40, 42
    sG, sJ, sCLS, sBLK = 4, 5, 6, 7
    sTAG = 8
    sSEL = 12
    sID, sMODE = 26, 27
    R_A, R_B, R_T1, R_T2, R_WS = 44, 48, 52, 56, 60
    sST, sROT = 64, 65
    sO1, sO2 = 66, 67
    sCNT = 68
    sT = 69
    sW, sPUB = 96, 97
    vL, vG, vI = 0, 1, 2
    vMASK, vSEL, vTAG, vTG = 4, 8, 12, 13
    vTP, vTC, vST, vZ = 244, 245, 246, 247
    vT = 16
    T1B, T2B = 168, 200
    def r4(b): return f"v[{b}:{b+3}]"
    def r2(b): return f"v[{b}:{b+1}]"
    def srd(b): return f"s[{b}:{b+3}]"
    def sp(b): return f"s[{b}:{b+1}]"
    WS = srd(R_WS)
    def stamp(k):
        if p.stamps: A(f"s_memrealtime s[{72+2*k}:{73+2*k}]")
        if p.probe == k:
            A("s_memrealtime s[100:101]"); A("s_waitcnt lgkmcnt(0)"); A("s_sub_u32 s100, s100, s98")
    def endwave():
        if p.stamps:
            A("s_mov_b64 exec, -1")
            A("s_waitcnt lgkmcnt(0)")
            A(f"s_lshl_b32 s{sT}, s2, 3")
            A(f"s_add_u32 s{sT}, s{sT}, s3")
            A(f"s_lshl_b32 s{sT}, s{sT}, 6")
            A(f"s_add_u32 s{sT}, s{sT}, {DBG}")
            A("s_waitcnt vmcnt(0)")
            A(f"v_mov_b32 v14, s{sT}")
            A("s_mov_b64 exec, 1")
            for k in range(0, 12, 4):
                for e in range(4): A(f"v_mov_b32 v{16+e}, s{72+2*(k+e)}")
                A(f"global_store_dwordx4 v14, v[16:19], {sp(sWS)} offset:{4*k}")
            for e in range(4): A(f"v_mov_b32 v{16+e}, s{98+e}")
            A(f"global_store_dwordx4 v14, v[16:19], {sp(sWS)} offset:48")
            A("s_waitcnt vmcnt(0)")
        A("s_endpgm")
    def set_srd(r, off_s, ptr, rec):
        A(f"s_add_u32 s{r}, s{ptr}, s{off_s}")
        A(f"s_addc_u32 s{r+1}, s{ptr+1}, 0")
        A(f"s_mov_b32 s{r+2}, {rec}")
        A(f"s_mov_b32 s{r+3}, 0x20000")
    def bf16r(d, s):
        A(f"v_cvt_pk_bf16_f32 v{d}, v{s}, v{s}")
        A(f"v_lshlrev_b32 v{d}, 16, v{d}")
    def rowsall(op, vs, ts):
        for sw in ("v_permlane32_swap_b32", "v_permlane16_swap_b32"):
            for v, t in zip(vs, ts): A(f"v_mov_b32 v{t}, v{v}")
            for v, t in zip(vs, ts): A(f"{sw} v{v}, v{t}")
            for v, t in zip(vs, ts): A(f"{op} v{v}, v{v}, v{t}")
    def wavesum_s(vs, ss):
        for ctl in ("quad_perm:[1,0,3,2]", "quad_perm:[2,3,0,1]", "row_half_mirror", "row_mirror"):
            for v in vs: A(f"v_add_f32_dpp v{v}, v{v}, v{v} {ctl} {DPP}")
        for v in vs: A(f"v_add_f32_dpp v{v}, v{v}, v{v} row_bcast:15 row_mask:0xa bank_mask:0xf")
        for v in vs: A(f"v_add_f32_dpp v{v}, v{v}, v{v} row_bcast:31 row_mask:0xc bank_mask:0xf")
        for v, s in zip(vs, ss): A(f"v_readlane_b32 s{s}, v{v}, 63")
    def redscat(bs):
        for b in bs:
            A(f"v_permlane32_swap_b32 v{b}, v{b+2}")
            A(f"v_permlane32_swap_b32 v{b+1}, v{b+3}")
        for b in bs: A(f"v_pk_add_f32 {r2(b)}, {r2(b)}, {r2(b+2)}")
        for b in bs: A(f"v_permlane16_swap_b32 v{b}, v{b+1}")
        for b in bs: A(f"v_add_f32 v{b}, v{b}, v{b+1}")
    def addgran(d, a, b):
        A(f"v_pk_add_f32 {r2(d)}, {r2(a)}, {r2(b)}")
        A(f"v_pk_add_f32 {r2(d+2)}, {r2(a+2)}, {r2(b+2)}")
    def sum4(d, b):
        addgran(b, b, b + 4); addgran(b + 8, b + 8, b + 12); addgran(d, b, b + 8)
    def tag4(b):
        for e in range(4): A(f"v_perm_b32 v{b+e}, v{b+e}, v{vTAG}, s{sSEL+e}")
    def tag1(b):
        A(f"v_perm_b32 v{b}, v{b}, v{vTP}, s{sSEL}")
    def halfadd(bs, ts):
        for b, t in zip(bs, ts):
            for e in range(4): A(f"v_permlane32_swap_b32 v{b+e}, v{t+e}")
        for b, t in zip(bs, ts):
            for e in range(4): A(f"v_add_f32_dpp v{b+e}, v{t+e}, v{b+e} row_ror:8 {DPP}")
    def poll(sets, acc, gap=0, slot=None, issued=None, sleep=0):
        k = len(sets); n = sum(1 for l in sets[0][0] if l.startswith("buffer"))
        L = A.label("poll"); Ld = A.label("pd")
        oks = [A.label("ok") for _ in sets]
        A(f"s_mov_b32 s{sCNT}, {p.limit}")
        for i, (loads, _, _) in enumerate(sets):
            if i and gap: A(f"s_sleep {gap}")
            for l in loads: A(l)
        if issued: issued()
        A(f"{L}:")
        for i, (loads, checks, _) in enumerate(sets):
            A(f"s_waitcnt vmcnt({(k-1)*n})")
            for c, (r, t) in enumerate(checks):
                if c == 0: A(f"v_xor_b32 v{acc}, {t}, v{r}")
                else: A(f"v_bitop3_b32 v{acc}, v{r}, {t}, v{acc} bitop3:0xbe")
            A(f"v_and_b32 v{acc}, 0xff, v{acc}")
            A(f"v_cmp_ne_u32 vcc, 0, v{acc}")
            A(f"s_cbranch_vccz {oks[i]}")
            A(f"s_sub_u32 s{sCNT}, s{sCNT}, 1")
            A(f"s_cbranch_scc1 {oks[i]}")
            if sleep: A(f"s_sleep {sleep}")
            for l in loads: A(l)
        A(f"s_branch {L}")
        for i in reversed(range(k)):
            A(f"{oks[i]}:")
            sets[i][2]()
            if i: A(f"s_branch {Ld}")
        A(f"{Ld}:")
        if p.stamps and slot is not None: A(f"s_sub_u32 s{98+slot}, {p.limit+1}, s{sCNT}")
    def ldswait(off, target, t):
        L = A.label("lw"); Ld = A.label("lwd")
        A(f"s_mov_b32 s{sCNT}, {p.limit*40}")
        A(f"{L}:")
        A(f"ds_read_b32 v{t}, v{vZ} offset:{off}")
        A("s_waitcnt lgkmcnt(0)")
        A(f"v_cmp_le_u32 vcc, {target}, v{t}")
        A(f"s_cbranch_vccnz {Ld}")
        if p.lsleep: A(f"s_sleep {p.lsleep}")
        A(f"s_sub_u32 s{sCNT}, s{sCNT}, 1")
        A(f"s_cbranch_scc0 {L}")
        A(f"{Ld}:")
    def ldssignal(off, t, rtn=False, last=3, val="1"):
        A(f"v_mov_b32 v{t}, {val}")
        A("s_mov_b64 exec, 1")
        if rtn:
            A(f"ds_add_rtn_u32 v{t}, v{vZ}, v{t} offset:{off}")
            A("s_waitcnt lgkmcnt(0)")
            A(f"v_cmp_eq_u32 vcc, {last}, v{t}")
        else:
            A(f"ds_add_u32 v{vZ}, v{t} offset:{off}")
        A("s_mov_b64 exec, -1")
    def pubstore(data, addr, soff, extra=""):
        La, Lb = A.label("ps"), A.label("pe")
        A(f"s_cmp_eq_u32 s{sMODE}, 2"); A(f"s_cbranch_scc0 {La}")
        A(f"buffer_store_dwordx4 {data}, {addr}, {WS}, s{soff} offen {extra}")
        A(f"{Lb}:")
        return lambda: (A(f"{La}:"), A(f"buffer_store_dwordx4 {data}, {addr}, {WS}, s{soff} offen {extra} sc1"), A(f"s_branch {Lb}"))
    cold = []
    def consts():
        A(f"v_and_b32 v3, 1, v{vI}")
        A(f"v_lshlrev_b32 v3, 4, v3")
        A(f"v_mov_b32 v{vSEL}, 0xffff")
        A(f"v_lshlrev_b32 v3, v3, v{vSEL}")
        A(f"v_bfe_u32 v{vSEL}, v{vI}, 1, 2")
        for d in range(4):
            A(f"v_cmp_eq_u32 vcc, {d}, v{vSEL}")
            A(f"v_cndmask_b32 v{vMASK+d}, 0, v3, vcc")
        A(f"v_lshrrev_b32 v3, 3, v{vI}")
        A(f"s_mov_b32 s{sT}, 0x02020202")
        A(f"v_mul_lo_u32 v3, v3, s{sT}")
        A(f"v_add_u32 v3, 0x01000100, v3")
        A(f"s_mov_b32 s{sT}, 0x0c0c0c0c")
        for d in range(4):
            A(f"v_bfi_b32 v{vSEL+d}, v{vMASK+d}, v3, s{sT}")
        A(f"v_lshlrev_b32 v{vST}, 5, v{vI}")
        A(f"v_lshl_add_u32 v{vST}, v{vG}, 4, v{vST}")
    def tagsetup():
        A("s_waitcnt lgkmcnt(0)")
        A(f"s_mul_i32 s{sT}, s{sTAG}, 0x9E3779B1")
        A(f"s_add_u32 s{sT}, s{sT}, 0x7F4A7C15")
        A(f"s_or_b32 s{sT}, s{sT}, 0x01010101")
        A(f"s_xor_b32 s{sTAG}, s{sTAG}, s{sT}")
        for e in range(1, 4): A(f"s_lshr_b32 s{sTAG+e}, s{sTAG}, {8*e}")
        for e in range(4): A(f"s_mov_b32 s{sSEL+e}, {hex(0x07060500 + e)}")
        A(f"v_mov_b32 v{vTAG}, s{sTAG}")
        A(f"v_lshlrev_b32 v{vTG}, 3, v{vG}")
        A(f"v_lshrrev_b32 v{vTG}, v{vTG}, v{vTAG}")
        A(f"v_and_b32 v{vTC}, 1, v{vG}")
        A(f"v_lshl_add_u32 v{vTP}, v{vI}, 1, v{vTC}")
        A(f"v_lshlrev_b32 v{vTP}, 3, v{vTP}")
        A(f"v_lshrrev_b32 v{vTP}, v{vTP}, v{vTAG}")
        A(f"v_lshlrev_b32 v{vTC}, 3, v{vI}")
        A(f"v_lshrrev_b32 v{vTC}, v{vTC}, v{vTAG}")
    def classify():
        A(f"s_lshl_b32 s{sT}, s{sJ}, 4"); A(f"s_add_u32 s{sT}, s{sT}, s{sG}")
        A(f"s_sub_u32 s{sT}, s{sT}, {144+72}")
        A(f"s_cmp_ge_u32 s{sT}, 36"); A(f"s_cselect_b32 s{sCLS}, 3, 2")
        A(f"s_lshr_b32 s70, s{sG}, 1")
        A(f"s_and_b32 s71, s{sG}, 1")
        A(f"s_mul_i32 s{sBLK}, s70, 9"); A(f"s_add_u32 s{sBLK}, s{sBLK}, s71")
        A(f"s_cmp_eq_u32 s{sJ}, 13")
        A(f"s_cselect_b32 s{sT}, s70, s{sT}")
        A(f"s_cselect_b32 s{sCLS}, 2, s{sCLS}")
        A(f"s_lshl_b32 s70, s{sJ}, 1"); A(f"s_add_u32 s{sBLK}, s{sBLK}, s70"); A(f"s_sub_u32 s{sBLK}, s{sBLK}, 18")
        A(f"s_add_u32 s70, s70, s71")
        A(f"s_cmp_le_u32 s70, 26")
        A(f"s_cselect_b32 s{sBLK}, s{sBLK}, s{sT}")
        A(f"s_cselect_b32 s{sCLS}, 1, s{sCLS}")
        A(f"s_cmp_lt_u32 s{sJ}, 9")
        A(f"s_cselect_b32 s{sBLK}, s{sJ}, s{sBLK}")
        A(f"s_cselect_b32 s{sCLS}, 0, s{sCLS}")
    def silu(regs, tmps):
        for v, t in zip(regs, tmps): A(f"v_mul_f32 v{t}, 0xbfb8aa3b, v{v}")
        for v, t in zip(regs, tmps): A(f"v_exp_f32 v{t}, v{t}")
        for v, t in zip(regs, tmps): A(f"v_add_f32 v{t}, 1.0, v{t}")
        for v, t in zip(regs, tmps): A(f"v_rcp_f32 v{t}, v{t}")
        for v, t in zip(regs, tmps): A(f"v_mul_f32 v{v}, v{v}, v{t}")
    def mfma(d, a, b, first):
        A(f"v_mfma_f32_16x16x32_bf16 {r4(d)}, {r4(a)}, {r4(b)}, {'0' if first else r4(d)}")
    def gemv8(srs, N, tmp, t0, accs, waits=None):
        def build(n):
            sr, ln = srs(n)
            d = tmp[n % len(tmp)]
            A(f"v_mov_b32_dpp v{t0+(n&1)}, v{sr} row_newbcast:{ln} {DPP}")
            for e in range(4): A(f"v_perm_b32 v{d+e}, v{t0+(n&1)}, v{t0+(n&1)}, v{vSEL+e}")
        build(0)
        for n in range(N):
            if n + 1 < N: build(n + 1)
            if waits: waits(n)
            for acc, wb in accs: mfma(acc, tmp[n % len(tmp)], wb + 4 * n, n == 0)
    def tail_load(k):
        r, so = (R_T1, sO1) if k < 8 else (R_T2, sO2)
        A(f"buffer_load_dwordx4 {r4(T1B+4*k)}, v{vT}, {srd(r)}, s{so} offen {nt}")
        A(f"s_add_u32 s{so}, s{so}, s{sST}")
    def after_args():
        A(f"s_load_dword s{sTAG}, {sp(sWS)}, {EPOCH}")
        A(f"s_mov_b64 {sp(R_WS)}, {sp(sWS)}")

    def gdpoll():
        A(f"v_mul_u32_u24 v21, 1152, v{vI}")
        A(f"s_mul_i32 s70, s{sG}, {16*1152}"); A(f"s_add_u32 s70, s70, {OP}")
        poll([([f"buffer_load_dwordx4 v[28:31], v21, {WS}, s70 offen offset:1024 sc1"], [(28 + e, f"s{sTAG+e}") for e in range(4)], lambda: None)], 22, 0, None, sleep=3)
        ldssignal(CNT_GD, 21)

    A(f".ASMLAUNCH @launch grid=(256,1,1) block=(512,1,1) lds={LDS_BYTES}")
    A('.amdgcn_target "amdgcn-amd-amdhsa--gfx950"')
    A(".text")
    A(f".globl {KN}")
    A(".p2align 8")
    A(f".type {KN},@function")
    A(f"{KN}:")
    if p.stamps: A("s_memrealtime s[72:73]")
    if p.xfix: A("s_memrealtime s[98:99]")
    if p.stamps:
        for k in range(1, 12): A(f"s_mov_b32 s{72+2*k}, 0")
        for k in range(4): A(f"s_mov_b32 s{98+k}, 0")
    A("s_cmp_ge_u32 s2, 256")
    A("s_cbranch_scc1 L_exit")
    A("s_load_dwordx16 s[16:31], s[0:1], 0")
    A("s_load_dwordx8 s[32:39], s[0:1], 64")
    A(f"s_load_dwordx2 {sp(sOUT)}, s[0:1], 96")
    A(f"s_load_dwordx2 {sp(sWS)}, s[0:1], 112")
    A("v_lshrrev_b32 v1, 6, v0")
    A("v_and_b32 v0, 63, v0")
    A("v_readfirstlane_b32 s3, v1")
    A(f"v_lshrrev_b32 v{vG}, 4, v{vL}")
    A(f"v_and_b32 v{vI}, 15, v{vL}")
    A(f"v_mov_b32 v{vZ}, 0")
    A(f"v_mov_b32 v{vT}, 0")
    A(f"s_and_b32 s{sG}, s2, 7")
    A(f"s_lshl_b32 s{sG}, s{sG}, 1")
    A(f"s_bfe_u32 s{sT}, s2, 0x10003")
    A(f"s_add_u32 s{sG}, s{sG}, s{sT}")
    A(f"s_lshr_b32 s{sJ}, s2, 4")
    A(f"s_mov_b32 s{R_WS+2}, {WSREC}")
    A(f"s_mov_b32 s{R_WS+3}, 0x20000")
    WB = 40
    SB = 104
    G1 = 120
    A("s_cmp_lg_u32 s3, 0"); A("s_cbranch_scc1 L_s1")
    if p.prio: A(f"s_setprio {p.prio}")
    A(f"s_lshr_b32 s70, s{sG}, 1")
    A(f"s_and_b32 s71, s{sG}, 1"); A(f"s_mul_i32 s71, s71, 9"); A(f"s_add_u32 s71, s71, s{sJ}")
    A(f"v_min_u32 v3, 8, v{vI}")
    A(f"v_lshl_add_u32 v3, v3, 3, v{vG}")
    A(f"s_mul_i32 s{sT}, s70, 72")
    A(f"v_add_lshl_u32 v17, v3, s{sT}, 1")
    A(f"s_mul_i32 s{sT}, s70, {72*6912}")
    A(f"s_lshl_b32 s{sO1}, s71, 7")
    A(f"s_add_u32 s{sT}, s{sT}, s{sO1}")
    A(f"v_lshrrev_b32 v3, 3, v{vI}")
    A(f"v_lshl_add_u32 v3, v3, 2, v{vG}")
    A(f"v_mul_u32_u24 v3, 6912, v3")
    A(f"v_and_b32 v14, 7, v{vI}")
    A(f"v_lshl_add_u32 v14, v14, 4, v3")
    A(f"s_mov_b32 s{sO2}, 0")
    A(f"s_cmp_ge_u32 s{sJ}, 9")
    A("s_waitcnt lgkmcnt(0)")
    A("s_cbranch_scc1 L_c_bar0")
    set_srd(R_A, sT, sWM, 72 * 6912)
    A(f"global_load_short_d16_hi v20, v17, {sp(sC)}")
    A(f"global_load_short_d16_hi v21, v17, {sp(sC)} offset:8")
    for n in range(9):
        A(f"buffer_load_dwordx4 {r4(WB+4*n)}, v14, {srd(R_A)}, s{sO2} offen {nt}")
        if n < 8: A(f"s_add_u32 s{sO2}, s{sO2}, {8*6912}")
    A("L_c_bar0:")
    after_args()
    A("s_barrier")
    A("s_branch L_c_post")
    A("L_s1:")
    A("s_cmp_ge_u32 s3, 3"); A("s_cbranch_scc1 L_s3")
    if p.prio: A(f"s_setprio {p.prio}")
    A(f"v_lshlrev_b32 v17, 3, v{vL}")
    A(f"v_lshlrev_b32 v18, 3, v{vI}")
    A(f"v_lshl_add_u32 v3, v{vI}, 2, v{vG}")
    A(f"s_lshl_b32 s{sT}, s{sJ}, 6")
    A(f"v_add_lshl_u32 v3, v3, s{sT}, 1")
    A(f"s_lshl_b32 s{sT}, s{sJ}, 19")
    A(f"s_lshl_b32 s{sO1}, s{sG}, 9")
    A(f"s_add_u32 s{sT}, s{sT}, s{sO1}")
    A(f"s_lshl_b32 s{sO1}, s3, 8")
    A(f"s_add_u32 s{sT}, s{sT}, s{sO1}")
    A(f"s_sub_u32 s{sT}, s{sT}, 256")
    A(f"v_lshlrev_b32 v14, 13, v{vG}")
    A(f"v_lshl_add_u32 v14, v{vI}, 4, v14")
    A(f"s_mov_b32 s{sO2}, 0")
    A(f"s_cmp_ge_u32 s{sJ}, 9")
    A("s_waitcnt lgkmcnt(0)")
    A("s_cbranch_scc1 L_c_bar1")
    set_srd(R_A, sT, sWQ, 64 * 8192)
    A(f"global_load_dwordx2 v[20:21], v17, {sp(sX)}")
    A(f"global_load_dwordx2 v[22:23], v17, {sp(sX)} offset:512")
    A(f"global_load_dwordx2 v[24:25], v18, {sp(sX)} offset:1024")
    A(f"global_load_short_d16_hi v26, v3, {sp(sX)}")
    for n in range(16):
        A(f"buffer_load_dwordx4 {r4(WB+4*n)}, v14, {srd(R_A)}, s{sO2} offen {nt}")
        if n < 15: A(f"s_add_u32 s{sO2}, s{sO2}, {4*8192}")
    A("L_c_bar1:")
    after_args()
    A("s_barrier")
    A("s_branch L_c_post")
    A("L_s3:")
    A("s_cmp_lg_u32 s3, 3"); A("s_cbranch_scc1 L_main")
    for e in range(4): A(f"v_mov_b32 v{20+e}, 0")
    A(f"v_lshlrev_b32 v3, 4, v{vI}")
    A(f"ds_write_b128 v3, v[20:23]")
    if p.cpf:
        A("s_getpc_b64 s[70:71]")
        A("L_pc:")
        A("s_bfe_u32 s69, s2, 0x20003"); A("s_min_u32 s69, s69, 2"); A("s_lshl_b32 s69, s69, 13")
        A(f"v_lshl_add_u32 v3, v{vL}, 7, s69")
        A(f"v_min_u32 v3, L_exit-L_pc, v3")
        A("global_load_dword v239, v3, s[70:71]")
    A("s_waitcnt lgkmcnt(0)")
    after_args()
    A("s_barrier")
    A("s_branch L_c_post")

    KB, VB, OA = 40, 104, 240
    vK, vV, QA, QB = 14, 15, 20, 24
    A("L_main:")
    A(f"s_sub_u32 s{sW}, s3, 4")
    A(f"s_lshl_b32 s{sT}, s{sG}, 23")
    A(f"s_lshl_b32 s70, s{sJ}, 16")
    A(f"s_add_u32 s{sT}, s{sT}, s70")
    A(f"s_add_u32 s{sT}, s{sT}, 7340032")
    A(f"s_lshl_b32 s70, s{sW}, 10")
    A(f"v_lshlrev_b32 v{vK}, 6, v{vI}")
    A(f"v_lshl_add_u32 v{vK}, v{vG}, 4, v{vK}")
    A(f"v_add_u32 v{vK}, s70, v{vK}")
    A(f"v_lshl_add_u32 v{vV}, v{vL}, 4, s70")
    A(f"s_mul_i32 s{sROT}, s2, {p.rot}"); A(f"s_add_u32 s{sROT}, s{sROT}, s{sJ}")
    A(f"s_lshl_b32 s{sROT}, s{sROT}, 12"); A(f"s_and_b32 s{sROT}, s{sROT}, 0xffff")
    A("s_waitcnt lgkmcnt(0)")
    set_srd(R_A, sT, sK, 65536)
    set_srd(R_B, sT, sV, 65536)
    def kvload(n):
        if n < 16: A(f"buffer_load_dwordx4 {r4(KB+4*n)}, v{vK}, {srd(R_A)}, s{sROT} offen {nt}")
        else: A(f"buffer_load_dwordx4 {r4(VB+4*(n-16))}, v{vV}, {srd(R_B)}, s{sROT} offen {nt}")
        A(f"s_add_u32 s{sROT}, s{sROT}, 4096"); A(f"s_and_b32 s{sROT}, s{sROT}, 0xffff")
    def tail_addr(stride, half):
        A(f"v_and_b32 v3, 7, v{vI}")
        A(f"v_lshlrev_b32 v3, 4, v3")
        A(f"v_lshrrev_b32 v18, 3, v{vI}")
        A(f"v_mad_u32_u24 v{vT}, v{vG}, {stride}, v3")
        A(f"v_mad_u32_u24 v{vT}, v18, {half}, v{vT}")
        A(f"s_mov_b32 s{sO1}, 0"); A(f"s_mov_b32 s{sO2}, 0")
    def main_setup():
        consts()
        tagsetup()
        A(f"v_and_b32 v3, 3, v{vI}")
        A(f"v_lshl_add_u32 v3, v3, 2, v{vG}")
        A(f"v_lshlrev_b32 v3, 4, v3")
        A(f"v_lshrrev_b32 v18, 3, v{vI}")
        A(f"v_lshl_add_u32 v3, v18, 8, v3")
        A(f"v_add_u32 v3, {L_Q}, v3")
        A(f"v_and_b32 v19, 4, v{vI}")
        A(f"v_cmp_eq_u32 vcc, 0, v19")
        A(f"v_mov_b32 v19, {L_ZERO}")
        A(f"v_cndmask_b32 v28, v19, v3, vcc")
        A(f"v_cndmask_b32 v29, v3, v19, vcc")
        A(f"s_lshl_b32 s70, s{sW}, 2")
        A(f"v_lshl_add_u32 v19, v18, 4, s70")
        A(f"v_lshrrev_b32 v17, 1, v{vG}")
        A(f"v_lshlrev_b32 v17, 4, v17")
        A(f"s_lshl_b32 s70, s{sG}, 4"); A(f"s_add_u32 s70, s70, s{sJ}"); A("s_mul_i32 s70, s70, 1152"); A(f"s_add_u32 s{sPUB}, s70, {OP}")
        A(f"v_and_b32 v3, 1, v{vG}")
        A(f"v_lshlrev_b32 v18, 5, v17")
        A(f"v_lshl_add_u32 v18, v3, 4, v18")
        A(f"v_lshl_add_u32 v18, v{vI}, 5, v18")
    A(f"s_cmp_lt_u32 s{sJ}, 9"); A("s_cbranch_scc1 L_main_w")
    for n in range(32):
        if n >= p.DO and n < 32 - p.XO: A(f"s_waitcnt vmcnt({p.DO-1})")
        kvload(n)
        if n == p.DO - 1:
            after_args()
            A("s_barrier")
            stamp(1)
            classify()
            main_setup()
        if n == 15: ldssignal(CNT_P, 30)
    A(f"s_mov_b64 {sp(R_T1)}, {sp(sWO)}"); A(f"s_mov_b32 s{R_T1+2}, 0"); A(f"s_mov_b32 s{R_T1+3}, 0x20000")
    A(f"s_mov_b32 s{sO1}, 0"); A(f"s_mov_b32 s{sST}, 0")
    A("s_branch L_main_j")
    A("L_main_w:")
    after_args()
    A("s_barrier")
    stamp(1)
    for n in range(p.P1): kvload(n)
    A(f"s_mov_b32 s{sCLS}, 0")
    A(f"s_lshl_b32 s{sT}, s{sG}, 2")
    A(f"s_add_u32 s{sT}, s{sT}, s{sW}")
    A(f"s_mul_i32 s{sT}, s{sT}, {64*1152}")
    A(f"s_lshl_b32 s70, s{sJ}, 7")
    A(f"s_add_u32 s{sT}, s{sT}, s70")
    set_srd(R_T1, sT, sWO, 64 * 1152)
    A(f"s_mov_b32 s{sST}, 4608"); A("s_mov_b32 s70, 1152"); A(f"s_mov_b32 s71, {32*1152}")
    tail_addr("s70", "s71")
    main_setup()
    if p.SL: ldswait(CNT_A, 1, 30)
    else: ldswait(CNT_G, 2, 30)
    stamp(10)
    seq = [("kv", n) for n in range(p.P1, 16)] + [("t", k) for k in range(8 - p.WL)] + [("kv", n) for n in range(16, 32)]
    for idx, (kind, n) in enumerate(seq):
        if idx == (p.SL or p.P2): ldswait(CNT_P, 2, 30)
        dd = p.DL if idx < p.SL else p.DW
        if idx + p.P1 >= dd and idx < len(seq) - p.XW_: A(f"s_waitcnt vmcnt({dd-1})")
        if kind == "kv": kvload(n)
        else: tail_load(n)
    A("L_main_j:")
    stamp(2)
    tl = list(range(8 - p.WL, 8))
    nt_ = [0]
    def tissue(k):
        for _ in range(k):
            if nt_[0] < len(tl): tail_load(tl[nt_[0]]); nt_[0] += 1
    tissue(p.PRE)
    for k, m in ((44, 0x22222222), (46, 0x44444444), (48, 0x88888888)):
        A(f"s_mov_b32 s{k}, {hex(m)}"); A(f"s_mov_b32 s{k+1}, {hex(m)}")
    A(f"s_mov_b32 s70, 0x3db504f3")
    A(f"s_mov_b32 s71, {hex(LOG2E)}")
    ldswait(CNT_Q, 4, 30)
    stamp(3)
    A(f"ds_read_b128 {r4(QA)}, v28")
    A(f"ds_read_b128 {r4(QB)}, v29")
    A(f"s_waitcnt vmcnt({16+nt_[0]}) lgkmcnt(1)")
    T = [KB + 4 * (8 * r + u) for r in range(2) for u in range(4)]
    for t in T: A(f"v_mfma_f32_16x16x32_bf16 {r4(t)}, {r4(t)}, {r4(QA)}, 0")
    A("s_waitcnt lgkmcnt(0)")
    for t in T: A(f"v_mfma_f32_16x16x32_bf16 {r4(t)}, {r4(t+16)}, {r4(QB)}, {r4(t)}")
    for r in range(2):
        for t in T[4*r:4*r+4]: A(f"v_mov_b32_dpp v{t}, v{t} quad_perm:[0,0,0,0] {DPP}")
        for e in range(1, 4):
            for t in T[4*r:4*r+4]: A(f"v_add_f32_dpp v{t}, v{t+e}, v{t} quad_perm:[{e},{e},{e},{e}] {DPP}")
    PR = 30
    for r in range(2): A(f"v_cndmask_b32 v{PR+r}, v{T[4*r]}, v{T[4*r+1]}, s[44:45]")
    for r in range(2): A(f"v_cndmask_b32 v{PR+r}, v{PR+r}, v{T[4*r+2]}, s[46:47]")
    for r in range(2): A(f"v_cndmask_b32 v{PR+r}, v{PR+r}, v{T[4*r+3]}, s[48:49]")
    A("v_cvt_pk_bf16_f32 v32, v30, v31")
    A("v_lshlrev_b32 v30, 16, v32"); A("v_and_b32 v31, 0xffff0000, v32")
    A("v_pk_mul_f32 v[30:31], v[30:31], s[70:71] op_sel_hi:[1,0]")
    A("v_cvt_pk_bf16_f32 v32, v30, v31")
    A("v_lshlrev_b32 v30, 16, v32"); A("v_and_b32 v31, 0xffff0000, v32")
    A("v_max_f32 v32, v30, v31")
    for ctl in ("quad_perm:[1,0,3,2]", "quad_perm:[2,3,0,1]", "row_half_mirror"):
        A(f"v_max_f32_dpp v32, v32, v32 {ctl} {DPP}")
    rowsall("v_max_f32", [32], [33])
    A("v_pk_add_f32 v[30:31], v[30:31], v[32:33] op_sel_hi:[1,0] neg_lo:[0,1] neg_hi:[0,1]")
    A(f"ds_write_b32 v19, v32 offset:{L_MAX}")
    A("v_pk_mul_f32 v[30:31], v[30:31], s[70:71] op_sel:[0,1] op_sel_hi:[1,1]")
    A("v_exp_f32 v30, v30"); A("v_exp_f32 v31, v31")
    A("v_add_f32 v33, v30, v31")
    A("v_cvt_pk_bf16_f32 v30, v30, v30"); A("v_cvt_pk_bf16_f32 v31, v31, v31")
    A(f"v_add_f32_dpp v33, v33, v33 quad_perm:[1,0,3,2] {DPP}")
    A(f"v_mov_b32_dpp v34, v30 row_half_mirror {DPP}")
    A(f"v_mov_b32_dpp v35, v31 row_half_mirror {DPP}")
    A(f"v_add_f32_dpp v33, v33, v33 quad_perm:[2,3,0,1] {DPP}")
    def pbuild(n):
        r, k = n >> 3, n & 7
        for d in range(4):
            if (k >> 2) == (d >> 1): src, q = 30 + r, k & 3
            else: src, q = 34 + r, (7 - k) & 3
            A(f"v_and_b32_dpp v{KB+4*n+d}, v{src}, v{vMASK+d} quad_perm:[{q},{q},{q},{q}] {DPP}")
    pbuild(0)
    A(f"v_add_f32_dpp v33, v33, v33 row_half_mirror {DPP}")
    pbuild(1)
    rowsall("v_add_f32", [33], [36])
    A(f"ds_write_b32 v19, v33 offset:{L_LB}")
    ldssignal(CNT_L, 36)
    A(f"s_setprio 2")
    tissue(p.MID)
    for n in range(8):
        pbuild(n + 2)
        A(f"s_waitcnt vmcnt({15-n+nt_[0]})")
        mfma(OA, KB + 4 * n, VB + 4 * n, n == 0)
    tissue(8)
    for n in range(10, 16): pbuild(n)
    stamp(4)
    A(f"s_lshl_b32 s70, s{sW}, 2")
    A(f"v_add_u32 v3, s70, v17")
    ldswait(CNT_L, 4, 36)
    A(f"ds_read_b128 v[20:23], v17 offset:{L_MAX}")
    A(f"ds_read_b128 v[24:27], v17 offset:{L_LB}")
    A(f"ds_read_b32 v36, v3 offset:{L_MAX}")
    A(f"ds_read_b32 v37, v{vZ} offset:{CNT_MODE}")
    A(f"s_lshl_b32 s70, s{sW}, 10")
    A("s_waitcnt lgkmcnt(0)")
    A(f"v_readfirstlane_b32 s{sMODE}, v37")
    A("v_max3_f32 v32, v20, v21, v22"); A("v_max_f32 v32, v32, v23")
    for v in (20, 21, 22, 23, 36): A(f"v_sub_f32 v{v}, v{v}, v32")
    for v in (20, 21, 22, 23, 36): A(f"v_mul_f32 v{v}, s71, v{v}")
    for v in (20, 21, 22, 23, 36): A(f"v_exp_f32 v{v}, v{v}")
    A("v_mul_f32 v33, v20, v24")
    for e in range(1, 4): A(f"v_fmac_f32 v33, v{20+e}, v{24+e}")
    A("v_permlane32_swap_b32 v32, v34")
    A("v_permlane32_swap_b32 v33, v35")
    tag4(32)
    A(f"v_lshlrev_b32 v20, 4, v{vL}")
    A(f"v_add_u32 v19, s70, v20")
    for n in range(8, 16):
        A(f"s_waitcnt vmcnt({15-n+nt_[0]})")
        mfma(OA, KB + 4 * n, VB + 4 * n, False)
    stamp(5)
    A(f"v_pk_mul_f32 {r2(OA)}, {r2(OA)}, v[36:37] op_sel_hi:[1,0]")
    A(f"v_pk_mul_f32 {r2(OA+2)}, {r2(OA+2)}, v[36:37] op_sel_hi:[1,0]")
    A(f"ds_write_b128 v19, {r4(OA)} offset:{L_OB}")
    ldssignal(CNT_O, 26, rtn=True)
    A("s_cbranch_vccz L_m_pub_done")
    for w in range(4): A(f"ds_read_b128 {r4(KB+4*w)}, v20 offset:{L_OB+1024*w}")
    A("s_waitcnt lgkmcnt(0)")
    sum4(KB, KB)
    tag1(KB)
    cold.append(pubstore(r4(KB), "v18", sPUB))
    A("s_mov_b64 exec, 1")
    cold.append(pubstore("v[32:35]", f"v{vZ}", sPUB, "offset:1024"))
    A("s_mov_b64 exec, -1")
    ldssignal(CNT_PUB, 26)
    A("L_m_pub_done:")
    stamp(6)
    A(f"s_cmp_lg_u32 s{sCLS}, 0"); A("s_cbranch_scc1 L_m_other")

    A(f"v_mul_u32_u24 v3, 1152, v{vG}")
    A(f"v_and_b32 v21, 3, v{vI}")
    A(f"v_mul_u32_u24 v21, 4608, v21")
    A(f"v_add_u32 v21, v21, v3")
    A(f"s_mul_i32 s70, s{sG}, {16*1152}"); A(f"s_add_u32 s48, s70, {OP}")
    A(f"v_lshl_add_u32 v3, v{vI}, 4, v3")
    A(f"s_lshl_b32 s71, s{sW}, 8"); A("s_add_u32 s44, s48, s71")
    for a in range(1, 4): A(f"s_add_u32 s{44+a}, s44, {4608*a}")
    A(f"s_mul_i32 s{sPUB}, s{sG}, 2304"); A(f"s_lshl_b32 s70, s{sJ}, 8"); A(f"s_add_u32 s{sPUB}, s{sPUB}, s70"); A(f"s_add_u32 s{sPUB}, s{sPUB}, {AP}")
    A(f"s_cmp_ge_u32 s{sW}, 2"); A("s_cselect_b64 s[70:71], -1, 0")
    b = VB; S = VB + 16
    A(f"s_mov_b32 s49, {p.limit}")
    A("L_s3:".replace("s3", "s3poll"))
    poll([([f"buffer_load_dwordx4 {r4(S)}, v21, {WS}, s48 offen offset:1024 sc1"], [(S + e, f"s{sTAG+e}") for e in range(4)], lambda: None)], 22, 0, 2)
    stamp(9)
    for a in range(4): A(f"buffer_load_dwordx4 {r4(b+4*a)}, v3, {WS}, s{44+a} offen sc1")
    A(f"v_cndmask_b32 v24, v{S}, v{S+2}, s[70:71]")
    A(f"v_cndmask_b32 v25, v{S+1}, v{S+3}, s[70:71]")
    A("v_and_b32 v24, 0xffff0000, v24")
    A(f"v_max_f32_dpp v26, v24, v24 quad_perm:[1,0,3,2] {DPP}")
    A(f"v_max_f32_dpp v26, v26, v26 quad_perm:[2,3,0,1] {DPP}")
    rowsall("v_max_f32", [26], [27])
    A("v_sub_f32 v24, v24, v26")
    A(f"v_mul_f32 v24, {hex(LOG2E)}, v24")
    A("v_exp_f32 v24, v24")
    A("v_mul_f32 v25, v24, v25")
    A(f"v_add_f32_dpp v25, v25, v25 quad_perm:[1,0,3,2] {DPP}")
    A(f"v_add_f32_dpp v25, v25, v25 quad_perm:[2,3,0,1] {DPP}")
    rowsall("v_add_f32", [25], [27])
    A("v_rcp_f32 v25, v25")
    A("v_mul_f32 v24, v24, v25")
    for a in range(4):
        A(f"s_waitcnt vmcnt({3-a})")
        if a == 0: A(f"v_xor_b32 v22, v{vTC}, v{b}")
        else: A(f"v_bitop3_b32 v22, v{b+4*a}, v{vTC}, v22 bitop3:0xbe")
        for e in range(4):
            A(f"{'v_mul_f32_dpp' if a == 0 else 'v_fmac_f32_dpp'} v{28+e}, v24, v{b+4*a+e} quad_perm:[{a},{a},{a},{a}] {DPP}")
    A("v_and_b32 v22, 0xff, v22")
    A("v_cmp_ne_u32 vcc, 0, v22")
    A("s_cbranch_vccnz L_s3retry")
    A("L_s3ok:")
    cold.append(lambda: (A("L_s3retry:"), A("s_sub_u32 s49, s49, 1"), A("s_cbranch_scc0 L_s3poll"), A("s_branch L_s3ok")))
    stamp(7)
    redscat([28])
    A(f"v_mov_b32_dpp v29, v28 row_ror:8 {DPP}")
    A("v_cvt_pk_bf16_f32 v28, v28, v29")
    gemv8(lambda n: (28, n), 8, [KB, KB + 4, KB + 8], 30, [(OA, T1B)])
    A("L_comb:")
    A(f"ds_write_b128 v19, {r4(OA)} offset:{L_WB}")
    ldssignal(CNT_W, 26, rtn=True)
    A("s_cbranch_vccz L_m_end")
    for w in range(4): A(f"ds_read_b128 {r4(KB+4*w)}, v20 offset:{L_WB+1024*w}")
    A("s_waitcnt lgkmcnt(0)")
    sum4(KB, KB)
    halfadd([KB], [KB + 4])
    A(f"s_cmp_lg_u32 s{sCLS}, 0"); A("s_cbranch_scc1 L_comb_b")
    tag1(KB)
    A("L_comb_st:")
    A("s_mov_b64 exec, 0x00ff00ff")
    A(f"buffer_store_dwordx4 {r4(KB)}, v{vST}, {WS}, s{sPUB} offen sc1")
    A("L_m_end:")
    stamp(8)
    endwave()
    A("L_comb_b:")
    for e in range(4): bf16r(KB + e, KB + e)
    tag4(KB)
    A("s_branch L_comb_st")

    A("L_m_other:")
    A("s_setprio 0")
    A(f"s_cmp_eq_u32 s{sCLS}, 1"); A("s_cbranch_scc1 L_m_m")
    A(f"s_cmp_eq_u32 s{sCLS}, 3"); A("s_cbranch_scc1 L_m_end")
    A(f"s_mul_i32 s{sT}, s{sW}, {144*6912}")
    A(f"s_lshl_b32 s70, s{sBLK}, 7")
    A(f"s_add_u32 s{sT}, s{sT}, s70")
    A(f"s_add_u32 s{sT}, s{sT}, 2304")
    set_srd(R_T1, sT, sWM, 144 * 6912)
    A("s_mov_b32 s70, 6912"); A(f"s_mov_b32 s71, {4*6912}")
    tail_addr("s70", "s71")
    A(f"s_mul_i32 s70, s{sW}, 144")
    A(f"v_lshl_add_u32 v3, v{vI}, 3, v{vG}")
    A(f"v_add_lshl_u32 v3, v3, s70, 1")
    ldswait(CNT_PUB, 1, 26)
    A(f"global_load_short_d16_hi v24, v3, {sp(sC)}")
    A(f"global_load_short_d16_hi v25, v3, {sp(sC)} offset:8")
    A(f"v_and_b32 v3, 1, v{vI}")
    A(f"v_lshl_add_u32 v3, v3, 3, v{vG}")
    A(f"v_add_lshl_u32 v3, v3, s70, 1")
    A(f"global_load_short_d16_hi v26, v3, {sp(sC)} offset:256")
    A(f"global_load_short_d16_hi v27, v3, {sp(sC)} offset:264")
    for k in range(18):
        if p.GD == 1 and k == p.N1B: ldswait(CNT_GD, 1, 28)
        if k >= p.D3B and not (p.GD and k >= p.N1B): A(f"s_waitcnt vmcnt({p.D3B-1})")
        A(f"buffer_load_dwordx4 {r4(T1B+4*k)}, v{vT}, {srd(R_T1)}, s{sO1} offen {nt}")
        A(f"s_add_u32 s{sO1}, s{sO1}, {8*6912}")
    A(f"s_lshl_b32 s{sPUB}, s{sBLK}, 8"); A(f"s_add_u32 s{sPUB}, s{sPUB}, {MB}")
    A("s_waitcnt vmcnt(18)")
    silu([24, 25, 26, 27], [28, 29, 30, 31])
    A("v_cvt_pk_bf16_f32 v24, v24, v25")
    A("v_cvt_pk_bf16_f32 v26, v26, v27")
    gemv8(lambda n: (24 if n < 16 else 26, n & 15), 18, [KB, KB + 4, KB + 8], 28, [(OA, T1B)], waits=lambda n: A(f"s_waitcnt vmcnt({17-n})"))
    A("s_nop 7")
    A("s_branch L_comb")

    A("L_c_post:")
    stamp(1)
    classify()
    consts()
    A("s_cmp_eq_u32 s3, 3"); A("s_cbranch_scc0 L_c_n3")
    if p.preread:
        A(f"s_lshl_b32 s69, s{sG}, 4"); A(f"s_add_u32 s69, s69, s{sJ}")
        A("s_lshl_b32 s70, s69, 10"); A(f"s_add_u32 s70, s70, {QP}")
        A(f"v_lshlrev_b32 v3, 7, v{vL}")
        A(f"s_cmp_eq_u32 s{sCLS}, 0"); A("s_cselect_b32 exec_lo, 0xff, 1"); A("s_mov_b32 exec_hi, 0")
        A(f"buffer_load_dword v234, v3, {WS}, s70 offen")
        A("s_lshl_b32 s70, s2, 8"); A(f"s_min_u32 s70, s70, {143*256}"); A(f"s_add_u32 s70, s70, {MA}")
        A("s_mov_b64 exec, 3")
        A(f"buffer_load_dword v235, v3, {WS}, s70 offen")
        A("s_mul_i32 s70, s69, 1152"); A(f"s_add_u32 s70, s70, {OP}")
        A("s_mov_b64 exec, 0x1ff")
        A(f"buffer_load_dword v232, v3, {WS}, s70 offen")
        A(f"s_mul_i32 s70, s{sG}, 2304"); A(f"s_lshl_b32 s71, s{sBLK}, 8"); A("s_add_u32 s70, s70, s71"); A(f"s_add_u32 s70, s70, {AP}")
        A(f"s_add_u32 s71, s71, {MB}")
        A(f"s_cmp_eq_u32 s{sCLS}, 2"); A("s_cselect_b32 s70, s71, s70")
        A(f"s_mul_i32 s71, s{sBLK}, 2304"); A(f"s_add_u32 s71, s71, {FP}")
        A(f"s_cmp_eq_u32 s{sCLS}, 1"); A("s_cselect_b32 s70, s71, s70")
        A("s_cselect_b32 exec_lo, 0x3ffff, 3")
        A(f"s_cmp_eq_u32 s{sCLS}, 3"); A(f"s_cselect_b32 s70, {AP}, s70")
        A(f"buffer_load_dword v233, v3, {WS}, s70 offen")
        A("s_mov_b64 exec, -1")
    tagsetup()
    A(f"s_getreg_b32 s{sID}, hwreg(HW_REG_XCC_ID)"); A(f"s_and_b32 s{sID}, s{sID}, 15")
    A(f"s_and_b32 s70, s{sTAG}, 0xfffffff0"); A(f"s_or_b32 s{sID}, s{sID}, s70")
    A(f"v_mov_b32 v21, s{sID}")
    A(f"s_lshl_b32 s70, s{sG}, 11"); A(f"s_lshl_b32 s71, s{sJ}, 2"); A("s_add_u32 s70, s70, s71"); A(f"s_add_u32 s70, s70, {IDS}")
    A(f"v_lshlrev_b32 v3, 7, v{vL}")
    A("s_mov_b64 exec, 0xffff")
    A(f"buffer_store_dword v21, v3, {WS}, s70 offen sc1")
    A("s_mov_b64 exec, -1")
    if p.h1:
        A(f"s_cmp_lg_u32 s{sCLS}, 0"); A("s_cbranch_scc1 L_c3_id")
        A(f"s_mul_i32 s64, s{sG}, 18"); A(f"s_add_u32 s64, s64, s{sJ}"); A("s_lshl_b32 s64, s64, 7"); A(f"s_add_u32 s64, s64, {HINT1}"); A(f"s_add_u32 s65, s64, {9*128}")
        A(f"s_and_b32 s70, s{sTAG}, 0xffff"); A("s_mul_i32 s70, s70, 0x10001"); A("s_mov_b32 s71, s70")
        A(f"s_mov_b32 s{sCNT}, {p.limit}")
        A("L_hw:")
        A(f"s_load_dwordx4 s[44:47], {sp(sWS)}, s64 glc")
        A(f"s_load_dwordx4 s[48:51], {sp(sWS)}, s65 glc")
        A("s_waitcnt lgkmcnt(0)")
        for k in range(4):
            A(f"s_cmp_eq_u64 s[{44+2*k}:{45+2*k}], s[70:71]")
            A("s_cbranch_scc0 L_hf" if k < 3 else "s_cbranch_scc1 L_hd")
        A("L_hf:")
        if p.hsleep: A(f"s_sleep {p.hsleep}")
        A(f"s_sub_u32 s{sCNT}, s{sCNT}, 1")
        A("s_cbranch_scc0 L_hw")
        A("L_hd:")
        ldssignal(CNT_H1, 21)
        stamp(2)
        A("L_c3_id:")
    A(f"s_lshl_b32 s64, s{sG}, 4"); A(f"s_add_u32 s64, s64, s{sJ}"); A("s_lshl_b32 s64, s64, 7"); A(f"s_add_u32 s64, s64, {IDS}")
    A(f"s_mov_b32 s{sCNT}, {p.limit}")
    A("L_iw:")
    A(f"s_load_dwordx16 s[44:59], {sp(sWS)}, s64 glc")
    A(f"s_mov_b32 s{sMODE}, {2 if p.fast else 1}")
    A("s_waitcnt lgkmcnt(0)")
    for k in range(16):
        A(f"s_xor_b32 s65, s{44+k}, s{sID}")
        A(f"s_cselect_b32 s{sMODE}, 1, s{sMODE}")
        A("s_cmp_ge_u32 s65, 16")
        A("s_cbranch_scc1 L_if")
    A("L_id:")
    cold.append(lambda: (A("L_if:"), A(f"s_mov_b32 s{sMODE}, 1"), A("s_sleep 4"), A(f"s_sub_u32 s{sCNT}, s{sCNT}, 1"), A("s_cbranch_scc0 L_iw"), A("s_branch L_id")))
    ldssignal(CNT_MODE, 21, val=f"s{sMODE}")
    stamp(3)
    A("s_branch L_c_s2w")
    A("L_c_n3:")
    A(f"s_cmp_lg_u32 s{sCLS}, 0"); A("s_cbranch_scc1 L_c_nw")
    A("s_cmp_lg_u32 s3, 0"); A("s_cbranch_scc1 L_c_wq")
    A(f"s_lshr_b32 s70, s{sG}, 1"); A(f"s_and_b32 s71, s{sG}, 1"); A(f"s_mul_i32 s71, s71, 9"); A(f"s_add_u32 s71, s71, s{sJ}")
    A("s_lshl_b32 s64, s71, 7"); A(f"s_and_b32 s65, s{sG}, 14"); A("s_add_u32 s64, s64, s65"); A(f"s_add_u32 s64, s64, {HINT1}")
    A(f"s_mul_i32 s70, s70, 4608"); A(f"s_lshl_b32 s71, s71, 8"); A(f"s_add_u32 s70, s70, s71"); A(f"s_add_u32 s{sPUB}, s70, {MA}")
    A(f"v_mul_u32_u24 v15, {18*128}, v{vL}")
    A("s_waitcnt vmcnt(9)")
    silu([20, 21], [22, 23])
    A("v_cvt_pk_bf16_f32 v20, v20, v21")
    for n in range(9):
        A(f"v_mov_b32_dpp v{22+(n&1)}, v20 row_newbcast:{n} {DPP}")
        for e in range(4): A(f"v_perm_b32 v{SB+4*n+e}, v{22+(n&1)}, v{22+(n&1)}, v{vSEL+e}")
    tagsetup()
    for n in range(9):
        A(f"s_waitcnt vmcnt({8-n})")
        mfma(24, SB + 4 * n, WB + 4 * n, n == 0)
    stamp(2)
    halfadd([24], [28])
    tag1(24)
    A("s_mov_b64 exec, 0x00ff00ff")
    A(f"buffer_store_dwordx4 v[24:27], v{vST}, {WS}, s{sPUB} offen sc1")
    if p.h1:
        A("s_mov_b64 exec, 0xffff")
        A(f"buffer_store_short v{vTAG}, v15, {WS}, s64 offen sc1")
    A("s_mov_b64 exec, -1")
    if p.SL: ldssignal(CNT_A, 21)
    stamp(3)
    A("s_branch L_c_s2w")
    A("L_c_nw:")
    tagsetup()
    A("s_branch L_c_s2w")
    A("L_c_wq:")
    A("s_waitcnt vmcnt(16)")
    for k in range(6):
        A(f"v_lshlrev_b32 v{28+2*k}, 16, v{20+k}")
        A(f"v_and_b32 v{29+2*k}, 0xffff0000, v{20+k}")
    A(f"v_cmp_gt_u32 vcc, 16, v{vL}")
    for k in range(8, 12): A(f"v_cndmask_b32 v{28+k}, 0, v{28+k}, vcc")
    A("v_pk_add_f32 v[20:21], v[28:29], v[30:31]")
    for k in range(2, 6): A(f"v_pk_add_f32 v[20:21], v[20:21], {r2(28+2*k)}")
    A("v_add_f32 v20, v20, v21")
    wavesum_s([20], [70])
    A(f"v_mov_b32 v20, {INV576}")
    A(f"v_mul_f32 v20, s70, v20")
    for k in range(12): A(f"v_sub_f32 v{28+k}, v{28+k}, v20")
    for k in range(8, 12): A(f"v_cndmask_b32 v{28+k}, 0, v{28+k}, vcc")
    A("v_pk_mul_f32 v[22:23], v[28:29], v[28:29]")
    for k in range(1, 6): A(f"v_pk_fma_f32 v[22:23], {r2(28+2*k)}, {r2(28+2*k)}, v[22:23]")
    A("v_add_f32 v22, v22, v23")
    wavesum_s([22], [70])
    A(f"v_mov_b32 v22, {INV576}")
    A(f"v_mul_f32 v22, s70, v22")
    bf16r(20, 20); bf16r(22, 22)
    A(f"v_add_f32 v22, {EPS}, v22")
    bf16r(22, 22)
    A("v_sqrt_f32 v22, v22")
    bf16r(22, 22)
    A("v_sub_f32 v26, v26, v20")
    bf16r(26, 26)
    A("v_rcp_f32 v23, v22")
    A("v_mul_f32 v21, v26, v23")
    A("v_fma_f32 v24, -v21, v22, v26")
    A("v_fma_f32 v21, v24, v23, v21")
    bf16r(26, 21)
    tagsetup()
    A(f"v_mul_u32_u24 v3, 4608, v{vG}")
    A(f"v_lshl_add_u32 v3, v{vI}, 4, v3")
    A(f"s_lshl_b32 s70, s{sJ}, 8"); A(f"s_add_u32 s70, s70, {MA}"); A(f"s_add_u32 s71, s70, 18432")
    A(f"s_lshl_b32 s44, s{sG}, 4"); A(f"s_add_u32 s44, s44, s{sJ}"); A(f"s_lshl_b32 s44, s44, 10")
    A(f"s_lshl_b32 s45, s3, 9"); A("s_add_u32 s44, s44, s45"); A(f"s_add_u32 s{sPUB}, s44, {QP-512}")
    if p.h1: ldswait(CNT_H1, 1, 20)
    else: A("s_waitcnt vmcnt(0)")
    stamp(2)
    poll([([f"buffer_load_dwordx4 {r4(G1+4*a)}, v3, {WS}, s{70+(a&1)} offen offset:{2304*(a>>1)} sc1" for a in range(4)],
           [(G1 + 4 * a, f"v{vTC}") for a in range(4)], lambda: (addgran(28, G1, G1 + 4), addgran(32, G1 + 8, G1 + 12)))],
         20, 0, 0, issued=(lambda: ldssignal(CNT_G, 21)) if p.h1 else None)
    if not p.h1: ldssignal(CNT_G, 21)
    stamp(3)
    redscat([28, 32])
    A("v_cvt_pk_bf16_f32 v28, v28, v32")
    A("v_and_b32 v32, 0xffff0000, v28")
    A("v_lshlrev_b32 v28, 16, v28")
    A(f"v_add_f32 v32, 1.0, v32")
    bf16r(32, 32)
    A(f"v_mul_f32 v26, v26, v32")
    bf16r(26, 26)
    A(f"v_add_f32 v26, v26, v28")
    A("v_cvt_pk_bf16_f32 v26, v26, v26")
    def bld(n):
        for d in range(4): A(f"v_and_b32_dpp v{SB+4*(n%3)+d}, v26, v{vMASK+d} row_newbcast:{n} {DPP}")
    bld(0)
    for n in range(16):
        if n < 15: bld(n + 1)
        if n == 13: A(f"ds_read_b32 v21, v{vZ} offset:{CNT_MODE}")
        mfma(28, SB + 4 * (n % 3), WB + 4 * n, n == 0)
    A("s_waitcnt lgkmcnt(0)")
    A(f"v_readfirstlane_b32 s{sMODE}, v21")
    tag1(28)
    A("s_mov_b32 exec_hi, 0")
    cold.append(pubstore("v[28:31]", f"v{vST}", sPUB))
    A("s_mov_b64 exec, -1")
    ldssignal(CNT_P, 21)
    stamp(4)
    A("L_c_s2w:")
    A(f"v_lshlrev_b32 v3, 10, v{vG}")
    A(f"v_lshl_add_u32 v3, v{vI}, 4, v3")
    A(f"s_lshl_b32 s70, s{sG}, 14"); A("s_lshl_b32 s71, s3, 8"); A("s_add_u32 s70, s70, s71"); A(f"s_add_u32 s44, s70, {QP}")
    for a in range(1, 3): A(f"s_add_u32 s{44+a}, s44, {4096*a}")
    A(f"v_lshl_add_u32 v14, v{vI}, 2, v{vG}")
    A(f"s_lshl_b32 s70, s3, 6")
    A(f"v_add_lshl_u32 v14, v14, s70, 1")
    G2 = 136
    for i in range(p.k2):
        A(f"v_and_b32 v{G2+12*i+8}, 0xff, v{vTC}")
        for e in range(1, 4): A(f"v_mov_b32 v{G2+12*i+8+e}, 0")
    ldswait(CNT_P, 2, 20)
    def s2set(b):
        return ([f"buffer_load_dwordx4 {r4(b+4*a)}, v3, {WS}, s{44+a} offen sc1" for a in range(2)] +
                ["s_mov_b64 exec, 0xffff", f"buffer_load_dwordx4 {r4(b+8)}, v3, {WS}, s46 offen sc1", "s_mov_b64 exec, -1"],
                [(b + 4 * a, f"v{vTC}") for a in range(3)], lambda: (addgran(28, b, b + 4), addgran(28, 28, b + 8)))
    poll([s2set(G2 + 12 * i) for i in range(p.k2)], 20, p.g2, 1, sleep=p.psleep)
    stamp(5)
    redscat([28])
    A(f"v_cvt_pk_bf16_f32 v20, v28, v28")
    A(f"ds_write_b16 v14, v20 offset:{L_Q}")
    ldssignal(CNT_Q, 21)
    stamp(6)
    A(f"s_cmp_eq_u32 s{sCLS}, 1"); A("s_cbranch_scc1 L_c_m")
    A("s_cmp_lg_u32 s3, 3"); A("s_cbranch_scc1 L_c_end")
    if p.GD == 1:
        A(f"s_cmp_lg_u32 s{sCLS}, 2"); A("s_cbranch_scc1 L_c_nb")
        ldswait(CNT_PUB, 1, 20)
        gdpoll()
        A("s_branch L_c_end")
        A("L_c_nb:")
    A(f"s_mov_b32 s{sBLK}, s{sG}")
    A(f"s_cmp_eq_u32 s{sJ}, 8"); A("s_cbranch_scc1 L_red")
    A(f"s_add_u32 s{sBLK}, s{sG}, 16")
    A(f"s_cmp_lg_u32 s{sJ}, 7"); A("s_cbranch_scc1 L_c_end")
    A(f"s_cmp_lt_u32 s{sG}, 2"); A("s_cbranch_scc1 L_red")
    A("L_c_end:")
    endwave()

    A("L_red:")
    A(f"v_and_b32 v14, 7, v{vI}")
    A(f"v_lshl_add_u32 v15, v14, 2, v{vG}")
    A(f"s_lshl_b32 s70, s{sBLK}, 5")
    A(f"v_add_u32 v15, s70, v15")
    A(f"v_lshlrev_b32 v18, 1, v15")
    A(f"v_lshlrev_b32 v15, 2, v15")
    A(f"v_lshrrev_b32 v3, 3, v{vL}")
    A(f"v_mul_u32_u24 v3, 2304, v3")
    A(f"v_lshl_add_u32 v3, v14, 4, v3")
    A(f"s_lshl_b32 s70, s{sBLK}, 7")
    A(f"v_add_u32 v3, s70, v3")
    A(f"s_mov_b32 s44, {AP}"); A(f"s_mov_b32 s45, {AP+18432}"); A(f"s_mov_b32 s46, {MB}"); A(f"s_mov_b32 s47, {MB+1728*4}")
    ldswait(CNT_W, 4, 20)
    stamp(7)
    A(f"global_load_short_d16_hi v24, v18, {sp(sX)}")
    A(f"global_load_short_d16_hi v25, v18, {sp(sB2)}")
    poll([([f"buffer_load_dwordx4 {r4(40+4*a)}, v3, {WS}, s{44+a} offen sc1" for a in range(2)] +
           [f"buffer_load_dword v26, v15, {WS}, s46 offen sc1", f"buffer_load_dword v27, v15, {WS}, s47 offen sc1"],
           [(40, f"v{vTC}"), (44, f"v{vTC}"), (26, f"v{vTG}"), (27, f"v{vTG}")], lambda: None)], 20, 0, 2, sleep=4)
    stamp(8)
    addgran(40, 40, 44)
    redscat([40])
    A(f"v_add_f32_dpp v40, v40, v40 row_ror:8 {DPP}")
    A("v_and_b32 v26, 0xffff0000, v26")
    A("v_and_b32 v27, 0xffff0000, v27")
    bf16r(40, 40)
    A("v_mul_f32 v40, v40, v26")
    bf16r(40, 40)
    A("v_add_f32 v24, v24, v40")
    bf16r(24, 24)
    for a in range(9): A(f"s_mov_b32 s{44+a}, {FP+18432*a}")
    def s5set(b):
        def epi():
            addgran(b, b, b + 32); sum4(28, b); sum4(32, b + 16); addgran(28, 28, 32)
        return ([f"buffer_load_dwordx4 {r4(b+4*a)}, v3, {WS}, s{44+a} offen sc1" for a in range(9)],
                [(b + 4 * a, f"v{vTC}") for a in range(9)], epi)
    poll([s5set(40 + 36 * i) for i in range(p.k5)], 20, p.g5, 3)
    stamp(9)
    redscat([28])
    A(f"v_add_f32_dpp v28, v28, v28 row_ror:8 {DPP}")
    bf16r(28, 28)
    A("v_add_f32 v28, v28, v25")
    bf16r(28, 28)
    A("v_mul_f32 v28, v28, v27")
    bf16r(28, 28)
    A("v_add_f32 v28, v28, v24")
    A("v_cvt_pk_bf16_f32 v28, v28, v28")
    if p.xfix:
        A(f"s_mov_b32 s101, {p.xfix}")
        if p.probe:
            A(f"s_cmp_eq_u32 s{sBLK}, 5"); A("s_cselect_b32 s100, s100, 0"); A("s_add_u32 s101, s101, s100")
        A("L_xf:"); A("s_memrealtime s[96:97]"); A("s_waitcnt lgkmcnt(0)"); A("s_sub_u32 s96, s96, s98"); A(f"s_cmp_lt_u32 s96, s101"); A("s_cbranch_scc1 L_xf")
    A("s_mov_b32 exec_lo, 0x00ff00ff"); A("s_mov_b32 exec_hi, 0x00ff00ff")
    A(f"global_store_short v18, v28, {sp(sOUT)}")
    A(f"s_cmp_lg_u32 s{sBLK}, 0"); A("s_cbranch_scc1 L_red_end")
    A("s_mov_b64 exec, 1")
    A(f"global_store_dword v{vZ}, v{vTAG}, {sp(sWS)} offset:{EPOCH} sc1")
    A("L_red_end:")
    stamp(10)
    endwave()

    A("L_c_m:")
    A("s_setprio 0")
    A(f"s_mul_i32 s{sT}, s3, {144*9216}")
    A(f"s_lshl_b32 s70, s{sBLK}, 7")
    A(f"s_add_u32 s{sT}, s{sT}, s70")
    set_srd(R_T1, sT, sW1, 144 * 9216)
    A("s_mov_b32 s70, 9216"); A(f"s_mov_b32 s71, {4*9216}")
    tail_addr("s70", "s71")
    if p.b3:
        A(f"s_and_b32 s70, s{sBLK}, 7"); A("s_cmp_lg_u32 s70, 3"); A("s_cbranch_scc1 L_c_m0")
        for k in range(18):
            if k == 5: ldswait(CNT_PUB, 1, 20)
            A(f"buffer_load_dwordx4 {r4(T1B+4*k)}, v{vT}, {srd(R_T1)}, s{sO1} offen {nt}")
            A(f"s_add_u32 s{sO1}, s{sO1}, {8*9216}")
        A("s_branch L_mphase")
        A("L_c_m0:")
    ldswait(CNT_PUB, 1, 20)
    for k in range(18):
        if p.GD == 1 and k == p.N1C:
            A("s_cmp_lg_u32 s3, 3"); A("s_cbranch_scc1 L_c_m1")
            gdpoll()
            A("L_c_m1:")
            ldswait(CNT_GD, 1, 20)
        if k >= p.DC and not (p.GD and k >= p.N1C): A(f"s_waitcnt vmcnt({p.DC-1})")
        A(f"buffer_load_dwordx4 {r4(T1B+4*k)}, v{vT}, {srd(R_T1)}, s{sO1} offen {nt}")
        A(f"s_add_u32 s{sO1}, s{sO1}, {8*9216}")
    A("s_branch L_mphase")
    X2B = KB
    A("L_m_m:")
    def w2srd():
        A(f"s_mul_i32 s{sT}, s{sBLK}, {64*1152}")
        A(f"s_lshl_b32 s70, s{sW}, 7")
        A(f"s_add_u32 s{sT}, s{sT}, s70")
        set_srd(R_T1, sT, sW2, 64 * 1152)
        A(f"s_add_u32 s{sT}, s{sT}, 512")
        set_srd(R_T2, sT, sW2, 64 * 1152)
    w2srd()
    A(f"s_mov_b32 s{sST}, 4608"); A("s_mov_b32 s70, 1152"); A(f"s_mov_b32 s71, {32*1152}")
    tail_addr("s70", "s71")
    ldswait(CNT_PUB, 1, 26)
    for k in range(8):
        if p.GD == 1 and k == p.N1M: ldswait(CNT_GD, 1, 26)
        if k >= p.D3 and not (p.GD and k >= p.N1M): A(f"s_waitcnt vmcnt({p.D3-1})")
        tail_load(k)
    def m_rest(lab, paced):
        for k in range(8, 16):
            if paced: A(f"s_waitcnt vmcnt({p.D3-1})")
            tail_load(k)
        A(f"s_cmp_lg_u32 s{sW}, 0"); A(f"s_cbranch_scc1 {lab}")
        A(f"s_mov_b32 s{sO1}, 1024")
        for k in range(8):
            if paced: A(f"s_waitcnt vmcnt({p.D3-1})")
            A(f"buffer_load_dwordx4 {r4(X2B+4*k)}, v{vT}, {srd(R_T1)}, s{sO1} offen {nt}")
            A(f"s_add_u32 s{sO1}, s{sO1}, s{sST}")
    if not p.ZH: m_rest("L_mphase", True)
    A("L_mphase:")
    stamp(7)
    A(f"v_lshl_add_u32 v14, v{vI}, 2, v{vG}")
    A(f"s_lshl_b32 s70, s3, 6")
    A(f"v_add_u32 v15, s70, v14")
    A(f"v_lshlrev_b32 v3, 1, v15")
    A(f"global_load_short_d16_hi v24, v3, {sp(sX)}")
    A(f"v_lshlrev_b32 v3, 1, v14")
    A(f"global_load_short_d16_hi v25, v3, {sp(sX)} offset:1024")
    A(f"s_lshl_b32 s70, s{sBLK}, 7")
    A(f"v_add_u32 v3, s70, v3")
    A(f"global_load_short_d16_hi v23, v3, {sp(sB1)}")
    A(f"v_lshlrev_b32 v15, 2, v15")
    A(f"v_lshlrev_b32 v22, 2, v14")
    A(f"v_mul_u32_u24 v3, 2304, v{vG}")
    A(f"v_lshl_add_u32 v3, v{vI}, 4, v3")
    A(f"s_lshl_b32 s70, s3, 8"); A(f"s_add_u32 s44, s70, {AP}")
    for a in range(1, 4): A(f"s_add_u32 s{44+a}, s44, {9216*a}")
    A(f"s_mov_b32 s48, {MB}"); A(f"s_mov_b32 s49, {MB+4608}")
    for a in range(4): A(f"s_mov_b32 s{18+a}, {AP+2048+9216*a}")
    A(f"s_mov_b32 s50, {MB+2048}"); A(f"s_mov_b32 s51, {MB+2048+2304}"); A(f"s_mov_b32 s22, {MB+2048+4608}")
    A(f"v_lshlrev_b32 v18, 4, v{vL}")
    A(f"v_lshlrev_b32 v19, 2, v{vL}")
    A(f"s_mul_i32 s70, s3, 144")
    A(f"v_lshl_add_u32 v20, v{vI}, 3, v{vG}")
    A(f"v_add_lshl_u32 v20, v20, s70, 2")
    A(f"v_and_b32 v17, 1, v{vI}")
    A(f"v_lshl_add_u32 v17, v17, 3, v{vG}")
    A(f"s_add_u32 s70, s70, 128")
    A(f"v_add_lshl_u32 v17, v17, s70, 2")
    for k, off in enumerate((L_X2, L_AA, L_SS)):
        A(f"v_add_u32 v{72+2*k}, {off}, v20")
        A(f"v_add_u32 v{73+2*k}, {off}, v17")
    A(f"v_lshrrev_b32 v21, 1, v{vG}")
    A(f"s_lshl_b32 s70, s3, 1")
    A(f"v_add_lshl_u32 v21, v21, s70, 8")
    A(f"v_and_b32 v17, 7, v{vI}")
    A(f"v_lshl_add_u32 v21, v17, 5, v21")
    A(f"v_and_b32 v17, 1, v{vG}")
    A(f"v_lshl_add_u32 v21, v17, 4, v21")
    A(f"s_mul_i32 s{sPUB}, s{sBLK}, 2304"); A("s_lshl_b32 s70, s3, 8"); A(f"s_add_u32 s{sPUB}, s{sPUB}, s70"); A(f"s_add_u32 s{sPUB}, s{sPUB}, {FP-1024}")
    A(f"s_waitcnt vmcnt({p.XW})")
    A("s_barrier")
    stamp(11)
    def blockstep(items):
        if len(items) > 1:
            for G, ga, xr in items: sum4(G, G)
        redscat([G for G, _, _ in items])
        for G, ga, xr in items:
            A(f"v_and_b32 v{ga+2}, 0xffff0000, v{ga+2}")
            A(f"v_cvt_pk_bf16_f32 v{G}, v{G}, v{G}")
            A(f"v_and_b32 v{ga}, 0xffff0000, v{ga}")
            A(f"v_lshlrev_b32 v{G}, 16, v{G}")
            A(f"v_add_f32 v{ga+2}, 1.0, v{ga+2}")
            A(f"v_mul_f32 v{G}, v{G}, v{ga}")
            A(f"v_cvt_pk_bf16_f32 v{G}, v{G}, v{ga+2}")
            A(f"v_and_b32 v{ga+2}, 0xffff0000, v{G}")
            A(f"v_lshlrev_b32 v{G}, 16, v{G}")
            A(f"v_add_f32 v{G}, v{G}, v{xr}")
            bf16r(G, G)
            A(f"v_and_b32 v{ga+1}, 0xffff0000, v{ga+1}")
    def s4set2(b, c): return s4set(b, c)
    def s4set(b, two, dst=None):
        loads = [f"buffer_load_dwordx4 {r4(b+4*a)}, v3, {WS}, s{44+a} offen sc1" for a in range(4)]
        loads += [f"buffer_load_dword v{b+16}, v15, {WS}, s48 offen sc1",
                  f"buffer_load_dword v{b+17}, v15, {WS}, s48 offen offset:2304 sc1",
                  f"buffer_load_dword v{b+18}, v15, {WS}, s49 offen sc1"]
        checks = [(b + 4 * a, f"v{vTC}") for a in range(4)] + [(b + 16 + e, f"v{vTG}") for e in range(3)]
        if two:
            c = two
            loads += [f"buffer_load_dwordx4 {r4(c+4*a)}, v3, {WS}, s{18+a} offen sc1" for a in range(4)]
            loads += [f"buffer_load_dword v{c+16}, v22, {WS}, s50 offen sc1",
                      f"buffer_load_dword v{c+17}, v22, {WS}, s51 offen sc1",
                      f"buffer_load_dword v{c+18}, v22, {WS}, s22 offen sc1"]
            checks += [(c + 4 * a, f"v{vTC}") for a in range(4)] + [(c + 16 + e, f"v{vTG}") for e in range(3)]
        def epi():
            if dst is not None and dst != b:
                sum4(dst, b)
                for e in range(3): A(f"v_mov_b32 v{dst+16+e}, v{b+16+e}")
            elif dst is not None: sum4(b, b)
        return loads, checks, epi
    GB = VB
    GD_ = GB + 40 if p.k4 > 1 else GB
    def zh(lab):
        if p.ZH:
            for k in range(8, 16): tail_load(k)
    A("s_cmp_ge_u32 s3, 4"); A("s_cbranch_scc1 L_mpm")
    poll([s4set(GB + 20 * i, False, GD_) for i in range(p.k4)], 26, p.g4, 2)
    stamp(8)
    A("L_mpb:")
    blockstep([(GD_, GD_ + 16, 24)])
    A("L_mp1:")
    def mp0():
        A("L_mpm:")
        if p.ZH: w2srd()
        A("s_cmp_eq_u32 s3, 5"); A("s_cbranch_scc1 L_mp0")
        poll([s4set(GB + 20 * i, False, GD_) for i in range(p.k4)], 26, p.g4, 2)
        stamp(8)
        zh("L_zh1")
        A("s_branch L_mpb")
        A("L_mp0:")
        G5 = GD_ if p.k4 == 1 else 72 + 12
        poll([s4set2(GD_, GB if p.k4 > 1 else GB + 20)], 26, 0, 2)
        stamp(8)
        c = GB if p.k4 > 1 else GB + 20
        blockstep([(GD_, GD_ + 16, 24), (c, c + 16, 25)])
        A(f"ds_write_b32 v22, v{c} offset:{L_X2+2048}")
        A(f"ds_write_b32 v22, v{c+18} offset:{L_AA+2048}")
        A(f"ds_write_b32 v22, v{c+17} offset:{L_SS+2048}")
        A("s_branch L_mp1")
    A(f"ds_write_b32 v15, v{GD_} offset:{L_X2}")
    A(f"ds_write_b32 v15, v{GD_+18} offset:{L_AA}")
    A(f"ds_write_b32 v15, v{GD_+17} offset:{L_SS}")
    A("s_cmp_ge_u32 s3, 4")
    A("s_waitcnt lgkmcnt(0)")
    A("s_barrier")
    A("s_cbranch_scc1 L_mw2")
    XR, AR, SR_ = 40, 50, 60
    OX, OA_, OS = 84, 88, 92
    for base, off in ((XR, L_X2), (AR, L_AA), (SR_, L_SS)):
        A(f"ds_read_b128 {r4(base)}, v18 offset:{off}")
        A(f"ds_read_b128 {r4(base+4)}, v18 offset:{off+1024}")
        A(f"ds_read_b32 v{base+8}, v19 offset:{off+2048}")
        A(f"ds_read_b32 v{base+9}, v{vZ} offset:{off}")
    A(f"v_mov_b32 v81, {INV576}")
    A("s_waitcnt lgkmcnt(8)")
    def lnstats(first):
        X = XR
        for k in range(4): A(f"v_pk_add_f32 {r2(X+2*k)}, {r2(X+2*k)}, {r2(X+8)} op_sel:[0,1] op_sel_hi:[1,1] neg_lo:[0,1] neg_hi:[0,1]")
        if first:
            for k, d in enumerate((OX, OA_, OS)):
                A(f"ds_read2_b32 {r2(d)}, v{72+2*k} offset0:0 offset1:4")
                A(f"ds_read2_b32 {r2(d+2)}, v{73+2*k} offset0:0 offset1:4")
        A(f"v_sub_f32 v80, v{X+8}, v{X+9}")
        A(f"v_pk_add_f32 v[96:97], {r2(X)}, {r2(X+2)}")
        A(f"v_pk_mul_f32 v[98:99], {r2(X)}, {r2(X)}")
        A(f"v_pk_add_f32 v[82:83], {r2(X+4)}, {r2(X+6)}")
        A(f"v_pk_fma_f32 v[98:99], {r2(X+2)}, {r2(X+2)}, v[98:99]")
        A(f"v_pk_add_f32 v[96:97], v[96:97], v[82:83]")
        A(f"v_pk_fma_f32 v[98:99], {r2(X+4)}, {r2(X+4)}, v[98:99]")
        A(f"v_add_f32 v96, v96, v80")
        A(f"v_pk_fma_f32 v[98:99], {r2(X+6)}, {r2(X+6)}, v[98:99]")
        A(f"v_add_f32 v96, v96, v97")
        A(f"v_fmac_f32 v98, v80, v80")
        A(f"v_add_f32 v98, v98, v99")
        wavesum_s([96, 98], [70, 71])
        A(f"v_mul_f32 v96, s70, v81")
        A(f"v_mul_f32 v98, s71, v81")
        A(f"v_fma_f32 v98, -v96, v96, v98")
        A(f"v_max_f32 v98, 0, v98")
        A(f"v_add_f32 v98, {EPS}, v98")
        A(f"v_rsq_f32 v98, v98")
        A(f"v_add_f32 v97, v96, v{X+9}")
    lnstats(True)
    A("s_waitcnt lgkmcnt(0)")
    neg = "neg_lo:[0,1] neg_hi:[0,1]"
    for k in range(4): A(f"v_pk_add_f32 {r2(XR+2*k)}, {r2(XR+2*k)}, v[96:97] op_sel_hi:[1,0] {neg}")
    for b in (XR + 8, OX, OX + 2): A(f"v_pk_add_f32 {r2(b)}, {r2(b)}, v[96:97] op_sel:[0,1] op_sel_hi:[1,1] {neg}")
    for b in [AR + 2 * k for k in range(5)] + [OA_, OA_ + 2]: A(f"v_pk_mul_f32 {r2(b)}, {r2(b)}, v[98:99] op_sel_hi:[1,0]")
    for k in range(5): A(f"v_pk_fma_f32 {r2(XR+2*k)}, {r2(XR+2*k)}, {r2(AR+2*k)}, {r2(SR_+2*k)}")
    for k in range(2): A(f"v_pk_fma_f32 {r2(OX+2*k)}, {r2(OX+2*k)}, {r2(OA_+2*k)}, {r2(OS+2*k)}")
    lnstats(False)
    for b in (OX, OX + 2): A(f"v_pk_add_f32 {r2(b)}, {r2(b)}, v[96:97] op_sel:[0,1] op_sel_hi:[1,1] {neg}")
    for b in (OX, OX + 2): A(f"v_pk_mul_f32 {r2(b)}, {r2(b)}, v[98:99] op_sel_hi:[1,0]")
    A(f"v_cvt_pk_bf16_f32 v{OX}, v{OX}, v{OX+1}")
    A(f"v_cvt_pk_bf16_f32 v{OX+2}, v{OX+2}, v{OX+3}")
    stamp(9)
    gemv8(lambda n: (OX if n < 16 else OX + 2, n & 15), 18, [40, 44, 48], 52, [(OA, T1B)])
    A("s_mov_b32 exec_lo, 0x00ff00ff"); A("s_mov_b32 exec_hi, 0xff00ff00")
    A(f"ds_write_b128 v21, {r4(OA)} offset:{L_H1}")
    A("s_waitcnt lgkmcnt(0)")
    A("s_barrier")
    stamp(10)
    endwave()
    mp0()
    A("L_mw2:")
    if p.ZH:
        w2srd()
        A("s_cmp_lg_u32 s3, 5"); A("s_cbranch_scc1 L_mw2a")
        for k in range(8, 16): tail_load(k)
        A("L_mw2a:")
        A(f"s_cmp_lg_u32 s{sW}, 0"); A("s_cbranch_scc1 L_mw2b")
        A(f"s_mov_b32 s{sO1}, 1024")
        for k in range(8):
            A(f"buffer_load_dwordx4 {r4(X2B+4*k)}, v{vT}, {srd(R_T1)}, s{sO1} offen {nt}")
            A(f"s_add_u32 s{sO1}, s{sO1}, s{sST}")
        A("L_mw2b:")
    A(f"v_add_u32 v22, {L_H1}, v22")
    c0 = -2.0 * math.sqrt(2.0 / math.pi) * math.log2(math.e)
    A(f"v_mov_b32 v82, {f2h(c0)}")
    A(f"s_cmp_eq_u32 s{sW}, 0")
    A("s_barrier")
    stamp(9)
    for k in range(4): A(f"ds_read2st64_b32 {r2(72+2*k)}, v22 offset0:{2*k} offset1:{2*k+1}")
    A("s_waitcnt lgkmcnt(2)")
    A("v_pk_add_f32 v[72:73], v[72:73], v[74:75]")
    A("s_waitcnt lgkmcnt(0)")
    A("v_pk_add_f32 v[76:77], v[76:77], v[78:79]")
    A("v_pk_add_f32 v[72:73], v[72:73], v[76:77]")
    A("v_add_f32 v80, v72, v73")
    bf16r(80, 80)
    A("v_add_f32 v80, v80, v23")
    bf16r(80, 80)
    A("v_mul_f32 v81, v80, v80")
    A(f"v_fmac_f32 v82, {f2h(c0*0.044715)}, v81")
    A("v_mul_f32 v81, v82, v80")
    A("v_exp_f32 v81, v81")
    A("v_add_f32 v81, 1.0, v81")
    A("v_rcp_f32 v81, v81")
    A("v_mul_f32 v80, v80, v81")
    A(f"v_mov_b32_dpp v81, v80 row_ror:8 {DPP}")
    A("v_cvt_pk_bf16_f32 v80, v80, v81")
    if p.ZH: A("s_waitcnt vmcnt(0)")
    OB, OC = 232, 236
    A("s_cbranch_scc1 L_w2_0")
    gemv8(lambda n: (80, n), 8, [84, 88, 92], 82, [(OA, T1B), (OB, T2B)])
    halfadd([OA, OB], [84, 88])
    A("L_w2_1:")
    A("s_mov_b64 exec, 0x00ff00ff")
    tag1(OA); tag1(OB)
    A(f"buffer_store_dwordx4 {r4(OA)}, v{vST}, {WS}, s{sPUB} offen sc1")
    A(f"buffer_store_dwordx4 {r4(OB)}, v{vST}, {WS}, s{sPUB} offen offset:1024 sc1")
    stamp(10)
    endwave()
    A("L_w2_0:")
    gemv8(lambda n: (80, n), 8, [84, 88, 92], 82, [(OC, X2B), (OA, T1B), (OB, T2B)])
    halfadd([OC, OA, OB], [92, 84, 88])
    tag1(OC)
    A("s_mov_b64 exec, 0x00ff00ff")
    A(f"buffer_store_dwordx4 {r4(OC)}, v{vST}, {WS}, s{sPUB} offen offset:2048 sc1")
    A("s_branch L_w2_1")
    for c in cold: c()
    A("L_exit:")
    A("s_endpgm")
    A('.section .rodata,"a"')
    A(".p2align 6")
    A(f".amdhsa_kernel {KN}")
    A(".amdhsa_next_free_vgpr 248")
    A(".amdhsa_next_free_sgpr 102")
    A(".amdhsa_accum_offset 248")
    A(".amdhsa_group_segment_fixed_size 0")
    A(".amdhsa_kernarg_size 120")
    A(".amdhsa_user_sgpr_count 2")
    A(".amdhsa_user_sgpr_kernarg_segment_ptr 1")
    A(".amdhsa_system_sgpr_workgroup_id_x 1")
    A(".amdhsa_float_denorm_mode_32 3")
    A(".end_amdhsa_kernel")
    return A.text().replace(".ASMLAUNCH @", "; @")

if __name__ == "__main__":
    kw = eval("dict(" + (sys.argv[2] if len(sys.argv) > 2 else "") + ")")
    open(sys.argv[1], "w").write(gen(**kw))
```

```python
import sys, struct, math
sys.path.insert(0, "work")
from asmlib import Asm

KN = "adaLN_cond__sliding_block_cached__mixer_channel_mlp__decode_kernel"

EPOCH = 0
MA = 0x1000
MB = 0xA000
AP = 0xD000
FP = 0x16000
QP = 0x40000
OP = 0x80000
HINT1 = 0xC8000
IDS = 0xD2000
WSREC = 0x100000
DBG = 0x100000

CNT_Q, CNT_P, CNT_L, CNT_O, CNT_W, CNT_G, CNT_H1, CNT_MODE, CNT_PUB, CNT_A, CNT_GD = 0, 4, 8, 12, 16, 20, 24, 28, 32, 36, 40
L_ZERO = 48
L_MAX = 64
L_LB = 96
L_Q = 256
L_OB = 1024
L_WB = 5120
L_X2 = 1024
L_AA = 3328
L_SS = 5632
L_H1 = 7936
LDS_BYTES = 10240

DPP = "row_mask:0xf bank_mask:0xf"
LOG2E = 0x3fb8aa3b
f2h = lambda f: hex(struct.unpack("<I", struct.pack("<f", f))[0])
INV576 = f2h(1.0 / 576)
EPS = f2h(1e-5)

class P:
    DW = 10
    DO = 6
    P1 = 0
    P2 = 4
    DL = 5
    SL = 14
    GD = 2
    N1C = 5; N1M = 4; N1B = 8
    b3 = 1
    k4 = 1; g4 = 8
    WL = 8
    BE = 0
    PRE = 3
    MID = 3
    XW_ = 2
    XO = 0
    DC = 5
    D3 = 4
    D3B = 8
    XW = 2
    ZH = 1
    stamps = 0
    preread = 0
    prelate = 0
    limit = 20000
    nt = "nt"
    prio = 1
    rot = 1
    h1 = 1
    k2 = 1; g2 = 12
    k5 = 1; g5 = 3
    psleep = 0
    hsleep = 1
    lsleep = 1
    cpf = 2
    fast = 1
    xfix = 0
    probe = None

def gen(**kw):
    p = P()
    for k, v in kw.items():
        assert hasattr(p, k), k
        setattr(p, k, v)
    A = Asm()
    nt = p.nt
    sX, sK, sV, sWQ, sWO, sW1, sB1, sW2, sB2, sC, sWM, sOUT, sWS = 16, 18, 20, 22, 24, 28, 30, 32, 34, 36, 38, 40, 42
    sG, sJ, sCLS, sBLK = 4, 5, 6, 7
    sTAG = 8
    sSEL = 12
    sID, sMODE = 26, 27
    R_A, R_B, R_T1, R_T2, R_WS = 44, 48, 52, 56, 60
    sST, sROT = 64, 65
    sO1, sO2 = 66, 67
    sCNT = 68
    sT = 69
    sW, sPUB = 96, 97
    vL, vG, vI = 0, 1, 2
    vMASK, vSEL, vTAG, vTG = 4, 8, 12, 13
    vTP, vTC, vST, vZ = 244, 245, 246, 247
    vT = 16
    T1B, T2B = 168, 200
    def r4(b): return f"v[{b}:{b+3}]"
    def r2(b): return f"v[{b}:{b+1}]"
    def srd(b): return f"s[{b}:{b+3}]"
    def sp(b): return f"s[{b}:{b+1}]"
    WS = srd(R_WS)
    def stamp(k):
        if p.stamps: A(f"s_memrealtime s[{72+2*k}:{73+2*k}]")
        if p.probe == k:
            A("s_memrealtime s[100:101]"); A("s_waitcnt lgkmcnt(0)"); A("s_sub_u32 s100, s100, s98")
    def endwave():
        if p.stamps:
            A("s_mov_b64 exec, -1")
            A("s_waitcnt lgkmcnt(0)")
            A(f"s_lshl_b32 s{sT}, s2, 3")
            A(f"s_add_u32 s{sT}, s{sT}, s3")
            A(f"s_lshl_b32 s{sT}, s{sT}, 6")
            A(f"s_add_u32 s{sT}, s{sT}, {DBG}")
            A("s_waitcnt vmcnt(0)")
            A(f"v_mov_b32 v14, s{sT}")
            A("s_mov_b64 exec, 1")
            for k in range(0, 12, 4):
                for e in range(4): A(f"v_mov_b32 v{16+e}, s{72+2*(k+e)}")
                A(f"global_store_dwordx4 v14, v[16:19], {sp(sWS)} offset:{4*k}")
            for e in range(4): A(f"v_mov_b32 v{16+e}, s{98+e}")
            A(f"global_store_dwordx4 v14, v[16:19], {sp(sWS)} offset:48")
            A("s_waitcnt vmcnt(0)")
        A("s_endpgm")
    def set_srd(r, off_s, ptr, rec):
        A(f"s_add_u32 s{r}, s{ptr}, s{off_s}")
        A(f"s_addc_u32 s{r+1}, s{ptr+1}, 0")
        A(f"s_mov_b32 s{r+2}, {rec}")
        A(f"s_mov_b32 s{r+3}, 0x20000")
    def bf16r(d, s):
        A(f"v_cvt_pk_bf16_f32 v{d}, v{s}, v{s}")
        A(f"v_lshlrev_b32 v{d}, 16, v{d}")
    def rowsall(op, vs, ts):
        for sw in ("v_permlane32_swap_b32", "v_permlane16_swap_b32"):
            for v, t in zip(vs, ts): A(f"v_mov_b32 v{t}, v{v}")
            for v, t in zip(vs, ts): A(f"{sw} v{v}, v{t}")
            for v, t in zip(vs, ts): A(f"{op} v{v}, v{v}, v{t}")
    def wavesum_s(vs, ss):
        for ctl in ("quad_perm:[1,0,3,2]", "quad_perm:[2,3,0,1]", "row_half_mirror", "row_mirror"):
            for v in vs: A(f"v_add_f32_dpp v{v}, v{v}, v{v} {ctl} {DPP}")
        for v in vs: A(f"v_add_f32_dpp v{v}, v{v}, v{v} row_bcast:15 row_mask:0xa bank_mask:0xf")
        for v in vs: A(f"v_add_f32_dpp v{v}, v{v}, v{v} row_bcast:31 row_mask:0xc bank_mask:0xf")
        for v, s in zip(vs, ss): A(f"v_readlane_b32 s{s}, v{v}, 63")
    def redscat(bs):
        for b in bs:
            A(f"v_permlane32_swap_b32 v{b}, v{b+2}")
            A(f"v_permlane32_swap_b32 v{b+1}, v{b+3}")
        for b in bs: A(f"v_pk_add_f32 {r2(b)}, {r2(b)}, {r2(b+2)}")
        for b in bs: A(f"v_permlane16_swap_b32 v{b}, v{b+1}")
        for b in bs: A(f"v_add_f32 v{b}, v{b}, v{b+1}")
    def addgran(d, a, b):
        A(f"v_pk_add_f32 {r2(d)}, {r2(a)}, {r2(b)}")
        A(f"v_pk_add_f32 {r2(d+2)}, {r2(a+2)}, {r2(b+2)}")
    def sum4(d, b):
        addgran(b, b, b + 4); addgran(b + 8, b + 8, b + 12); addgran(d, b, b + 8)
    def tag4(b):
        for e in range(4): A(f"v_perm_b32 v{b+e}, v{b+e}, v{vTAG}, s{sSEL+e}")
    def tag1(b):
        A(f"v_perm_b32 v{b}, v{b}, v{vTP}, s{sSEL}")
    def halfadd(bs, ts):
        for b, t in zip(bs, ts):
            for e in range(4): A(f"v_permlane32_swap_b32 v{b+e}, v{t+e}")
        for b, t in zip(bs, ts):
            for e in range(4): A(f"v_add_f32_dpp v{b+e}, v{t+e}, v{b+e} row_ror:8 {DPP}")
    def poll(sets, acc, gap=0, slot=None, issued=None, sleep=0):
        k = len(sets); n = sum(1 for l in sets[0][0] if l.startswith("buffer"))
        L = A.label("poll"); Ld = A.label("pd")
        oks = [A.label("ok") for _ in sets]
        A(f"s_mov_b32 s{sCNT}, {p.limit}")
        for i, (loads, _, _) in enumerate(sets):
            if i and gap: A(f"s_sleep {gap}")
            for l in loads: A(l)
        if issued: issued()
        A(f"{L}:")
        for i, (loads, checks, _) in enumerate(sets):
            A(f"s_waitcnt vmcnt({(k-1)*n})")
            for c, (r, t) in enumerate(checks):
                if c == 0: A(f"v_xor_b32 v{acc}, {t}, v{r}")
                else: A(f"v_bitop3_b32 v{acc}, v{r}, {t}, v{acc} bitop3:0xbe")
            A(f"v_and_b32 v{acc}, 0xff, v{acc}")
            A(f"v_cmp_ne_u32 vcc, 0, v{acc}")
            A(f"s_cbranch_vccz {oks[i]}")
            A(f"s_sub_u32 s{sCNT}, s{sCNT}, 1")
            A(f"s_cbranch_scc1 {oks[i]}")
            if sleep: A(f"s_sleep {sleep}")
            for l in loads: A(l)
        A(f"s_branch {L}")
        for i in reversed(range(k)):
            A(f"{oks[i]}:")
            sets[i][2]()
            if i: A(f"s_branch {Ld}")
        A(f"{Ld}:")
        if p.stamps and slot is not None: A(f"s_sub_u32 s{98+slot}, {p.limit+1}, s{sCNT}")
    def ldswait(off, target, t):
        L = A.label("lw"); Ld = A.label("lwd")
        A(f"s_mov_b32 s{sCNT}, {p.limit*40}")
        A(f"{L}:")
        A(f"ds_read_b32 v{t}, v{vZ} offset:{off}")
        A("s_waitcnt lgkmcnt(0)")
        A(f"v_cmp_le_u32 vcc, {target}, v{t}")
        A(f"s_cbranch_vccnz {Ld}")
        if p.lsleep: A(f"s_sleep {p.lsleep}")
        A(f"s_sub_u32 s{sCNT}, s{sCNT}, 1")
        A(f"s_cbranch_scc0 {L}")
        A(f"{Ld}:")
    def ldssignal(off, t, rtn=False, last=3, val="1"):
        A(f"v_mov_b32 v{t}, {val}")
        A("s_mov_b64 exec, 1")
        if rtn:
            A(f"ds_add_rtn_u32 v{t}, v{vZ}, v{t} offset:{off}")
            A("s_waitcnt lgkmcnt(0)")
            A(f"v_cmp_eq_u32 vcc, {last}, v{t}")
        else:
            A(f"ds_add_u32 v{vZ}, v{t} offset:{off}")
        A("s_mov_b64 exec, -1")
    def pubstore(data, addr, soff, extra=""):
        La, Lb = A.label("ps"), A.label("pe")
        A(f"s_cmp_eq_u32 s{sMODE}, 2"); A(f"s_cbranch_scc0 {La}")
        A(f"buffer_store_dwordx4 {data}, {addr}, {WS}, s{soff} offen {extra}")
        A(f"{Lb}:")
        return lambda: (A(f"{La}:"), A(f"buffer_store_dwordx4 {data}, {addr}, {WS}, s{soff} offen {extra} sc1"), A(f"s_branch {Lb}"))
    cold = []
    def consts():
        A(f"v_and_b32 v3, 1, v{vI}")
        A(f"v_lshlrev_b32 v3, 4, v3")
        A(f"v_mov_b32 v{vSEL}, 0xffff")
        A(f"v_lshlrev_b32 v3, v3, v{vSEL}")
        A(f"v_bfe_u32 v{vSEL}, v{vI}, 1, 2")
        for d in range(4):
            A(f"v_cmp_eq_u32 vcc, {d}, v{vSEL}")
            A(f"v_cndmask_b32 v{vMASK+d}, 0, v3, vcc")
        A(f"v_lshrrev_b32 v3, 3, v{vI}")
        A(f"s_mov_b32 s{sT}, 0x02020202")
        A(f"v_mul_lo_u32 v3, v3, s{sT}")
        A(f"v_add_u32 v3, 0x01000100, v3")
        A(f"s_mov_b32 s{sT}, 0x0c0c0c0c")
        for d in range(4):
            A(f"v_bfi_b32 v{vSEL+d}, v{vMASK+d}, v3, s{sT}")
        A(f"v_lshlrev_b32 v{vST}, 5, v{vI}")
        A(f"v_lshl_add_u32 v{vST}, v{vG}, 4, v{vST}")
    def tagsetup():
        A("s_waitcnt lgkmcnt(0)")
        A(f"s_mul_i32 s{sT}, s{sTAG}, 0x9E3779B1")
        A(f"s_add_u32 s{sT}, s{sT}, 0x7F4A7C15")
        A(f"s_or_b32 s{sT}, s{sT}, 0x01010101")
        A(f"s_xor_b32 s{sTAG}, s{sTAG}, s{sT}")
        for e in range(1, 4): A(f"s_lshr_b32 s{sTAG+e}, s{sTAG}, {8*e}")
        for e in range(4): A(f"s_mov_b32 s{sSEL+e}, {hex(0x07060500 + e)}")
        A(f"v_mov_b32 v{vTAG}, s{sTAG}")
        A(f"v_lshlrev_b32 v{vTG}, 3, v{vG}")
        A(f"v_lshrrev_b32 v{vTG}, v{vTG}, v{vTAG}")
        A(f"v_and_b32 v{vTC}, 1, v{vG}")
        A(f"v_lshl_add_u32 v{vTP}, v{vI}, 1, v{vTC}")
        A(f"v_lshlrev_b32 v{vTP}, 3, v{vTP}")
        A(f"v_lshrrev_b32 v{vTP}, v{vTP}, v{vTAG}")
        A(f"v_lshlrev_b32 v{vTC}, 3, v{vI}")
        A(f"v_lshrrev_b32 v{vTC}, v{vTC}, v{vTAG}")
    def classify():
        A(f"s_lshl_b32 s{sT}, s{sJ}, 4"); A(f"s_add_u32 s{sT}, s{sT}, s{sG}")
        A(f"s_sub_u32 s{sT}, s{sT}, {144+72}")
        A(f"s_cmp_ge_u32 s{sT}, 36"); A(f"s_cselect_b32 s{sCLS}, 3, 2")
        A(f"s_lshr_b32 s70, s{sG}, 1")
        A(f"s_and_b32 s71, s{sG}, 1")
        A(f"s_mul_i32 s{sBLK}, s70, 9"); A(f"s_add_u32 s{sBLK}, s{sBLK}, s71")
        A(f"s_cmp_eq_u32 s{sJ}, 13")
        A(f"s_cselect_b32 s{sT}, s70, s{sT}")
        A(f"s_cselect_b32 s{sCLS}, 2, s{sCLS}")
        A(f"s_lshl_b32 s70, s{sJ}, 1"); A(f"s_add_u32 s{sBLK}, s{sBLK}, s70"); A(f"s_sub_u32 s{sBLK}, s{sBLK}, 18")
        A(f"s_add_u32 s70, s70, s71")
        A(f"s_cmp_le_u32 s70, 26")
        A(f"s_cselect_b32 s{sBLK}, s{sBLK}, s{sT}")
        A(f"s_cselect_b32 s{sCLS}, 1, s{sCLS}")
        A(f"s_cmp_lt_u32 s{sJ}, 9")
        A(f"s_cselect_b32 s{sBLK}, s{sJ}, s{sBLK}")
        A(f"s_cselect_b32 s{sCLS}, 0, s{sCLS}")
    def silu(regs, tmps):
        for v, t in zip(regs, tmps): A(f"v_mul_f32 v{t}, 0xbfb8aa3b, v{v}")
        for v, t in zip(regs, tmps): A(f"v_exp_f32 v{t}, v{t}")
        for v, t in zip(regs, tmps): A(f"v_add_f32 v{t}, 1.0, v{t}")
        for v, t in zip(regs, tmps): A(f"v_rcp_f32 v{t}, v{t}")
        for v, t in zip(regs, tmps): A(f"v_mul_f32 v{v}, v{v}, v{t}")
    def mfma(d, a, b, first):
        A(f"v_mfma_f32_16x16x32_bf16 {r4(d)}, {r4(a)}, {r4(b)}, {'0' if first else r4(d)}")
    def gemv8(srs, N, tmp, t0, accs, waits=None):
        def build(n):
            sr, ln = srs(n)
            d = tmp[n % len(tmp)]
            A(f"v_mov_b32_dpp v{t0+(n&1)}, v{sr} row_newbcast:{ln} {DPP}")
            for e in range(4): A(f"v_perm_b32 v{d+e}, v{t0+(n&1)}, v{t0+(n&1)}, v{vSEL+e}")
        build(0)
        for n in range(N):
            if n + 1 < N: build(n + 1)
            if waits: waits(n)
            for acc, wb in accs: mfma(acc, tmp[n % len(tmp)], wb + 4 * n, n == 0)
    def tail_load(k):
        r, so = (R_T1, sO1) if k < 8 else (R_T2, sO2)
        A(f"buffer_load_dwordx4 {r4(T1B+4*k)}, v{vT}, {srd(r)}, s{so} offen {nt}")
        A(f"s_add_u32 s{so}, s{so}, s{sST}")
    def after_args():
        A(f"s_load_dword s{sTAG}, {sp(sWS)}, {EPOCH}")
        A(f"s_mov_b64 {sp(R_WS)}, {sp(sWS)}")

    def gdpoll():
        A(f"v_mul_u32_u24 v21, 1152, v{vI}")
        A(f"s_mul_i32 s70, s{sG}, {16*1152}"); A(f"s_add_u32 s70, s70, {OP}")
        poll([([f"buffer_load_dwordx4 v[28:31], v21, {WS}, s70 offen offset:1024 sc1"], [(28 + e, f"s{sTAG+e}") for e in range(4)], lambda: None)], 22, 0, None, sleep=3)
        ldssignal(CNT_GD, 21)

    A(f".ASMLAUNCH @launch grid=(256,1,1) block=(512,1,1) lds={LDS_BYTES}")
    A('.amdgcn_target "amdgcn-amd-amdhsa--gfx950"')
    A(".text")
    A(f".globl {KN}")
    A(".p2align 8")
    A(f".type {KN},@function")
    A(f"{KN}:")
    if p.stamps: A("s_memrealtime s[72:73]")
    if p.xfix: A("s_memrealtime s[98:99]")
    if p.stamps:
        for k in range(1, 12): A(f"s_mov_b32 s{72+2*k}, 0")
        for k in range(4): A(f"s_mov_b32 s{98+k}, 0")
    A("s_cmp_ge_u32 s2, 256")
    A("s_cbranch_scc1 L_exit")
    A("s_load_dwordx16 s[16:31], s[0:1], 0")
    A("s_load_dwordx8 s[32:39], s[0:1], 64")
    A(f"s_load_dwordx2 {sp(sOUT)}, s[0:1], 96")
    A(f"s_load_dwordx2 {sp(sWS)}, s[0:1], 112")
    A("v_lshrrev_b32 v1, 6, v0")
    A("v_and_b32 v0, 63, v0")
    A("v_readfirstlane_b32 s3, v1")
    A(f"v_lshrrev_b32 v{vG}, 4, v{vL}")
    A(f"v_and_b32 v{vI}, 15, v{vL}")
    A(f"v_mov_b32 v{vZ}, 0")
    A(f"v_mov_b32 v{vT}, 0")
    A(f"s_and_b32 s{sG}, s2, 7")
    A(f"s_lshl_b32 s{sG}, s{sG}, 1")
    A(f"s_bfe_u32 s{sT}, s2, 0x10003")
    A(f"s_add_u32 s{sG}, s{sG}, s{sT}")
    A(f"s_lshr_b32 s{sJ}, s2, 4")
    A(f"s_mov_b32 s{R_WS+2}, {WSREC}")
    A(f"s_mov_b32 s{R_WS+3}, 0x20000")
    WB = 40
    SB = 104
    G1 = 120
    A("s_cmp_lg_u32 s3, 0"); A("s_cbranch_scc1 L_s1")
    if p.prio: A(f"s_setprio {p.prio}")
    A(f"s_lshr_b32 s70, s{sG}, 1")
    A(f"s_and_b32 s71, s{sG}, 1"); A(f"s_mul_i32 s71, s71, 9"); A(f"s_add_u32 s71, s71, s{sJ}")
    A(f"v_min_u32 v3, 8, v{vI}")
    A(f"v_lshl_add_u32 v3, v3, 3, v{vG}")
    A(f"s_mul_i32 s{sT}, s70, 72")
    A(f"v_add_lshl_u32 v17, v3, s{sT}, 1")
    A(f"s_mul_i32 s{sT}, s70, {72*6912}")
    A(f"s_lshl_b32 s{sO1}, s71, 7")
    A(f"s_add_u32 s{sT}, s{sT}, s{sO1}")
    A(f"v_lshrrev_b32 v3, 3, v{vI}")
    A(f"v_lshl_add_u32 v3, v3, 2, v{vG}")
    A(f"v_mul_u32_u24 v3, 6912, v3")
    A(f"v_and_b32 v14, 7, v{vI}")
    A(f"v_lshl_add_u32 v14, v14, 4, v3")
    A(f"s_mov_b32 s{sO2}, 0")
    A(f"s_cmp_ge_u32 s{sJ}, 9")
    A("s_waitcnt lgkmcnt(0)")
    A("s_cbranch_scc1 L_c_bar0")
    set_srd(R_A, sT, sWM, 72 * 6912)
    A(f"global_load_short_d16_hi v20, v17, {sp(sC)}")
    A(f"global_load_short_d16_hi v21, v17, {sp(sC)} offset:8")
    for n in range(9):
        A(f"buffer_load_dwordx4 {r4(WB+4*n)}, v14, {srd(R_A)}, s{sO2} offen {nt}")
        if n < 8: A(f"s_add_u32 s{sO2}, s{sO2}, {8*6912}")
    A("L_c_bar0:")
    after_args()
    A("s_barrier")
    A("s_branch L_c_post")
    A("L_s1:")
    A("s_cmp_ge_u32 s3, 3"); A("s_cbranch_scc1 L_s3")
    if p.prio: A(f"s_setprio {p.prio}")
    A(f"v_lshlrev_b32 v17, 3, v{vL}")
    A(f"v_lshlrev_b32 v18, 3, v{vI}")
    A(f"v_lshl_add_u32 v3, v{vI}, 2, v{vG}")
    A(f"s_lshl_b32 s{sT}, s{sJ}, 6")
    A(f"v_add_lshl_u32 v3, v3, s{sT}, 1")
    A(f"s_lshl_b32 s{sT}, s{sJ}, 19")
    A(f"s_lshl_b32 s{sO1}, s{sG}, 9")
    A(f"s_add_u32 s{sT}, s{sT}, s{sO1}")
    A(f"s_lshl_b32 s{sO1}, s3, 8")
    A(f"s_add_u32 s{sT}, s{sT}, s{sO1}")
    A(f"s_sub_u32 s{sT}, s{sT}, 256")
    A(f"v_lshlrev_b32 v14, 13, v{vG}")
    A(f"v_lshl_add_u32 v14, v{vI}, 4, v14")
    A(f"s_mov_b32 s{sO2}, 0")
    A(f"s_cmp_ge_u32 s{sJ}, 9")
    A("s_waitcnt lgkmcnt(0)")
    A("s_cbranch_scc1 L_c_bar1")
    set_srd(R_A, sT, sWQ, 64 * 8192)
    A(f"global_load_dwordx2 v[20:21], v17, {sp(sX)}")
    A(f"global_load_dwordx2 v[22:23], v17, {sp(sX)} offset:512")
    A(f"global_load_dwordx2 v[24:25], v18, {sp(sX)} offset:1024")
    A(f"global_load_short_d16_hi v26, v3, {sp(sX)}")
    for n in range(16):
        A(f"buffer_load_dwordx4 {r4(WB+4*n)}, v14, {srd(R_A)}, s{sO2} offen {nt}")
        if n < 15: A(f"s_add_u32 s{sO2}, s{sO2}, {4*8192}")
    A("L_c_bar1:")
    after_args()
    A("s_barrier")
    A("s_branch L_c_post")
    A("L_s3:")
    A("s_cmp_lg_u32 s3, 3"); A("s_cbranch_scc1 L_main")
    for e in range(4): A(f"v_mov_b32 v{20+e}, 0")
    A(f"v_lshlrev_b32 v3, 4, v{vI}")
    A(f"ds_write_b128 v3, v[20:23]")
    if p.cpf:
        A("s_getpc_b64 s[70:71]")
        A("L_pc:")
        A("s_bfe_u32 s69, s2, 0x20003"); A("s_min_u32 s69, s69, 2"); A("s_lshl_b32 s69, s69, 13")
        A(f"v_lshl_add_u32 v3, v{vL}, 7, s69")
        A(f"v_min_u32 v3, L_exit-L_pc, v3")
        A("global_load_dword v239, v3, s[70:71]")
    A("s_waitcnt lgkmcnt(0)")
    after_args()
    A("s_barrier")
    A("s_branch L_c_post")

    KB, VB, OA = 40, 104, 240
    vK, vV, QA, QB = 14, 15, 20, 24
    A("L_main:")
    A(f"s_sub_u32 s{sW}, s3, 4")
    A(f"s_lshl_b32 s{sT}, s{sG}, 23")
    A(f"s_lshl_b32 s70, s{sJ}, 16")
    A(f"s_add_u32 s{sT}, s{sT}, s70")
    A(f"s_add_u32 s{sT}, s{sT}, 7340032")
    A(f"s_lshl_b32 s70, s{sW}, 10")
    A(f"v_lshlrev_b32 v{vK}, 6, v{vI}")
    A(f"v_lshl_add_u32 v{vK}, v{vG}, 4, v{vK}")
    A(f"v_add_u32 v{vK}, s70, v{vK}")
    A(f"v_lshl_add_u32 v{vV}, v{vL}, 4, s70")
    A(f"s_mul_i32 s{sROT}, s2, {p.rot}"); A(f"s_add_u32 s{sROT}, s{sROT}, s{sJ}")
    A(f"s_lshl_b32 s{sROT}, s{sROT}, 12"); A(f"s_and_b32 s{sROT}, s{sROT}, 0xffff")
    A("s_waitcnt lgkmcnt(0)")
    set_srd(R_A, sT, sK, 65536)
    set_srd(R_B, sT, sV, 65536)
    def kvload(n):
        if n < 16: A(f"buffer_load_dwordx4 {r4(KB+4*n)}, v{vK}, {srd(R_A)}, s{sROT} offen {nt}")
        else: A(f"buffer_load_dwordx4 {r4(VB+4*(n-16))}, v{vV}, {srd(R_B)}, s{sROT} offen {nt}")
        A(f"s_add_u32 s{sROT}, s{sROT}, 4096"); A(f"s_and_b32 s{sROT}, s{sROT}, 0xffff")
    def tail_addr(stride, half):
        A(f"v_and_b32 v3, 7, v{vI}")
        A(f"v_lshlrev_b32 v3, 4, v3")
        A(f"v_lshrrev_b32 v18, 3, v{vI}")
        A(f"v_mad_u32_u24 v{vT}, v{vG}, {stride}, v3")
        A(f"v_mad_u32_u24 v{vT}, v18, {half}, v{vT}")
        A(f"s_mov_b32 s{sO1}, 0"); A(f"s_mov_b32 s{sO2}, 0")
    def main_setup():
        consts()
        tagsetup()
        A(f"v_and_b32 v3, 3, v{vI}")
        A(f"v_lshl_add_u32 v3, v3, 2, v{vG}")
        A(f"v_lshlrev_b32 v3, 4, v3")
        A(f"v_lshrrev_b32 v18, 3, v{vI}")
        A(f"v_lshl_add_u32 v3, v18, 8, v3")
        A(f"v_add_u32 v3, {L_Q}, v3")
        A(f"v_and_b32 v19, 4, v{vI}")
        A(f"v_cmp_eq_u32 vcc, 0, v19")
        A(f"v_mov_b32 v19, {L_ZERO}")
        A(f"v_cndmask_b32 v28, v19, v3, vcc")
        A(f"v_cndmask_b32 v29, v3, v19, vcc")
        A(f"s_lshl_b32 s70, s{sW}, 2")
        A(f"v_lshl_add_u32 v19, v18, 4, s70")
        A(f"v_lshrrev_b32 v17, 1, v{vG}")
        A(f"v_lshlrev_b32 v17, 4, v17")
        A(f"s_lshl_b32 s70, s{sG}, 4"); A(f"s_add_u32 s70, s70, s{sJ}"); A("s_mul_i32 s70, s70, 1152"); A(f"s_add_u32 s{sPUB}, s70, {OP}")
        A(f"v_and_b32 v3, 1, v{vG}")
        A(f"v_lshlrev_b32 v18, 5, v17")
        A(f"v_lshl_add_u32 v18, v3, 4, v18")
        A(f"v_lshl_add_u32 v18, v{vI}, 5, v18")
    A(f"s_cmp_lt_u32 s{sJ}, 9"); A("s_cbranch_scc1 L_main_w")
    for n in range(32):
        if n >= p.DO and n < 32 - p.XO: A(f"s_waitcnt vmcnt({p.DO-1})")
        kvload(n)
        if n == p.DO - 1:
            after_args()
            A("s_barrier")
            stamp(1)
            classify()
            main_setup()
        if n == 15: ldssignal(CNT_P, 30)
    A(f"s_mov_b64 {sp(R_T1)}, {sp(sWO)}"); A(f"s_mov_b32 s{R_T1+2}, 0"); A(f"s_mov_b32 s{R_T1+3}, 0x20000")
    A(f"s_mov_b32 s{sO1}, 0"); A(f"s_mov_b32 s{sST}, 0")
    A("s_branch L_main_j")
    A("L_main_w:")
    after_args()
    A("s_barrier")
    stamp(1)
    for n in range(p.P1): kvload(n)
    A(f"s_mov_b32 s{sCLS}, 0")
    A(f"s_lshl_b32 s{sT}, s{sG}, 2")
    A(f"s_add_u32 s{sT}, s{sT}, s{sW}")
    A(f"s_mul_i32 s{sT}, s{sT}, {64*1152}")
    A(f"s_lshl_b32 s70, s{sJ}, 7")
    A(f"s_add_u32 s{sT}, s{sT}, s70")
    set_srd(R_T1, sT, sWO, 64 * 1152)
    A(f"s_mov_b32 s{sST}, 4608"); A("s_mov_b32 s70, 1152"); A(f"s_mov_b32 s71, {32*1152}")
    tail_addr("s70", "s71")
    main_setup()
    if p.SL: ldswait(CNT_A, 1, 30)
    else: ldswait(CNT_G, 2, 30)
    stamp(10)
    seq = [("kv", n) for n in range(p.P1, 16)] + [("t", k) for k in range(8 - p.WL)] + [("kv", n) for n in range(16, 32)]
    for idx, (kind, n) in enumerate(seq):
        if idx == (p.SL or p.P2): ldswait(CNT_P, 2, 30)
        dd = p.DL if idx < p.SL else p.DW
        if idx + p.P1 >= dd and idx < len(seq) - p.XW_: A(f"s_waitcnt vmcnt({dd-1})")
        if kind == "kv": kvload(n)
        else: tail_load(n)
    A("L_main_j:")
    stamp(2)
    tl = list(range(8 - p.WL, 8))
    nt_ = [0]
    def tissue(k):
        for _ in range(k):
            if nt_[0] < len(tl): tail_load(tl[nt_[0]]); nt_[0] += 1
    tissue(p.PRE)
    for k, m in ((44, 0x22222222), (46, 0x44444444), (48, 0x88888888)):
        A(f"s_mov_b32 s{k}, {hex(m)}"); A(f"s_mov_b32 s{k+1}, {hex(m)}")
    A(f"s_mov_b32 s70, 0x3db504f3")
    A(f"s_mov_b32 s71, {hex(LOG2E)}")
    ldswait(CNT_Q, 4, 30)
    stamp(3)
    A(f"ds_read_b128 {r4(QA)}, v28")
    A(f"ds_read_b128 {r4(QB)}, v29")
    A(f"s_waitcnt vmcnt({16+nt_[0]}) lgkmcnt(1)")
    T = [KB + 4 * (8 * r + u) for r in range(2) for u in range(4)]
    for t in T: A(f"v_mfma_f32_16x16x32_bf16 {r4(t)}, {r4(t)}, {r4(QA)}, 0")
    A("s_waitcnt lgkmcnt(0)")
    for t in T: A(f"v_mfma_f32_16x16x32_bf16 {r4(t)}, {r4(t+16)}, {r4(QB)}, {r4(t)}")
    for r in range(2):
        for t in T[4*r:4*r+4]: A(f"v_mov_b32_dpp v{t}, v{t} quad_perm:[0,0,0,0] {DPP}")
        for e in range(1, 4):
            for t in T[4*r:4*r+4]: A(f"v_add_f32_dpp v{t}, v{t+e}, v{t} quad_perm:[{e},{e},{e},{e}] {DPP}")
    PR = 30
    for r in range(2): A(f"v_cndmask_b32 v{PR+r}, v{T[4*r]}, v{T[4*r+1]}, s[44:45]")
    for r in range(2): A(f"v_cndmask_b32 v{PR+r}, v{PR+r}, v{T[4*r+2]}, s[46:47]")
    for r in range(2): A(f"v_cndmask_b32 v{PR+r}, v{PR+r}, v{T[4*r+3]}, s[48:49]")
    A("v_cvt_pk_bf16_f32 v32, v30, v31")
    A("v_lshlrev_b32 v30, 16, v32"); A("v_and_b32 v31, 0xffff0000, v32")
    A("v_pk_mul_f32 v[30:31], v[30:31], s[70:71] op_sel_hi:[1,0]")
    A("v_cvt_pk_bf16_f32 v32, v30, v31")
    A("v_lshlrev_b32 v30, 16, v32"); A("v_and_b32 v31, 0xffff0000, v32")
    A("v_max_f32 v32, v30, v31")
    for ctl in ("quad_perm:[1,0,3,2]", "quad_perm:[2,3,0,1]", "row_half_mirror"):
        A(f"v_max_f32_dpp v32, v32, v32 {ctl} {DPP}")
    rowsall("v_max_f32", [32], [33])
    A("v_pk_add_f32 v[30:31], v[30:31], v[32:33] op_sel_hi:[1,0] neg_lo:[0,1] neg_hi:[0,1]")
    A(f"ds_write_b32 v19, v32 offset:{L_MAX}")
    A("v_pk_mul_f32 v[30:31], v[30:31], s[70:71] op_sel:[0,1] op_sel_hi:[1,1]")
    A("v_exp_f32 v30, v30"); A("v_exp_f32 v31, v31")
    A("v_add_f32 v33, v30, v31")
    A("v_cvt_pk_bf16_f32 v30, v30, v30"); A("v_cvt_pk_bf16_f32 v31, v31, v31")
    A(f"v_add_f32_dpp v33, v33, v33 quad_perm:[1,0,3,2] {DPP}")
    A(f"v_mov_b32_dpp v34, v30 row_half_mirror {DPP}")
    A(f"v_mov_b32_dpp v35, v31 row_half_mirror {DPP}")
    A(f"v_add_f32_dpp v33, v33, v33 quad_perm:[2,3,0,1] {DPP}")
    def pbuild(n):
        r, k = n >> 3, n & 7
        for d in range(4):
            if (k >> 2) == (d >> 1): src, q = 30 + r, k & 3
            else: src, q = 34 + r, (7 - k) & 3
            A(f"v_and_b32_dpp v{KB+4*n+d}, v{src}, v{vMASK+d} quad_perm:[{q},{q},{q},{q}] {DPP}")
    pbuild(0)
    A(f"v_add_f32_dpp v33, v33, v33 row_half_mirror {DPP}")
    pbuild(1)
    rowsall("v_add_f32", [33], [36])
    A(f"ds_write_b32 v19, v33 offset:{L_LB}")
    ldssignal(CNT_L, 36)
    A(f"s_setprio 2")
    tissue(p.MID)
    for n in range(8):
        pbuild(n + 2)
        A(f"s_waitcnt vmcnt({15-n+nt_[0]})")
        mfma(OA, KB + 4 * n, VB + 4 * n, n == 0)
    tissue(8)
    for n in range(10, 16): pbuild(n)
    stamp(4)
    A(f"s_lshl_b32 s70, s{sW}, 2")
    A(f"v_add_u32 v3, s70, v17")
    ldswait(CNT_L, 4, 36)
    A(f"ds_read_b128 v[20:23], v17 offset:{L_MAX}")
    A(f"ds_read_b128 v[24:27], v17 offset:{L_LB}")
    A(f"ds_read_b32 v36, v3 offset:{L_MAX}")
    A(f"ds_read_b32 v37, v{vZ} offset:{CNT_MODE}")
    A(f"s_lshl_b32 s70, s{sW}, 10")
    A("s_waitcnt lgkmcnt(0)")
    A(f"v_readfirstlane_b32 s{sMODE}, v37")
    A("v_max3_f32 v32, v20, v21, v22"); A("v_max_f32 v32, v32, v23")
    for v in (20, 21, 22, 23, 36): A(f"v_sub_f32 v{v}, v{v}, v32")
    for v in (20, 21, 22, 23, 36): A(f"v_mul_f32 v{v}, s71, v{v}")
    for v in (20, 21, 22, 23, 36): A(f"v_exp_f32 v{v}, v{v}")
    A("v_mul_f32 v33, v20, v24")
    for e in range(1, 4): A(f"v_fmac_f32 v33, v{20+e}, v{24+e}")
    A("v_permlane32_swap_b32 v32, v34")
    A("v_permlane32_swap_b32 v33, v35")
    tag4(32)
    A(f"v_lshlrev_b32 v20, 4, v{vL}")
    A(f"v_add_u32 v19, s70, v20")
    for n in range(8, 16):
        A(f"s_waitcnt vmcnt({15-n+nt_[0]})")
        mfma(OA, KB + 4 * n, VB + 4 * n, False)
    stamp(5)
    A(f"v_pk_mul_f32 {r2(OA)}, {r2(OA)}, v[36:37] op_sel_hi:[1,0]")
    A(f"v_pk_mul_f32 {r2(OA+2)}, {r2(OA+2)}, v[36:37] op_sel_hi:[1,0]")
    A(f"ds_write_b128 v19, {r4(OA)} offset:{L_OB}")
    ldssignal(CNT_O, 26, rtn=True)
    A("s_cbranch_vccz L_m_pub_done")
    for w in range(4): A(f"ds_read_b128 {r4(KB+4*w)}, v20 offset:{L_OB+1024*w}")
    A("s_waitcnt lgkmcnt(0)")
    sum4(KB, KB)
    tag1(KB)
    cold.append(pubstore(r4(KB), "v18", sPUB))
    A("s_mov_b64 exec, 1")
    cold.append(pubstore("v[32:35]", f"v{vZ}", sPUB, "offset:1024"))
    A("s_mov_b64 exec, -1")
    ldssignal(CNT_PUB, 26)
    A("L_m_pub_done:")
    stamp(6)
    A(f"s_cmp_lg_u32 s{sCLS}, 0"); A("s_cbranch_scc1 L_m_other")

    A(f"v_mul_u32_u24 v3, 1152, v{vG}")
    A(f"v_and_b32 v21, 3, v{vI}")
    A(f"v_mul_u32_u24 v21, 4608, v21")
    A(f"v_add_u32 v21, v21, v3")
    A(f"s_mul_i32 s70, s{sG}, {16*1152}"); A(f"s_add_u32 s48, s70, {OP}")
    A(f"v_lshl_add_u32 v3, v{vI}, 4, v3")
    A(f"s_lshl_b32 s71, s{sW}, 8"); A("s_add_u32 s44, s48, s71")
    for a in range(1, 4): A(f"s_add_u32 s{44+a}, s44, {4608*a}")
    A(f"s_mul_i32 s{sPUB}, s{sG}, 2304"); A(f"s_lshl_b32 s70, s{sJ}, 8"); A(f"s_add_u32 s{sPUB}, s{sPUB}, s70"); A(f"s_add_u32 s{sPUB}, s{sPUB}, {AP}")
    A(f"s_cmp_ge_u32 s{sW}, 2"); A("s_cselect_b64 s[70:71], -1, 0")
    b = VB; S = VB + 16
    A(f"s_mov_b32 s49, {p.limit}")
    A("L_s3:".replace("s3", "s3poll"))
    poll([([f"buffer_load_dwordx4 {r4(S)}, v21, {WS}, s48 offen offset:1024 sc1"], [(S + e, f"s{sTAG+e}") for e in range(4)], lambda: None)], 22, 0, 2)
    stamp(9)
    for a in range(4): A(f"buffer_load_dwordx4 {r4(b+4*a)}, v3, {WS}, s{44+a} offen sc1")
    A(f"v_cndmask_b32 v24, v{S}, v{S+2}, s[70:71]")
    A(f"v_cndmask_b32 v25, v{S+1}, v{S+3}, s[70:71]")
    A("v_and_b32 v24, 0xffff0000, v24")
    A(f"v_max_f32_dpp v26, v24, v24 quad_perm:[1,0,3,2] {DPP}")
    A(f"v_max_f32_dpp v26, v26, v26 quad_perm:[2,3,0,1] {DPP}")
    rowsall("v_max_f32", [26], [27])
    A("v_sub_f32 v24, v24, v26")
    A(f"v_mul_f32 v24, {hex(LOG2E)}, v24")
    A("v_exp_f32 v24, v24")
    A("v_mul_f32 v25, v24, v25")
    A(f"v_add_f32_dpp v25, v25, v25 quad_perm:[1,0,3,2] {DPP}")
    A(f"v_add_f32_dpp v25, v25, v25 quad_perm:[2,3,0,1] {DPP}")
    rowsall("v_add_f32", [25], [27])
    A("v_rcp_f32 v25, v25")
    A("v_mul_f32 v24, v24, v25")
    for a in range(4):
        A(f"s_waitcnt vmcnt({3-a})")
        if a == 0: A(f"v_xor_b32 v22, v{vTC}, v{b}")
        else: A(f"v_bitop3_b32 v22, v{b+4*a}, v{vTC}, v22 bitop3:0xbe")
        for e in range(4):
            A(f"{'v_mul_f32_dpp' if a == 0 else 'v_fmac_f32_dpp'} v{28+e}, v24, v{b+4*a+e} quad_perm:[{a},{a},{a},{a}] {DPP}")
    A("v_and_b32 v22, 0xff, v22")
    A("v_cmp_ne_u32 vcc, 0, v22")
    A("s_cbranch_vccnz L_s3retry")
    A("L_s3ok:")
    cold.append(lambda: (A("L_s3retry:"), A("s_sub_u32 s49, s49, 1"), A("s_cbranch_scc0 L_s3poll"), A("s_branch L_s3ok")))
    stamp(7)
    redscat([28])
    A(f"v_mov_b32_dpp v29, v28 row_ror:8 {DPP}")
    A("v_cvt_pk_bf16_f32 v28, v28, v29")
    gemv8(lambda n: (28, n), 8, [KB, KB + 4, KB + 8], 30, [(OA, T1B)])
    A("L_comb:")
    A(f"ds_write_b128 v19, {r4(OA)} offset:{L_WB}")
    ldssignal(CNT_W, 26, rtn=True)
    A("s_cbranch_vccz L_m_end")
    for w in range(4): A(f"ds_read_b128 {r4(KB+4*w)}, v20 offset:{L_WB+1024*w}")
    A("s_waitcnt lgkmcnt(0)")
    sum4(KB, KB)
    halfadd([KB], [KB + 4])
    A(f"s_cmp_lg_u32 s{sCLS}, 0"); A("s_cbranch_scc1 L_comb_b")
    tag1(KB)
    A("L_comb_st:")
    A("s_mov_b64 exec, 0x00ff00ff")
    A(f"buffer_store_dwordx4 {r4(KB)}, v{vST}, {WS}, s{sPUB} offen sc1")
    A("L_m_end:")
    stamp(8)
    endwave()
    A("L_comb_b:")
    for e in range(4): bf16r(KB + e, KB + e)
    tag4(KB)
    A("s_branch L_comb_st")

    A("L_m_other:")
    A("s_setprio 0")
    A(f"s_cmp_eq_u32 s{sCLS}, 1"); A("s_cbranch_scc1 L_m_m")
    A(f"s_cmp_eq_u32 s{sCLS}, 3"); A("s_cbranch_scc1 L_m_end")
    A(f"s_mul_i32 s{sT}, s{sW}, {144*6912}")
    A(f"s_lshl_b32 s70, s{sBLK}, 7")
    A(f"s_add_u32 s{sT}, s{sT}, s70")
    A(f"s_add_u32 s{sT}, s{sT}, 2304")
    set_srd(R_T1, sT, sWM, 144 * 6912)
    A("s_mov_b32 s70, 6912"); A(f"s_mov_b32 s71, {4*6912}")
    tail_addr("s70", "s71")
    A(f"s_mul_i32 s70, s{sW}, 144")
    A(f"v_lshl_add_u32 v3, v{vI}, 3, v{vG}")
    A(f"v_add_lshl_u32 v3, v3, s70, 1")
    ldswait(CNT_PUB, 1, 26)
    A(f"global_load_short_d16_hi v24, v3, {sp(sC)}")
    A(f"global_load_short_d16_hi v25, v3, {sp(sC)} offset:8")
    A(f"v_and_b32 v3, 1, v{vI}")
    A(f"v_lshl_add_u32 v3, v3, 3, v{vG}")
    A(f"v_add_lshl_u32 v3, v3, s70, 1")
    A(f"global_load_short_d16_hi v26, v3, {sp(sC)} offset:256")
    A(f"global_load_short_d16_hi v27, v3, {sp(sC)} offset:264")
    for k in range(18):
        if p.GD == 1 and k == p.N1B: ldswait(CNT_GD, 1, 28)
        if k >= p.D3B and not (p.GD and k >= p.N1B): A(f"s_waitcnt vmcnt({p.D3B-1})")
        A(f"buffer_load_dwordx4 {r4(T1B+4*k)}, v{vT}, {srd(R_T1)}, s{sO1} offen {nt}")
        A(f"s_add_u32 s{sO1}, s{sO1}, {8*6912}")
    A(f"s_lshl_b32 s{sPUB}, s{sBLK}, 8"); A(f"s_add_u32 s{sPUB}, s{sPUB}, {MB}")
    A("s_waitcnt vmcnt(18)")
    silu([24, 25, 26, 27], [28, 29, 30, 31])
    A("v_cvt_pk_bf16_f32 v24, v24, v25")
    A("v_cvt_pk_bf16_f32 v26, v26, v27")
    gemv8(lambda n: (24 if n < 16 else 26, n & 15), 18, [KB, KB + 4, KB + 8], 28, [(OA, T1B)], waits=lambda n: A(f"s_waitcnt vmcnt({17-n})"))
    A("s_nop 7")
    A("s_branch L_comb")

    A("L_c_post:")
    stamp(1)
    classify()
    consts()
    A("s_cmp_eq_u32 s3, 3"); A("s_cbranch_scc0 L_c_n3")
    def prereads(mask):
        if not mask: return
        A(f"s_lshl_b32 s69, s{sG}, 4"); A(f"s_add_u32 s69, s69, s{sJ}")
        A(f"v_lshlrev_b32 v3, 7, v{vL}")
        if mask & 1:
            A("s_lshl_b32 s70, s69, 10"); A(f"s_add_u32 s70, s70, {QP}")
            A(f"s_cmp_eq_u32 s{sCLS}, 0"); A("s_cselect_b32 exec_lo, 0xff, 1"); A("s_mov_b32 exec_hi, 0")
            A(f"buffer_load_dword v234, v3, {WS}, s70 offen")
        if mask & 2:
            A("s_lshl_b32 s70, s2, 8"); A(f"s_min_u32 s70, s70, {143*256}"); A(f"s_add_u32 s70, s70, {MA}")
            A("s_mov_b64 exec, 3")
            A(f"buffer_load_dword v235, v3, {WS}, s70 offen")
        if mask & 4:
            A("s_mul_i32 s70, s69, 1152"); A(f"s_add_u32 s70, s70, {OP}")
            A("s_mov_b64 exec, 0x1ff")
            A(f"buffer_load_dword v232, v3, {WS}, s70 offen")
        if mask & 8:
            A("s_mov_b32 exec_hi, 0")
            A(f"s_mul_i32 s70, s{sG}, 2304"); A(f"s_lshl_b32 s71, s{sBLK}, 8"); A("s_add_u32 s70, s70, s71"); A(f"s_add_u32 s70, s70, {AP}")
            A(f"s_add_u32 s71, s71, {MB}")
            A(f"s_cmp_eq_u32 s{sCLS}, 2"); A("s_cselect_b32 s70, s71, s70")
            A(f"s_mul_i32 s71, s{sBLK}, 2304"); A(f"s_add_u32 s71, s71, {FP}")
            A(f"s_cmp_eq_u32 s{sCLS}, 1"); A("s_cselect_b32 s70, s71, s70")
            A("s_cselect_b32 exec_lo, 0x3ffff, 3")
            A(f"s_cmp_eq_u32 s{sCLS}, 3"); A(f"s_cselect_b32 s70, {AP}, s70")
            A(f"buffer_load_dword v233, v3, {WS}, s70 offen")
        A("s_mov_b64 exec, -1")
    prereads(p.preread)
    tagsetup()
    A(f"s_getreg_b32 s{sID}, hwreg(HW_REG_XCC_ID)"); A(f"s_and_b32 s{sID}, s{sID}, 15")
    A(f"s_and_b32 s70, s{sTAG}, 0xfffffff0"); A(f"s_or_b32 s{sID}, s{sID}, s70")
    A(f"v_mov_b32 v21, s{sID}")
    A(f"s_lshl_b32 s70, s{sG}, 11"); A(f"s_lshl_b32 s71, s{sJ}, 2"); A("s_add_u32 s70, s70, s71"); A(f"s_add_u32 s70, s70, {IDS}")
    A(f"v_lshlrev_b32 v3, 7, v{vL}")
    A("s_mov_b64 exec, 0xffff")
    A(f"buffer_store_dword v21, v3, {WS}, s70 offen sc1")
    A("s_mov_b64 exec, -1")
    if p.h1:
        A(f"s_cmp_lg_u32 s{sCLS}, 0"); A("s_cbranch_scc1 L_c3_id")
        A(f"s_mul_i32 s64, s{sG}, 18"); A(f"s_add_u32 s64, s64, s{sJ}"); A("s_lshl_b32 s64, s64, 7"); A(f"s_add_u32 s64, s64, {HINT1}"); A(f"s_add_u32 s65, s64, {9*128}")
        A(f"s_and_b32 s70, s{sTAG}, 0xffff"); A("s_mul_i32 s70, s70, 0x10001"); A("s_mov_b32 s71, s70")
        A(f"s_mov_b32 s{sCNT}, {p.limit}")
        A("L_hw:")
        A(f"s_load_dwordx4 s[44:47], {sp(sWS)}, s64 glc")
        A(f"s_load_dwordx4 s[48:51], {sp(sWS)}, s65 glc")
        A("s_waitcnt lgkmcnt(0)")
        for k in range(4):
            A(f"s_cmp_eq_u64 s[{44+2*k}:{45+2*k}], s[70:71]")
            A("s_cbranch_scc0 L_hf" if k < 3 else "s_cbranch_scc1 L_hd")
        A("L_hf:")
        if p.hsleep: A(f"s_sleep {p.hsleep}")
        A(f"s_sub_u32 s{sCNT}, s{sCNT}, 1")
        A("s_cbranch_scc0 L_hw")
        A("L_hd:")
        ldssignal(CNT_H1, 21)
        stamp(2)
        A("L_c3_id:")
    A(f"s_lshl_b32 s64, s{sG}, 4"); A(f"s_add_u32 s64, s64, s{sJ}"); A("s_lshl_b32 s64, s64, 7"); A(f"s_add_u32 s64, s64, {IDS}")
    A(f"s_mov_b32 s{sCNT}, {p.limit}")
    A("L_iw:")
    A(f"s_load_dwordx16 s[44:59], {sp(sWS)}, s64 glc")
    A(f"s_mov_b32 s{sMODE}, {2 if p.fast else 1}")
    A("s_waitcnt lgkmcnt(0)")
    for k in range(16):
        A(f"s_xor_b32 s65, s{44+k}, s{sID}")
        A(f"s_cselect_b32 s{sMODE}, 1, s{sMODE}")
        A("s_cmp_ge_u32 s65, 16")
        A("s_cbranch_scc1 L_if")
    A("L_id:")
    cold.append(lambda: (A("L_if:"), A(f"s_mov_b32 s{sMODE}, 1"), A("s_sleep 4"), A(f"s_sub_u32 s{sCNT}, s{sCNT}, 1"), A("s_cbranch_scc0 L_iw"), A("s_branch L_id")))
    ldssignal(CNT_MODE, 21, val=f"s{sMODE}")
    stamp(3)
    A("s_branch L_c_s2w")
    A("L_c_n3:")
    A(f"s_cmp_lg_u32 s{sCLS}, 0"); A("s_cbranch_scc1 L_c_nw")
    A("s_cmp_lg_u32 s3, 0"); A("s_cbranch_scc1 L_c_wq")
    A(f"s_lshr_b32 s70, s{sG}, 1"); A(f"s_and_b32 s71, s{sG}, 1"); A(f"s_mul_i32 s71, s71, 9"); A(f"s_add_u32 s71, s71, s{sJ}")
    A("s_lshl_b32 s64, s71, 7"); A(f"s_and_b32 s65, s{sG}, 14"); A("s_add_u32 s64, s64, s65"); A(f"s_add_u32 s64, s64, {HINT1}")
    A(f"s_mul_i32 s70, s70, 4608"); A(f"s_lshl_b32 s71, s71, 8"); A(f"s_add_u32 s70, s70, s71"); A(f"s_add_u32 s{sPUB}, s70, {MA}")
    A(f"v_mul_u32_u24 v15, {18*128}, v{vL}")
    A("s_waitcnt vmcnt(9)")
    silu([20, 21], [22, 23])
    A("v_cvt_pk_bf16_f32 v20, v20, v21")
    for n in range(9):
        A(f"v_mov_b32_dpp v{22+(n&1)}, v20 row_newbcast:{n} {DPP}")
        for e in range(4): A(f"v_perm_b32 v{SB+4*n+e}, v{22+(n&1)}, v{22+(n&1)}, v{vSEL+e}")
    tagsetup()
    for n in range(9):
        A(f"s_waitcnt vmcnt({8-n})")
        mfma(24, SB + 4 * n, WB + 4 * n, n == 0)
    stamp(2)
    halfadd([24], [28])
    tag1(24)
    A("s_mov_b64 exec, 0x00ff00ff")
    A(f"buffer_store_dwordx4 v[24:27], v{vST}, {WS}, s{sPUB} offen sc1")
    if p.h1:
        A("s_mov_b64 exec, 0xffff")
        A(f"buffer_store_short v{vTAG}, v15, {WS}, s64 offen sc1")
    A("s_mov_b64 exec, -1")
    if p.SL: ldssignal(CNT_A, 21)
    stamp(3)
    A("s_branch L_c_s2w")
    A("L_c_nw:")
    tagsetup()
    A("s_branch L_c_s2w")
    A("L_c_wq:")
    A("s_waitcnt vmcnt(16)")
    for k in range(6):
        A(f"v_lshlrev_b32 v{28+2*k}, 16, v{20+k}")
        A(f"v_and_b32 v{29+2*k}, 0xffff0000, v{20+k}")
    A(f"v_cmp_gt_u32 vcc, 16, v{vL}")
    for k in range(8, 12): A(f"v_cndmask_b32 v{28+k}, 0, v{28+k}, vcc")
    A("v_pk_add_f32 v[20:21], v[28:29], v[30:31]")
    for k in range(2, 6): A(f"v_pk_add_f32 v[20:21], v[20:21], {r2(28+2*k)}")
    A("v_add_f32 v20, v20, v21")
    wavesum_s([20], [70])
    A(f"v_mov_b32 v20, {INV576}")
    A(f"v_mul_f32 v20, s70, v20")
    for k in range(12): A(f"v_sub_f32 v{28+k}, v{28+k}, v20")
    for k in range(8, 12): A(f"v_cndmask_b32 v{28+k}, 0, v{28+k}, vcc")
    A("v_pk_mul_f32 v[22:23], v[28:29], v[28:29]")
    for k in range(1, 6): A(f"v_pk_fma_f32 v[22:23], {r2(28+2*k)}, {r2(28+2*k)}, v[22:23]")
    A("v_add_f32 v22, v22, v23")
    wavesum_s([22], [70])
    A(f"v_mov_b32 v22, {INV576}")
    A(f"v_mul_f32 v22, s70, v22")
    bf16r(20, 20); bf16r(22, 22)
    A(f"v_add_f32 v22, {EPS}, v22")
    bf16r(22, 22)
    A("v_sqrt_f32 v22, v22")
    bf16r(22, 22)
    A("v_sub_f32 v26, v26, v20")
    bf16r(26, 26)
    A("v_rcp_f32 v23, v22")
    A("v_mul_f32 v21, v26, v23")
    A("v_fma_f32 v24, -v21, v22, v26")
    A("v_fma_f32 v21, v24, v23, v21")
    bf16r(26, 21)
    tagsetup()
    A(f"v_mul_u32_u24 v3, 4608, v{vG}")
    A(f"v_lshl_add_u32 v3, v{vI}, 4, v3")
    A(f"s_lshl_b32 s70, s{sJ}, 8"); A(f"s_add_u32 s70, s70, {MA}"); A(f"s_add_u32 s71, s70, 18432")
    A(f"s_lshl_b32 s44, s{sG}, 4"); A(f"s_add_u32 s44, s44, s{sJ}"); A(f"s_lshl_b32 s44, s44, 10")
    A(f"s_lshl_b32 s45, s3, 9"); A("s_add_u32 s44, s44, s45"); A(f"s_add_u32 s{sPUB}, s44, {QP-512}")
    if p.h1: ldswait(CNT_H1, 1, 20)
    else: A("s_waitcnt vmcnt(0)")
    stamp(2)
    poll([([f"buffer_load_dwordx4 {r4(G1+4*a)}, v3, {WS}, s{70+(a&1)} offen offset:{2304*(a>>1)} sc1" for a in range(4)],
           [(G1 + 4 * a, f"v{vTC}") for a in range(4)], lambda: (addgran(28, G1, G1 + 4), addgran(32, G1 + 8, G1 + 12)))],
         20, 0, 0, issued=(lambda: ldssignal(CNT_G, 21)) if p.h1 else None)
    if not p.h1: ldssignal(CNT_G, 21)
    stamp(3)
    redscat([28, 32])
    A("v_cvt_pk_bf16_f32 v28, v28, v32")
    A("v_and_b32 v32, 0xffff0000, v28")
    A("v_lshlrev_b32 v28, 16, v28")
    A(f"v_add_f32 v32, 1.0, v32")
    bf16r(32, 32)
    A(f"v_mul_f32 v26, v26, v32")
    bf16r(26, 26)
    A(f"v_add_f32 v26, v26, v28")
    A("v_cvt_pk_bf16_f32 v26, v26, v26")
    def bld(n):
        for d in range(4): A(f"v_and_b32_dpp v{SB+4*(n%3)+d}, v26, v{vMASK+d} row_newbcast:{n} {DPP}")
    bld(0)
    for n in range(16):
        if n < 15: bld(n + 1)
        if n == 13: A(f"ds_read_b32 v21, v{vZ} offset:{CNT_MODE}")
        mfma(28, SB + 4 * (n % 3), WB + 4 * n, n == 0)
    A("s_waitcnt lgkmcnt(0)")
    A(f"v_readfirstlane_b32 s{sMODE}, v21")
    tag1(28)
    A("s_mov_b32 exec_hi, 0")
    cold.append(pubstore("v[28:31]", f"v{vST}", sPUB))
    A("s_mov_b64 exec, -1")
    ldssignal(CNT_P, 21)
    stamp(4)
    A("L_c_s2w:")
    A(f"v_lshlrev_b32 v3, 10, v{vG}")
    A(f"v_lshl_add_u32 v3, v{vI}, 4, v3")
    A(f"s_lshl_b32 s70, s{sG}, 14"); A("s_lshl_b32 s71, s3, 8"); A("s_add_u32 s70, s70, s71"); A(f"s_add_u32 s44, s70, {QP}")
    for a in range(1, 3): A(f"s_add_u32 s{44+a}, s44, {4096*a}")
    A(f"v_lshl_add_u32 v14, v{vI}, 2, v{vG}")
    A(f"s_lshl_b32 s70, s3, 6")
    A(f"v_add_lshl_u32 v14, v14, s70, 1")
    G2 = 136
    for i in range(p.k2):
        A(f"v_and_b32 v{G2+12*i+8}, 0xff, v{vTC}")
        for e in range(1, 4): A(f"v_mov_b32 v{G2+12*i+8+e}, 0")
    ldswait(CNT_P, 2, 20)
    def s2set(b):
        return ([f"buffer_load_dwordx4 {r4(b+4*a)}, v3, {WS}, s{44+a} offen sc1" for a in range(2)] +
                ["s_mov_b64 exec, 0xffff", f"buffer_load_dwordx4 {r4(b+8)}, v3, {WS}, s46 offen sc1", "s_mov_b64 exec, -1"],
                [(b + 4 * a, f"v{vTC}") for a in range(3)], lambda: (addgran(28, b, b + 4), addgran(28, 28, b + 8)))
    poll([s2set(G2 + 12 * i) for i in range(p.k2)], 20, p.g2, 1, sleep=p.psleep)
    stamp(5)
    redscat([28])
    A(f"v_cvt_pk_bf16_f32 v20, v28, v28")
    A(f"ds_write_b16 v14, v20 offset:{L_Q}")
    ldssignal(CNT_Q, 21)
    stamp(6)
    if p.prelate:
        A("s_cmp_lg_u32 s3, 3"); A("s_cbranch_scc1 L_nopl")
        prereads(p.prelate)
        A("L_nopl:")
    A(f"s_cmp_eq_u32 s{sCLS}, 1"); A("s_cbranch_scc1 L_c_m")
    A("s_cmp_lg_u32 s3, 3"); A("s_cbranch_scc1 L_c_end")
    if p.GD == 1:
        A(f"s_cmp_lg_u32 s{sCLS}, 2"); A("s_cbranch_scc1 L_c_nb")
        ldswait(CNT_PUB, 1, 20)
        gdpoll()
        A("s_branch L_c_end")
        A("L_c_nb:")
    A(f"s_mov_b32 s{sBLK}, s{sG}")
    A(f"s_cmp_eq_u32 s{sJ}, 8"); A("s_cbranch_scc1 L_red")
    A(f"s_add_u32 s{sBLK}, s{sG}, 16")
    A(f"s_cmp_lg_u32 s{sJ}, 7"); A("s_cbranch_scc1 L_c_end")
    A(f"s_cmp_lt_u32 s{sG}, 2"); A("s_cbranch_scc1 L_red")
    A("L_c_end:")
    endwave()

    A("L_red:")
    A(f"v_and_b32 v14, 7, v{vI}")
    A(f"v_lshl_add_u32 v15, v14, 2, v{vG}")
    A(f"s_lshl_b32 s70, s{sBLK}, 5")
    A(f"v_add_u32 v15, s70, v15")
    A(f"v_lshlrev_b32 v18, 1, v15")
    A(f"v_lshlrev_b32 v15, 2, v15")
    A(f"v_lshrrev_b32 v3, 3, v{vL}")
    A(f"v_mul_u32_u24 v3, 2304, v3")
    A(f"v_lshl_add_u32 v3, v14, 4, v3")
    A(f"s_lshl_b32 s70, s{sBLK}, 7")
    A(f"v_add_u32 v3, s70, v3")
    A(f"s_mov_b32 s44, {AP}"); A(f"s_mov_b32 s45, {AP+18432}"); A(f"s_mov_b32 s46, {MB}"); A(f"s_mov_b32 s47, {MB+1728*4}")
    ldswait(CNT_W, 4, 20)
    stamp(7)
    A(f"global_load_short_d16_hi v24, v18, {sp(sX)}")
    A(f"global_load_short_d16_hi v25, v18, {sp(sB2)}")
    poll([([f"buffer_load_dwordx4 {r4(40+4*a)}, v3, {WS}, s{44+a} offen sc1" for a in range(2)] +
           [f"buffer_load_dword v26, v15, {WS}, s46 offen sc1", f"buffer_load_dword v27, v15, {WS}, s47 offen sc1"],
           [(40, f"v{vTC}"), (44, f"v{vTC}"), (26, f"v{vTG}"), (27, f"v{vTG}")], lambda: None)], 20, 0, 2, sleep=4)
    stamp(8)
    addgran(40, 40, 44)
    redscat([40])
    A(f"v_add_f32_dpp v40, v40, v40 row_ror:8 {DPP}")
    A("v_and_b32 v26, 0xffff0000, v26")
    A("v_and_b32 v27, 0xffff0000, v27")
    bf16r(40, 40)
    A("v_mul_f32 v40, v40, v26")
    bf16r(40, 40)
    A("v_add_f32 v24, v24, v40")
    bf16r(24, 24)
    for a in range(9): A(f"s_mov_b32 s{44+a}, {FP+18432*a}")
    def s5set(b):
        def epi():
            addgran(b, b, b + 32); sum4(28, b); sum4(32, b + 16); addgran(28, 28, 32)
        return ([f"buffer_load_dwordx4 {r4(b+4*a)}, v3, {WS}, s{44+a} offen sc1" for a in range(9)],
                [(b + 4 * a, f"v{vTC}") for a in range(9)], epi)
    poll([s5set(40 + 36 * i) for i in range(p.k5)], 20, p.g5, 3)
    stamp(9)
    redscat([28])
    A(f"v_add_f32_dpp v28, v28, v28 row_ror:8 {DPP}")
    bf16r(28, 28)
    A("v_add_f32 v28, v28, v25")
    bf16r(28, 28)
    A("v_mul_f32 v28, v28, v27")
    bf16r(28, 28)
    A("v_add_f32 v28, v28, v24")
    A("v_cvt_pk_bf16_f32 v28, v28, v28")
    if p.xfix:
        A(f"s_mov_b32 s101, {p.xfix}")
        if p.probe:
            A(f"s_cmp_eq_u32 s{sBLK}, 5"); A("s_cselect_b32 s100, s100, 0"); A("s_add_u32 s101, s101, s100")
        A("L_xf:"); A("s_memrealtime s[96:97]"); A("s_waitcnt lgkmcnt(0)"); A("s_sub_u32 s96, s96, s98"); A(f"s_cmp_lt_u32 s96, s101"); A("s_cbranch_scc1 L_xf")
    A("s_mov_b32 exec_lo, 0x00ff00ff"); A("s_mov_b32 exec_hi, 0x00ff00ff")
    A(f"global_store_short v18, v28, {sp(sOUT)}")
    A(f"s_cmp_lg_u32 s{sBLK}, 0"); A("s_cbranch_scc1 L_red_end")
    A("s_mov_b64 exec, 1")
    A(f"global_store_dword v{vZ}, v{vTAG}, {sp(sWS)} offset:{EPOCH} sc1")
    A("L_red_end:")
    stamp(10)
    endwave()

    A("L_c_m:")
    A("s_setprio 0")
    A(f"s_mul_i32 s{sT}, s3, {144*9216}")
    A(f"s_lshl_b32 s70, s{sBLK}, 7")
    A(f"s_add_u32 s{sT}, s{sT}, s70")
    set_srd(R_T1, sT, sW1, 144 * 9216)
    A("s_mov_b32 s70, 9216"); A(f"s_mov_b32 s71, {4*9216}")
    tail_addr("s70", "s71")
    if p.b3:
        A(f"s_and_b32 s70, s{sBLK}, 7"); A("s_cmp_lg_u32 s70, 3"); A("s_cbranch_scc1 L_c_m0")
        for k in range(18):
            if k == 5: ldswait(CNT_PUB, 1, 20)
            A(f"buffer_load_dwordx4 {r4(T1B+4*k)}, v{vT}, {srd(R_T1)}, s{sO1} offen {nt}")
            A(f"s_add_u32 s{sO1}, s{sO1}, {8*9216}")
        A("s_branch L_mphase")
        A("L_c_m0:")
    ldswait(CNT_PUB, 1, 20)
    for k in range(18):
        if p.GD == 1 and k == p.N1C:
            A("s_cmp_lg_u32 s3, 3"); A("s_cbranch_scc1 L_c_m1")
            gdpoll()
            A("L_c_m1:")
            ldswait(CNT_GD, 1, 20)
        if k >= p.DC and not (p.GD and k >= p.N1C): A(f"s_waitcnt vmcnt({p.DC-1})")
        A(f"buffer_load_dwordx4 {r4(T1B+4*k)}, v{vT}, {srd(R_T1)}, s{sO1} offen {nt}")
        A(f"s_add_u32 s{sO1}, s{sO1}, {8*9216}")
    A("s_branch L_mphase")
    X2B = KB
    A("L_m_m:")
    def w2srd():
        A(f"s_mul_i32 s{sT}, s{sBLK}, {64*1152}")
        A(f"s_lshl_b32 s70, s{sW}, 7")
        A(f"s_add_u32 s{sT}, s{sT}, s70")
        set_srd(R_T1, sT, sW2, 64 * 1152)
        A(f"s_add_u32 s{sT}, s{sT}, 512")
        set_srd(R_T2, sT, sW2, 64 * 1152)
    w2srd()
    A(f"s_mov_b32 s{sST}, 4608"); A("s_mov_b32 s70, 1152"); A(f"s_mov_b32 s71, {32*1152}")
    tail_addr("s70", "s71")
    ldswait(CNT_PUB, 1, 26)
    for k in range(8):
        if p.GD == 1 and k == p.N1M: ldswait(CNT_GD, 1, 26)
        if k >= p.D3 and not (p.GD and k >= p.N1M): A(f"s_waitcnt vmcnt({p.D3-1})")
        tail_load(k)
    def m_rest(lab, paced):
        for k in range(8, 16):
            if paced: A(f"s_waitcnt vmcnt({p.D3-1})")
            tail_load(k)
        A(f"s_cmp_lg_u32 s{sW}, 0"); A(f"s_cbranch_scc1 {lab}")
        A(f"s_mov_b32 s{sO1}, 1024")
        for k in range(8):
            if paced: A(f"s_waitcnt vmcnt({p.D3-1})")
            A(f"buffer_load_dwordx4 {r4(X2B+4*k)}, v{vT}, {srd(R_T1)}, s{sO1} offen {nt}")
            A(f"s_add_u32 s{sO1}, s{sO1}, s{sST}")
    if not p.ZH: m_rest("L_mphase", True)
    A("L_mphase:")
    stamp(7)
    A(f"v_lshl_add_u32 v14, v{vI}, 2, v{vG}")
    A(f"s_lshl_b32 s70, s3, 6")
    A(f"v_add_u32 v15, s70, v14")
    A(f"v_lshlrev_b32 v3, 1, v15")
    A(f"global_load_short_d16_hi v24, v3, {sp(sX)}")
    A(f"v_lshlrev_b32 v3, 1, v14")
    A(f"global_load_short_d16_hi v25, v3, {sp(sX)} offset:1024")
    A(f"s_lshl_b32 s70, s{sBLK}, 7")
    A(f"v_add_u32 v3, s70, v3")
    A(f"global_load_short_d16_hi v23, v3, {sp(sB1)}")
    A(f"v_lshlrev_b32 v15, 2, v15")
    A(f"v_lshlrev_b32 v22, 2, v14")
    A(f"v_mul_u32_u24 v3, 2304, v{vG}")
    A(f"v_lshl_add_u32 v3, v{vI}, 4, v3")
    A(f"s_lshl_b32 s70, s3, 8"); A(f"s_add_u32 s44, s70, {AP}")
    for a in range(1, 4): A(f"s_add_u32 s{44+a}, s44, {9216*a}")
    A(f"s_mov_b32 s48, {MB}"); A(f"s_mov_b32 s49, {MB+4608}")
    for a in range(4): A(f"s_mov_b32 s{18+a}, {AP+2048+9216*a}")
    A(f"s_mov_b32 s50, {MB+2048}"); A(f"s_mov_b32 s51, {MB+2048+2304}"); A(f"s_mov_b32 s22, {MB+2048+4608}")
    A(f"v_lshlrev_b32 v18, 4, v{vL}")
    A(f"v_lshlrev_b32 v19, 2, v{vL}")
    A(f"s_mul_i32 s70, s3, 144")
    A(f"v_lshl_add_u32 v20, v{vI}, 3, v{vG}")
    A(f"v_add_lshl_u32 v20, v20, s70, 2")
    A(f"v_and_b32 v17, 1, v{vI}")
    A(f"v_lshl_add_u32 v17, v17, 3, v{vG}")
    A(f"s_add_u32 s70, s70, 128")
    A(f"v_add_lshl_u32 v17, v17, s70, 2")
    for k, off in enumerate((L_X2, L_AA, L_SS)):
        A(f"v_add_u32 v{72+2*k}, {off}, v20")
        A(f"v_add_u32 v{73+2*k}, {off}, v17")
    A(f"v_lshrrev_b32 v21, 1, v{vG}")
    A(f"s_lshl_b32 s70, s3, 1")
    A(f"v_add_lshl_u32 v21, v21, s70, 8")
    A(f"v_and_b32 v17, 7, v{vI}")
    A(f"v_lshl_add_u32 v21, v17, 5, v21")
    A(f"v_and_b32 v17, 1, v{vG}")
    A(f"v_lshl_add_u32 v21, v17, 4, v21")
    A(f"s_mul_i32 s{sPUB}, s{sBLK}, 2304"); A("s_lshl_b32 s70, s3, 8"); A(f"s_add_u32 s{sPUB}, s{sPUB}, s70"); A(f"s_add_u32 s{sPUB}, s{sPUB}, {FP-1024}")
    A(f"s_waitcnt vmcnt({p.XW})")
    A("s_barrier")
    stamp(11)
    def blockstep(items):
        if len(items) > 1:
            for G, ga, xr in items: sum4(G, G)
        redscat([G for G, _, _ in items])
        for G, ga, xr in items:
            A(f"v_and_b32 v{ga+2}, 0xffff0000, v{ga+2}")
            A(f"v_cvt_pk_bf16_f32 v{G}, v{G}, v{G}")
            A(f"v_and_b32 v{ga}, 0xffff0000, v{ga}")
            A(f"v_lshlrev_b32 v{G}, 16, v{G}")
            A(f"v_add_f32 v{ga+2}, 1.0, v{ga+2}")
            A(f"v_mul_f32 v{G}, v{G}, v{ga}")
            A(f"v_cvt_pk_bf16_f32 v{G}, v{G}, v{ga+2}")
            A(f"v_and_b32 v{ga+2}, 0xffff0000, v{G}")
            A(f"v_lshlrev_b32 v{G}, 16, v{G}")
            A(f"v_add_f32 v{G}, v{G}, v{xr}")
            bf16r(G, G)
            A(f"v_and_b32 v{ga+1}, 0xffff0000, v{ga+1}")
    def s4set2(b, c): return s4set(b, c)
    def s4set(b, two, dst=None):
        loads = [f"buffer_load_dwordx4 {r4(b+4*a)}, v3, {WS}, s{44+a} offen sc1" for a in range(4)]
        loads += [f"buffer_load_dword v{b+16}, v15, {WS}, s48 offen sc1",
                  f"buffer_load_dword v{b+17}, v15, {WS}, s48 offen offset:2304 sc1",
                  f"buffer_load_dword v{b+18}, v15, {WS}, s49 offen sc1"]
        checks = [(b + 4 * a, f"v{vTC}") for a in range(4)] + [(b + 16 + e, f"v{vTG}") for e in range(3)]
        if two:
            c = two
            loads += [f"buffer_load_dwordx4 {r4(c+4*a)}, v3, {WS}, s{18+a} offen sc1" for a in range(4)]
            loads += [f"buffer_load_dword v{c+16}, v22, {WS}, s50 offen sc1",
                      f"buffer_load_dword v{c+17}, v22, {WS}, s51 offen sc1",
                      f"buffer_load_dword v{c+18}, v22, {WS}, s22 offen sc1"]
            checks += [(c + 4 * a, f"v{vTC}") for a in range(4)] + [(c + 16 + e, f"v{vTG}") for e in range(3)]
        def epi():
            if dst is not None and dst != b:
                sum4(dst, b)
                for e in range(3): A(f"v_mov_b32 v{dst+16+e}, v{b+16+e}")
            elif dst is not None: sum4(b, b)
        return loads, checks, epi
    GB = VB
    GD_ = GB + 40 if p.k4 > 1 else GB
    def zh(lab):
        if p.ZH:
            for k in range(8, 16): tail_load(k)
    A("s_cmp_ge_u32 s3, 4"); A("s_cbranch_scc1 L_mpm")
    poll([s4set(GB + 20 * i, False, GD_) for i in range(p.k4)], 26, p.g4, 2)
    stamp(8)
    A("L_mpb:")
    blockstep([(GD_, GD_ + 16, 24)])
    A("L_mp1:")
    def mp0():
        A("L_mpm:")
        if p.ZH: w2srd()
        A("s_cmp_eq_u32 s3, 5"); A("s_cbranch_scc1 L_mp0")
        poll([s4set(GB + 20 * i, False, GD_) for i in range(p.k4)], 26, p.g4, 2)
        stamp(8)
        zh("L_zh1")
        A("s_branch L_mpb")
        A("L_mp0:")
        G5 = GD_ if p.k4 == 1 else 72 + 12
        poll([s4set2(GD_, GB if p.k4 > 1 else GB + 20)], 26, 0, 2)
        stamp(8)
        c = GB if p.k4 > 1 else GB + 20
        blockstep([(GD_, GD_ + 16, 24), (c, c + 16, 25)])
        A(f"ds_write_b32 v22, v{c} offset:{L_X2+2048}")
        A(f"ds_write_b32 v22, v{c+18} offset:{L_AA+2048}")
        A(f"ds_write_b32 v22, v{c+17} offset:{L_SS+2048}")
        A("s_branch L_mp1")
    A(f"ds_write_b32 v15, v{GD_} offset:{L_X2}")
    A(f"ds_write_b32 v15, v{GD_+18} offset:{L_AA}")
    A(f"ds_write_b32 v15, v{GD_+17} offset:{L_SS}")
    A("s_cmp_ge_u32 s3, 4")
    A("s_waitcnt lgkmcnt(0)")
    A("s_barrier")
    A("s_cbranch_scc1 L_mw2")
    XR, AR, SR_ = 40, 50, 60
    OX, OA_, OS = 84, 88, 92
    for base, off in ((XR, L_X2), (AR, L_AA), (SR_, L_SS)):
        A(f"ds_read_b128 {r4(base)}, v18 offset:{off}")
        A(f"ds_read_b128 {r4(base+4)}, v18 offset:{off+1024}")
        A(f"ds_read_b32 v{base+8}, v19 offset:{off+2048}")
        A(f"ds_read_b32 v{base+9}, v{vZ} offset:{off}")
    A(f"v_mov_b32 v81, {INV576}")
    A("s_waitcnt lgkmcnt(8)")
    def lnstats(first):
        X = XR
        for k in range(4): A(f"v_pk_add_f32 {r2(X+2*k)}, {r2(X+2*k)}, {r2(X+8)} op_sel:[0,1] op_sel_hi:[1,1] neg_lo:[0,1] neg_hi:[0,1]")
        if first:
            for k, d in enumerate((OX, OA_, OS)):
                A(f"ds_read2_b32 {r2(d)}, v{72+2*k} offset0:0 offset1:4")
                A(f"ds_read2_b32 {r2(d+2)}, v{73+2*k} offset0:0 offset1:4")
        A(f"v_sub_f32 v80, v{X+8}, v{X+9}")
        A(f"v_pk_add_f32 v[96:97], {r2(X)}, {r2(X+2)}")
        A(f"v_pk_mul_f32 v[98:99], {r2(X)}, {r2(X)}")
        A(f"v_pk_add_f32 v[82:83], {r2(X+4)}, {r2(X+6)}")
        A(f"v_pk_fma_f32 v[98:99], {r2(X+2)}, {r2(X+2)}, v[98:99]")
        A(f"v_pk_add_f32 v[96:97], v[96:97], v[82:83]")
        A(f"v_pk_fma_f32 v[98:99], {r2(X+4)}, {r2(X+4)}, v[98:99]")
        A(f"v_add_f32 v96, v96, v80")
        A(f"v_pk_fma_f32 v[98:99], {r2(X+6)}, {r2(X+6)}, v[98:99]")
        A(f"v_add_f32 v96, v96, v97")
        A(f"v_fmac_f32 v98, v80, v80")
        A(f"v_add_f32 v98, v98, v99")
        wavesum_s([96, 98], [70, 71])
        A(f"v_mul_f32 v96, s70, v81")
        A(f"v_mul_f32 v98, s71, v81")
        A(f"v_fma_f32 v98, -v96, v96, v98")
        A(f"v_max_f32 v98, 0, v98")
        A(f"v_add_f32 v98, {EPS}, v98")
        A(f"v_rsq_f32 v98, v98")
        A(f"v_add_f32 v97, v96, v{X+9}")
    lnstats(True)
    A("s_waitcnt lgkmcnt(0)")
    neg = "neg_lo:[0,1] neg_hi:[0,1]"
    for k in range(4): A(f"v_pk_add_f32 {r2(XR+2*k)}, {r2(XR+2*k)}, v[96:97] op_sel_hi:[1,0] {neg}")
    for b in (XR + 8, OX, OX + 2): A(f"v_pk_add_f32 {r2(b)}, {r2(b)}, v[96:97] op_sel:[0,1] op_sel_hi:[1,1] {neg}")
    for b in [AR + 2 * k for k in range(5)] + [OA_, OA_ + 2]: A(f"v_pk_mul_f32 {r2(b)}, {r2(b)}, v[98:99] op_sel_hi:[1,0]")
    for k in range(5): A(f"v_pk_fma_f32 {r2(XR+2*k)}, {r2(XR+2*k)}, {r2(AR+2*k)}, {r2(SR_+2*k)}")
    for k in range(2): A(f"v_pk_fma_f32 {r2(OX+2*k)}, {r2(OX+2*k)}, {r2(OA_+2*k)}, {r2(OS+2*k)}")
    lnstats(False)
    for b in (OX, OX + 2): A(f"v_pk_add_f32 {r2(b)}, {r2(b)}, v[96:97] op_sel:[0,1] op_sel_hi:[1,1] {neg}")
    for b in (OX, OX + 2): A(f"v_pk_mul_f32 {r2(b)}, {r2(b)}, v[98:99] op_sel_hi:[1,0]")
    A(f"v_cvt_pk_bf16_f32 v{OX}, v{OX}, v{OX+1}")
    A(f"v_cvt_pk_bf16_f32 v{OX+2}, v{OX+2}, v{OX+3}")
    stamp(9)
    gemv8(lambda n: (OX if n < 16 else OX + 2, n & 15), 18, [40, 44, 48], 52, [(OA, T1B)])
    A("s_mov_b32 exec_lo, 0x00ff00ff"); A("s_mov_b32 exec_hi, 0xff00ff00")
    A(f"ds_write_b128 v21, {r4(OA)} offset:{L_H1}")
    A("s_waitcnt lgkmcnt(0)")
    A("s_barrier")
    stamp(10)
    endwave()
    mp0()
    A("L_mw2:")
    if p.ZH:
        w2srd()
        A("s_cmp_lg_u32 s3, 5"); A("s_cbranch_scc1 L_mw2a")
        for k in range(8, 16): tail_load(k)
        A("L_mw2a:")
        A(f"s_cmp_lg_u32 s{sW}, 0"); A("s_cbranch_scc1 L_mw2b")
        A(f"s_mov_b32 s{sO1}, 1024")
        for k in range(8):
            A(f"buffer_load_dwordx4 {r4(X2B+4*k)}, v{vT}, {srd(R_T1)}, s{sO1} offen {nt}")
            A(f"s_add_u32 s{sO1}, s{sO1}, s{sST}")
        A("L_mw2b:")
    A(f"v_add_u32 v22, {L_H1}, v22")
    c0 = -2.0 * math.sqrt(2.0 / math.pi) * math.log2(math.e)
    A(f"v_mov_b32 v82, {f2h(c0)}")
    A(f"s_cmp_eq_u32 s{sW}, 0")
    A("s_barrier")
    stamp(9)
    for k in range(4): A(f"ds_read2st64_b32 {r2(72+2*k)}, v22 offset0:{2*k} offset1:{2*k+1}")
    A("s_waitcnt lgkmcnt(2)")
    A("v_pk_add_f32 v[72:73], v[72:73], v[74:75]")
    A("s_waitcnt lgkmcnt(0)")
    A("v_pk_add_f32 v[76:77], v[76:77], v[78:79]")
    A("v_pk_add_f32 v[72:73], v[72:73], v[76:77]")
    A("v_add_f32 v80, v72, v73")
    bf16r(80, 80)
    A("v_add_f32 v80, v80, v23")
    bf16r(80, 80)
    A("v_mul_f32 v81, v80, v80")
    A(f"v_fmac_f32 v82, {f2h(c0*0.044715)}, v81")
    A("v_mul_f32 v81, v82, v80")
    A("v_exp_f32 v81, v81")
    A("v_add_f32 v81, 1.0, v81")
    A("v_rcp_f32 v81, v81")
    A("v_mul_f32 v80, v80, v81")
    A(f"v_mov_b32_dpp v81, v80 row_ror:8 {DPP}")
    A("v_cvt_pk_bf16_f32 v80, v80, v81")
    if p.ZH: A("s_waitcnt vmcnt(0)")
    OB, OC = 232, 236
    A("s_cbranch_scc1 L_w2_0")
    gemv8(lambda n: (80, n), 8, [84, 88, 92], 82, [(OA, T1B), (OB, T2B)])
    halfadd([OA, OB], [84, 88])
    A("L_w2_1:")
    A("s_mov_b64 exec, 0x00ff00ff")
    tag1(OA); tag1(OB)
    A(f"buffer_store_dwordx4 {r4(OA)}, v{vST}, {WS}, s{sPUB} offen sc1")
    A(f"buffer_store_dwordx4 {r4(OB)}, v{vST}, {WS}, s{sPUB} offen offset:1024 sc1")
    stamp(10)
    endwave()
    A("L_w2_0:")
    gemv8(lambda n: (80, n), 8, [84, 88, 92], 82, [(OC, X2B), (OA, T1B), (OB, T2B)])
    halfadd([OC, OA, OB], [92, 84, 88])
    tag1(OC)
    A("s_mov_b64 exec, 0x00ff00ff")
    A(f"buffer_store_dwordx4 {r4(OC)}, v{vST}, {WS}, s{sPUB} offen offset:2048 sc1")
    A("s_branch L_w2_1")
    for c in cold: c()
    A("L_exit:")
    A("s_endpgm")
    A('.section .rodata,"a"')
    A(".p2align 6")
    A(f".amdhsa_kernel {KN}")
    A(".amdhsa_next_free_vgpr 248")
    A(".amdhsa_next_free_sgpr 102")
    A(".amdhsa_accum_offset 248")
    A(".amdhsa_group_segment_fixed_size 0")
    A(".amdhsa_kernarg_size 120")
    A(".amdhsa_user_sgpr_count 2")
    A(".amdhsa_user_sgpr_kernarg_segment_ptr 1")
    A(".amdhsa_system_sgpr_workgroup_id_x 1")
    A(".amdhsa_float_denorm_mode_32 3")
    A(".end_amdhsa_kernel")
    return A.text().replace(".ASMLAUNCH @", "; @")

if __name__ == "__main__":
    kw = eval("dict(" + (sys.argv[2] if len(sys.argv) > 2 else "") + ")")
    open(sys.argv[1], "w").write(gen(**kw))
```
